```python
import torch

def _softmax(x, axis=-1):
    return torch.softmax(x, dim=axis)
def _gelu(x):
    return torch.nn.functional.gelu(x, approximate="tanh")
def _silu(x):
    return torch.nn.functional.silu(x)
def _sigmoid(x):
    return torch.sigmoid(x)
def _layernorm(x, axis=-1, eps=1e-5):
    m = x.mean(dim=axis, keepdim=True)
    v = x.var(dim=axis, keepdim=True, unbiased=False)
    return (x - m) / torch.sqrt(v + eps)
def _scatter_add(tgt, idx, src, axis=0):
    return tgt.clone().index_add_(axis, idx, src)
def _segment_sum(src, seg, n):
    out = torch.zeros((n,) + src.shape[1:], dtype=src.dtype)
    return out.index_add_(0, seg, src)
def _pad(x, pw):
    flat = tuple(v for pair in reversed(pw) for v in pair)
    return torch.nn.functional.pad(x, flat)

kernel_name = 'sequential_preLN__sliding_block_cached__glu_gated_swiglu__decode'

def setup_inputs():

    _w = (lambda a: (lambda t: t.to(torch.bfloat16) if t.is_floating_point() else t)(torch.as_tensor(a)))
    def _A_setup():
        B, Sq, D = 1, 1, 512
        Hq, Hkv, Sk, Dh = 32, 8, 65536, 128
        assert Hq % Hkv == 0, (Hq, Hkv)
        return {
            "x": _w((lambda *s: torch.randn(*s, dtype=torch.bfloat16) * 0.05)(B, Sq, D)),
            "k_cache": _w((lambda *s: torch.randn(*s, dtype=torch.bfloat16) * 1.6)(B, Hkv, Sk, Dh)),
            "v_cache": _w((lambda *s: torch.randn(*s, dtype=torch.bfloat16) * 0.8)(B, Hkv, Sk, Dh)),
            "wq": _w((lambda *s: torch.randn(*s, dtype=torch.bfloat16) * 1.6)(D, Hq * Dh) * (D ** -0.5)),
            "wo": _w((lambda *s: torch.randn(*s, dtype=torch.bfloat16) * 0.8)(Hq * Dh, D) * ((Hq * Dh) ** -0.5)),
        }
    _A_in = _A_setup()

    def _B_setup():
        B, S, D, F = 1, 1, 512, 1792
        return {
            "x": _w((lambda *s: torch.randn(*s, dtype=torch.bfloat16) * 0.05)(B, S, D)),
            "w1": _w((lambda *s: torch.randn(*s, dtype=torch.bfloat16) * 0.4)(D, F) * (2.0 / D) ** 0.5),
            "w3": _w((lambda *s: torch.randn(*s, dtype=torch.bfloat16) * 0.4)(D, F) * (2.0 / D) ** 0.5),
            "w2": _w((lambda *s: torch.randn(*s, dtype=torch.bfloat16) * 0.4)(F, D) * (2.0 / F) ** 0.5),
        }
    _B_in = _B_setup()

    return {
        "A_x": _A_in["x"],
        "A_k_cache": _A_in["k_cache"],
        "A_v_cache": _A_in["v_cache"],
        "A_wq": _A_in["wq"],
        "A_wo": _A_in["wo"],
        "B_x": _B_in["x"],
        "B_w1": _B_in["w1"],
        "B_w3": _B_in["w3"],
        "B_w2": _B_in["w2"],
    }

def reference(A_x, A_k_cache, A_v_cache, A_wq, A_wo, B_x, B_w1, B_w3, B_w2):
    def _A_ref(x, k_cache, v_cache, wq, wo):
        B, Sq, D = x.shape
        Hq, Dh = 32, 128
        Hkv, Sk = k_cache.shape[1], k_cache.shape[2]
        W = min(4096, max(256, Sk // 4))
        rep = Hq // Hkv
        q = (lambda x, *d: x.permute(*d))((x @ wq).reshape(B, Sq, Hq, Dh), 0, 2, 1, 3)
        k = (lambda x, n, axis: torch.repeat_interleave(x, n, dim=axis))(k_cache[:, :, Sk - W:, :], rep, axis=1)
        v = (lambda x, n, axis: torch.repeat_interleave(x, n, dim=axis))(v_cache[:, :, Sk - W:, :], rep, axis=1)
        scores = torch.einsum("bhqd,bhkd->bhqk", q, k) * (Dh ** -0.5)
        p = _softmax(scores, axis=-1)
        o = torch.einsum("bhqk,bhkd->bhqd", p, v)
        return (lambda x, *d: x.permute(*d))(o, 0, 2, 1, 3).reshape(B, Sq, Hq * Dh) @ wo

    def _B_ref(x, w1, w3, w2):
        gate = torch.einsum("bsd,df->bsf", x, w1)
        up = torch.einsum("bsd,df->bsf", x, w3)
        h = _silu(gate) * up
        out = torch.einsum("bsf,fd->bsd", h, w2)
        return out

    x = A_x
    h = x + _A_ref(_layernorm(x, axis=-1), A_k_cache, A_v_cache, A_wq, A_wo)
    h2 = h + _B_ref(_layernorm(h, axis=-1), B_w1, B_w3, B_w2)
    return h2
```

```python
import re

TRANS = ("v_exp_f32", "v_log_f32", "v_rcp_f32", "v_rsq_f32", "v_sqrt_f32", "v_sin_f32", "v_cos_f32")
_reg_re = re.compile(r"^(-|abs\()?([vsa])(\d+)\)?$")
_rng_re = re.compile(r"^([vsa])\[(\d+):(\d+)\]$")


def regs_of(tok):
    tok = tok.strip()
    m = _rng_re.match(tok)
    if m:
        return [(m.group(1), i) for i in range(int(m.group(2)), int(m.group(3)) + 1)]
    m = _reg_re.match(tok)
    if m:
        return [(m.group(2), int(m.group(3)))]
    if tok == "vcc":
        return [("s", 106), ("s", 107)]
    if tok == "exec":
        return [("s", 126), ("s", 127)]
    if tok == "m0":
        return [("s", 124)]
    return []


class Ins:
    def __init__(self, text):
        self.text = text
        t = text.split(";")[0].strip()
        self.label = t.endswith(":")
        self.directive = t.startswith(".")
        self.mn = ""
        self.vw = set(); self.vr = set(); self.sw = set(); self.sr = set()
        self.kind = "other"
        self.dpp = False
        self.ws = 1
        self.srcC = set(); self.srcAB = set()
        if self.label or self.directive or not t:
            self.ws = 0
            return
        parts = t.split(None, 1)
        mn = parts[0]
        self.mn = mn
        rest = parts[1] if len(parts) > 1 else ""
        ops = []
        depth = 0; cur = ""
        for ch in rest:
            if ch in "[(":
                depth += 1
            if ch in "])":
                depth -= 1
            if ch == "," and depth == 0:
                ops.append(cur.strip()); cur = ""
            else:
                cur += ch
        if cur.strip():
            ops.append(cur.strip())
        mods = ""
        if ops:
            sp = ops[-1].split(None, 1)
            if len(sp) > 1:
                ops[-1] = sp[0]; mods = sp[1]
        self.ops = ops
        self.mods = mods
        R = [regs_of(o) for o in ops]

        def add(dst_v, dst_s, rs):
            for k, i in rs:
                (dst_v if k == "v" else dst_s).add(i)

        if mn == "s_nop":
            self.ws = int(ops[0], 0) + 1
            self.kind = "nop"
        elif mn.startswith("v_mfma"):
            self.kind = "mfma"
            add(self.vw, self.sw, R[0])
            for r in R[1:]:
                add(self.vr, self.sr, r)
            self.srcC = set(i for k, i in R[3] if k == "v")
            self.srcAB = set(i for k, i in R[1] + R[2] if k == "v")
        elif mn.startswith("v_"):
            self.kind = "valu"
            self.trans = mn.replace("_e32", "").replace("_e64", "") in TRANS
            self.dpp = "_dpp" in mn or "row_" in mods or "quad_perm" in mods
            add(self.vw, self.sw, R[0])
            for r in R[1:]:
                add(self.vr, self.sr, r)
            if mn.startswith("v_permlane"):
                add(self.vr, self.sr, R[0]); add(self.vw, self.sw, R[1])
            if mn.startswith("v_fmac") or mn.startswith("v_dot2c") or self.dpp:
                add(self.vr, self.sr, R[0])
            if mn.startswith("v_cndmask") and len(ops) == 3:
                self.sr |= {106, 107}
        elif mn.startswith("ds_"):
            self.kind = "ds"
            if mn.startswith("ds_read") or "rtn" in mn or mn.startswith("ds_bpermute") or mn.startswith("ds_swizzle"):
                self.memdst = set(i for k, i in R[0])
                for r in R[1:]:
                    add(self.vr, self.sr, r)
            else:
                self.memdst = set()
                for r in R:
                    add(self.vr, self.sr, r)
        elif mn.startswith("global_") or mn.startswith("buffer_"):
            self.kind = "vmem"
            self.memdst = set()
            self.lds_dma = "load_lds" in mn
            self.wide_store = mn.startswith("global_store_dwordx4") or mn.startswith("global_store_dwordx3")
            if mn.startswith("global_load") and not self.lds_dma:
                self.memdst = set(i for k, i in R[0])
                for r in R[1:]:
                    add(self.vr, self.sr, r)
            else:
                for r in R:
                    add(self.vr, self.sr, r)
            if self.wide_store:
                self.store_data = set(i for k, i in R[1])
            if self.lds_dma:
                self.sr.add(124)
        elif mn.startswith("s_"):
            self.kind = "salu"
            nodst = ("s_cmp", "s_waitcnt", "s_branch", "s_cbranch", "s_barrier", "s_endpgm", "s_sleep", "s_setprio",
                     "s_setpc", "s_bitcmp")
            if not mn.startswith(nodst):
                if R:
                    add(self.vw, self.sw, R[0])
                for r in R[1:]:
                    add(self.vr, self.sr, r)
            else:
                for r in R:
                    add(self.vr, self.sr, r)


def required_gap(p, c):
    need = 0
    if p.kind == "valu":
        if c.kind == "valu" and c.dpp and (p.vw & c.vr):
            need = max(need, 2)
        if c.kind == "valu" and c.mn.startswith(("v_readlane", "v_readfirstlane")) and (p.vw & c.vr):
            need = max(need, 1)
        if p.trans and (p.vw & c.vr) and not (c.kind == "valu" and c.trans):
            need = max(need, 1)
        if c.kind == "mfma" and (p.vw & c.vr):
            need = max(need, 2)
        if c.kind == "valu" and c.mn.startswith("v_permlane") and (p.vw & c.vr):
            need = max(need, 2)
        if p.sw:
            if c.kind in ("valu", "mfma") and (p.sw & c.sr):
                need = max(need, 4 if c.mn.startswith(("v_readlane", "v_writelane")) else 2)
            if c.kind == "vmem" and (p.sw & c.sr):
                need = max(need, 5)
    if p.kind == "mfma":
        if c.kind == "mfma":
            if p.vw & c.srcAB:
                need = max(need, 8)
            if (p.vw & c.srcC) and p.vw != c.srcC:
                need = max(need, 6)
        else:
            touched = set(c.vr) | set(c.vw) | set(getattr(c, "memdst", set()))
            if p.vw & touched:
                need = max(need, 8)
            if c.kind == "valu" and (p.srcC & c.vw):
                need = max(need, 3)
    if p.kind == "salu" and 124 in p.sw and c.kind == "vmem" and getattr(c, "lds_dma", False):
        need = max(need, 1)
    if p.kind == "vmem" and getattr(p, "wide_store", False):
        if c.kind == "valu" and (p.store_data & c.vw):
            need = max(need, 2)
        elif (p.store_data & set(getattr(c, "memdst", set()))):
            need = max(need, 1)
    return need


def fix_hazards(lines):
    out = []
    for text in lines:
        c = Ins(text)
        if c.ws == 0:
            out.append(c)
            continue
        dist = 0
        extra = 0
        for p in reversed(out):
            if p.ws == 0:
                continue
            need = required_gap(p, c)
            if need > dist:
                extra = max(extra, need - dist)
            dist += p.ws
            if dist >= 10:
                break
        if extra:
            out.append(Ins(f"s_nop {extra - 1}"))
        out.append(c)
    return [i.text for i in out]


class RegAlloc:
    def __init__(self, first, limit):
        self.next = first
        self.limit = limit
        self.names = {}

    def alloc(self, name, n=1, align=None):
        if align is None:
            align = 1 if n == 1 else (2 if n == 2 else 4)
        b = (self.next + align - 1) // align * align
        self.next = b + n
        assert self.next <= self.limit, f"out of registers at {name}"
        self.names[name] = (b, n)
        return b
```

```python
import sys, os
sys.path.insert(0, os.path.dirname(os.path.abspath(__file__)))
from asmlib import fix_hazards, RegAlloc

NAME = "sequential_preLN__sliding_block_cached__glu_gated_swiglu__decode_kernel"

KL = 0
VL = 32768
WQL = 65536
WOL = 81920
W1L = 98304
W3L = 106496
W2L = 114688
XN = 122880
QF = 126976
PF = 131072
MX = 135168
LS = 136192
OF = 137216
HF = 137472
ONES = 137600
FLAGS = 137728
LDS_BYTES = 138240
F_WQ, F_Q, F_M, F_P, F_O, F_H, F_K, F_V, F_WO, F_W13, F_W2 = [4 * i for i in range(11)]

WS_STAMP = 0x10000
WS_A = 0x100000
WS_B = 0x200000
WS_P3 = 0x300000
WS_P5 = 0x320000
B_P1 = 0
B_ML = 256
B_ST = 384
B_ACK = 512
B_P4 = 1024
B_P2 = 2048

LOG2E = 0x3FB8AA3B
SCALE = 0x3DB504F3
EPS = 0x3727C5AC
INV512 = 0x3B000000

POLL_LIMIT = 512
PANIC_MAX = 4000
LDS_SPIN_MAX = 1 << 24


def vr(b, n):
    return f"v[{b}:{b + n - 1}]" if n > 1 else f"v{b}"


def sr(b, n=2):
    return f"s[{b}:{b + n - 1}]"


class K:
    def __init__(self, stamps=False, D=32):
        self.L = []
        self.stamps = stamps
        self.D = D
        self.uid = 0
        self.nstamp = 0

    def __call__(self, s):
        self.L.append("    " + s)

    def label(self, s):
        self.L.append(s + ":")

    def newlabel(self, p):
        self.uid += 1
        return f"L_{p}_{self.uid}"

    def stamp(self, idx):
        if self.stamps:
            self(f"s_memrealtime {sr(78 + 2 * idx)}")

    def lds_wait(self, off, target, vtmp, extra_reads=()):
        lp = self.newlabel("lw")
        ok = self.newlabel("lwok")
        self(f"s_mov_b32 s63, {LDS_SPIN_MAX}")
        self.label(lp)
        self(f"ds_read_b32 v{vtmp}, v{self.vFlag} offset:{off}")
        for r in extra_reads:
            self(r)
        self("s_waitcnt lgkmcnt(0)")
        self(f"v_cmp_le_u32 vcc, {target}, v{vtmp}")
        self(f"s_cbranch_vccnz {ok}")
        self("s_sub_u32 s63, s63, 1")
        self("s_cmp_eq_u32 s63, 0")
        self(f"s_cbranch_scc0 {lp}")
        self("s_endpgm")
        self.label(ok)

    def lds_signal(self, off):
        self("s_mov_b64 exec, 1")
        self(f"ds_add_u32 v{self.vFlag}, v{self.vOne} offset:{off}")
        self("s_mov_b64 exec, -1")

    def tag4(self, b):
        for i in range(4):
            self(f"v_perm_b32 v{b + i}, v{b + i}, s56, v{self.vSel + i}")

    def check(self, acc, grans):
        first = True
        for b in grans:
            for i in range(4):
                self(f"v_msad_u8 v{acc}, v{b + i}, s{57 + i}, {'0' if first else 'v%d' % acc}")
                first = False

    def poll(self, loads, grans, acc, toggle):
        lp = self.newlabel("poll")
        ok = self.newlabel("pollok")
        nx = self.newlabel("pollnx")
        self("s_mov_b32 s61, 0")
        self.label(lp)
        for l in loads:
            self(l)
        self("s_waitcnt vmcnt(0)")
        self.check(acc, grans)
        self(f"v_cmp_ne_u32 vcc, 0, v{acc}")
        self(f"s_cbranch_vccz {ok}")
        self("s_add_u32 s61, s61, 1")
        self(f"s_and_b32 s6, s61, {POLL_LIMIT - 1}")
        self(f"s_cbranch_scc1 {nx}")
        self("s_call_b64 s[64:65], L_panic")
        self.label(nx)
        if toggle:
            self("s_xor_b32 s44, s44, s50")
            self("s_xor_b32 s45, s45, s51")
        self(f"s_branch {lp}")
        self.label(ok)

    def allreduce16(self, op, regs, steps=(1, 2, 4, 8)):
        for st in steps:
            for r in regs:
                self(f"{op}_dpp v{r}, v{r}, v{r} row_ror:{st} row_mask:0xf bank_mask:0xf")

    def reduce64_to_lane63(self, regs):
        self.allreduce16("v_add_f32", regs)
        for r in regs:
            self(f"v_add_f32_dpp v{r}, v{r}, v{r} row_bcast:15 row_mask:0xa bank_mask:0xf")
        for r in regs:
            self(f"v_add_f32_dpp v{r}, v{r}, v{r} row_bcast:31 row_mask:0xc bank_mask:0xf")

    def round_bf16(self, dst, src):
        self(f"v_cvt_pk_bf16_f32 v{dst}, v{src}, v{src}")
        self(f"v_and_b32 v{dst}, 0xffff0000, v{dst}")

    def round_bf16_pair(self, d0, d1, s0, s1, tmp):
        self(f"v_cvt_pk_bf16_f32 v{tmp}, v{s0}, v{s1}")
        self(f"v_lshlrev_b32 v{d0}, 16, v{tmp}")
        self(f"v_and_b32 v{d1}, 0xffff0000, v{tmp}")


def gen(stamps=False, D=32):
    k = K(stamps, D)
    A = k
    ra = RegAlloc(1, 256)
    V = ra.alloc

    hdr = []
    hdr.append(f"; @launch grid=(256,1,1) block=(320,1,1) lds={LDS_BYTES}")
    hdr.append('.amdgcn_target "amdgcn-amd-amdhsa--gfx950"')
    hdr.append(".text")
    hdr.append(f".globl {NAME}")
    hdr.append(".p2align 8")
    hdr.append(f".type {NAME},@function")
    hdr.append(f"{NAME}:")

    vLane = V("lane"); vR = V("r"); vQd = V("qd"); vL16 = V("l16")
    k.vFlag = V("flag"); k.vOne = V("one")
    t0 = V("t0"); t1 = V("t1"); t2 = V("t2"); t3 = V("t3"); t4 = V("t4"); t5 = V("t5"); t6 = V("t6"); t7 = V("t7")

    A.stamp(0)
    A("s_cmp_ge_u32 s2, 256")
    A("s_cbranch_scc1 L_end")
    A("s_load_dwordx16 s[16:31], s[0:1], 0")
    A("s_load_dwordx8 s[32:39], s[0:1], 64")
    A(f"v_lshrrev_b32 v{t0}, 6, v0")
    A(f"v_and_b32 v{vLane}, 63, v0")
    A(f"v_readfirstlane_b32 s3, v{t0}")
    A("s_and_b32 s4, s2, 7")
    A("s_lshr_b32 s5, s2, 3")
    A(f"v_and_b32 v{vR}, 15, v{vLane}")
    A(f"v_lshrrev_b32 v{vQd}, 4, v{vLane}")
    A(f"v_lshlrev_b32 v{vL16}, 4, v{vLane}")
    A(f"v_mov_b32 v{k.vFlag}, {FLAGS}")
    A(f"v_mov_b32 v{k.vOne}, 1")
    A(f"v_lshlrev_b32 v{t0}, 2, v{vLane}")
    A(f"v_add_u32 v{t0}, {ONES}, v{t0}")
    A(f"v_mov_b32 v{t1}, 0")
    A(f"v_mov_b32 v{t2}, 0x3f803f80")
    A(f"ds_write_b32 v{t0}, v{t1} offset:{FLAGS - ONES}")
    A("s_mov_b32 exec_hi, 0")
    A(f"ds_write_b32 v{t0}, v{t2}")
    A("s_mov_b64 exec, -1")
    A("s_waitcnt lgkmcnt(0)")
    A("s_barrier")
    A("s_cmp_eq_u32 s3, 4")
    A("s_cbranch_scc1 L_loader")

    vX = V("x", 4)
    vXR = V("xr", 2)
    vZ = V("zero4", 4)
    k.vSel = V("sel", 4)
    A(f"global_load_dwordx4 {vr(vX, 4)}, v{vL16}, s[16:17]")
    A("s_load_dword s56, s[38:39], 0")
    A(f"v_bfe_u32 v{t0}, v{vLane}, 3, 2")
    A(f"v_lshrrev_b32 v{t1}, 5, v{vLane}")
    A(f"v_lshl_add_u32 v{t0}, v{t1}, 3, v{t0}")
    A(f"v_lshlrev_b32 v{t0}, 13, v{t0}")
    A(f"v_and_b32 v{t1}, 7, v{vLane}")
    A(f"v_lshlrev_b32 v{t2}, 1, v{vQd}")
    A(f"v_xor_b32 v{t1}, v{t1}, v{t2}")
    A(f"v_lshl_add_u32 v{t0}, v{t1}, 4, v{t0}")
    A("s_lshr_b32 s6, s5, 3")
    A("s_and_b32 s7, s5, 7")
    A("s_lshl_b32 s8, s6, 20")
    A("s_lshl_b32 s9, s3, 18")
    A("s_add_u32 s8, s8, s9")
    A("s_lshl_b32 s9, s4, 10")
    A("s_add_u32 s8, s8, s9")
    A("s_lshl_b32 s9, s7, 7")
    A("s_add_u32 s8, s8, s9")
    A("s_lshl_b32 s12, s3, 12")
    A(f"s_add_u32 s12, s12, {WQL}")
    for i, kb in enumerate((0, 16, 4, 20)):
        A(f"s_add_u32 s9, s8, {kb * 8192}")
        A("s_add_u32 s10, s22, s9")
        A("s_addc_u32 s11, s23, 0")
        A(f"s_add_u32 m0, s12, {i * 1024}")
        A(f"global_load_lds_dwordx4 v{t0}, s[10:11] nt")
    A("s_lshl_b32 s8, s7, 7")
    A("s_lshl_b32 s9, s3, 5")
    A("s_add_u32 s8, s8, s9")
    A(f"v_lshlrev_b32 v{t0}, 3, v{vQd}")
    A(f"v_add_u32 v{t0}, s8, v{t0}")
    A("s_lshl_b32 s8, s5, 5")
    A("s_lshl_b32 s9, s3, 3")
    A("s_add_u32 s8, s8, s9")
    A(f"v_mov_b32 v{t1}, s8")
    A("s_cmp_eq_u32 s4, 7")
    A("s_cselect_b64 s[10:11], -1, 0")
    A(f"v_cndmask_b32 v{t0}, v{t0}, v{t1}, s[10:11]")
    A(f"global_load_dwordx2 {vr(vXR, 2)}, v{t0}, s[16:17]")
    A("s_lshl_b32 s8, s4, 17")
    A(f"s_add_u32 s8, s8, {WS_A}")
    A("s_add_u32 s40, s38, s8")
    A("s_addc_u32 s41, s39, 0")
    A("s_lshl_b32 s9, s5, 12")
    A("s_add_u32 s42, s40, s9")
    A("s_addc_u32 s43, s41, 0")
    A("s_mov_b32 s44, s40")
    A("s_mov_b32 s45, s41")
    A(f"s_add_u32 s46, s40, {WS_B - WS_A}")
    A("s_addc_u32 s47, s41, 0")
    A(f"s_add_u32 s48, s42, {WS_B - WS_A}")
    A("s_addc_u32 s49, s43, 0")
    A("s_mov_b32 s50, 0")
    A("s_mov_b32 s51, 0")
    A(f"s_add_u32 s52, s38, {WS_P3}")
    A("s_addc_u32 s53, s39, 0")
    A(f"s_add_u32 s54, s38, {WS_P5}")
    A("s_addc_u32 s55, s39, 0")
    A("s_mov_b32 s62, 0")
    for i in range(4):
        A(f"v_mov_b32 v{vZ + i}, 0")
    A("s_lshl_b32 s8, s3, 10")
    A(f"v_add_u32 v{t0}, s8, v{vL16}")
    A(f"global_store_dwordx4 v{t0}, {vr(vZ, 4)}, s[42:43]")
    for i in range(4):
        A(f"v_mov_b32 v{k.vSel + i}, {0x07060500 + i:#x}")
    A(f"v_cmp_eq_u32 s[68:69], 0, v{vR}")
    A(f"v_cmp_gt_u32 s[70:71], 8, v{vR}")
    A(f"v_lshrrev_b32 v{t0}, 2, v{vR}")
    A(f"v_cmp_eq_u32 s[72:73], 1, v{t0}")
    A(f"v_cmp_gt_u32 s[74:75], 4, v{vR}")
    A(f"v_lshrrev_b32 v{t0}, 1, v{vR}")
    A(f"v_cmp_eq_u32 s[76:77], 1, v{t0}")
    vTR128 = V("tr128")
    vRR = V("rr"); vCC = V("cc")
    A(f"v_lshrrev_b32 v{vRR}, 2, v{vR}")
    A(f"v_and_b32 v{vCC}, 3, v{vLane}")
    A(f"v_lshl_add_u32 v{t0}, v{vQd}, 2, v{vRR}")
    A(f"v_lshlrev_b32 v{vTR128}, 7, v{t0}")
    A(f"v_bfe_u32 v{t1}, v{t0}, 1, 2")
    A(f"v_lshlrev_b32 v{t1}, 1, v{t1}")
    A(f"v_lshrrev_b32 v{t2}, 1, v{vCC}")
    A("s_lshl_b32 s8, s3, 1")
    A(f"v_add_u32 v{t2}, s8, v{t2}")
    A(f"v_xor_b32 v{t2}, v{t2}, v{t1}")
    A(f"v_lshl_add_u32 v{vTR128}, v{t2}, 4, v{vTR128}")
    A(f"v_and_b32 v{t2}, 1, v{vCC}")
    A(f"v_lshl_add_u32 v{vTR128}, v{t2}, 3, v{vTR128}")
    A(f"v_add_u32 v{vTR128}, {WQL}, v{vTR128}")
    vTR256 = V("tr256", 2)
    A(f"v_lshlrev_b32 v{vTR256}, 8, v{t0}")
    A(f"v_and_b32 v{t1}, 7, v{t0}")
    A(f"v_lshlrev_b32 v{t1}, 1, v{t1}")
    A(f"v_lshrrev_b32 v{t3}, 1, v{vCC}")
    A("s_lshl_b32 s8, s3, 2")
    A(f"v_add_u32 v{t3}, s8, v{t3}")
    A(f"v_xor_b32 v{t3}, v{t3}, v{t1}")
    A(f"v_lshl_add_u32 v{vTR256}, v{t3}, 4, v{vTR256}")
    A(f"v_lshl_add_u32 v{vTR256}, v{t2}, 3, v{vTR256}")
    A(f"v_xor_b32 v{vTR256 + 1}, 32, v{vTR256}")

    vF = V("f", 8)
    A("s_waitcnt vmcnt(6)")
    for i in range(4):
        A(f"v_lshlrev_b32 v{vF + 2 * i}, 16, v{vX + i}")
        A(f"v_and_b32 v{vF + 2 * i + 1}, 0xffff0000, v{vX + i}")
    A(f"v_add_f32 v{t0}, v{vF}, v{vF + 1}")
    for i in range(2, 8):
        A(f"v_add_f32 v{t0}, v{t0}, v{vF + i}")
    k.reduce64_to_lane63([t0])
    A(f"v_readlane_b32 s8, v{t0}, 63")
    A(f"v_mov_b32 v{t1}, {INV512:#x}")
    A(f"v_mul_f32 v{t1}, s8, v{t1}")
    A(f"v_sub_f32 v{t2}, v{vF}, v{t1}")
    A(f"v_mul_f32 v{t0}, v{t2}, v{t2}")
    for i in range(1, 8):
        A(f"v_sub_f32 v{t2}, v{vF + i}, v{t1}")
        A(f"v_fmac_f32 v{t0}, v{t2}, v{t2}")
    k.reduce64_to_lane63([t0])
    A(f"v_readlane_b32 s8, v{t0}, 63")
    A(f"v_mov_b32 v{t2}, {INV512:#x}")
    A(f"v_mul_f32 v{t2}, s8, v{t2}")
    k.round_bf16(t1, t1)
    k.round_bf16(t2, t2)
    A(f"v_add_f32 v{t2}, {EPS:#x}, v{t2}")
    k.round_bf16(t2, t2)
    A(f"v_sqrt_f32 v{t2}, v{t2}")
    k.round_bf16(t2, t2)
    A(f"v_rcp_f32 v{t2}, v{t2}")
    for i in range(8):
        A(f"v_sub_f32 v{vF + i}, v{vF + i}, v{t1}")
    for i in range(4):
        k.round_bf16_pair(vF + 2 * i, vF + 2 * i + 1, vF + 2 * i, vF + 2 * i + 1, t3)
    for i in range(8):
        A(f"v_mul_f32 v{vF + i}, v{vF + i}, v{t2}")
    for i in range(4):
        A(f"v_cvt_pk_bf16_f32 v{vX + i}, v{vF + 2 * i}, v{vF + 2 * i + 1}")
    A("s_lshl_b32 s8, s3, 10")
    A(f"s_add_u32 s8, s8, {XN}")
    A(f"v_add_u32 v{t0}, s8, v{vL16}")
    A(f"ds_write_b128 v{t0}, {vr(vX, 4)}")
    vB = V("bfrag", 16)
    A("s_lshl_b32 s9, s6, 8")
    A("s_add_u32 s8, s8, s9")
    A(f"v_lshlrev_b32 v{t0}, 4, v{vQd}")
    A(f"v_add_u32 v{t0}, s8, v{t0}")
    for ks in range(4):
        A(f"ds_read_b128 {vr(vB + 4 * ks, 4)}, v{t0} offset:{ks * 64}")
    A("s_waitcnt lgkmcnt(0)")
    A("s_add_u32 s56, s56, 1")
    A("s_and_b32 s56, s56, 0x0fffffff")
    A("s_mov_b32 s13, s56")
    for i in range(4):
        A(f"s_lshr_b32 s8, s13, {7 * i}")
        A("s_and_b32 s8, s8, 0x7f")
        A(f"s_or_b32 s{57 + i}, s8, 0x80")
    A("s_lshl_b32 s8, s58, 8")
    A("s_or_b32 s56, s57, s8")
    A("s_lshl_b32 s8, s59, 16")
    A("s_or_b32 s56, s56, s8")
    A("s_lshl_b32 s8, s60, 24")
    A("s_or_b32 s56, s56, s8")
    A.stamp(1)
    A("s_waitcnt vmcnt(2)")
    k.lds_signal(F_WQ)
    k.lds_wait(F_WQ, 4, t0)
    vW = V("wfrag", 16)
    for ks in range(4):
        for hf in range(2):
            A(f"ds_read_b64_tr_b16 {vr(vW + 4 * ks + 2 * hf, 2)}, v{vTR128} offset:{ks * 4096 + hf * 2048}")
    vD = V("d", 8)
    A("s_waitcnt lgkmcnt(0)")
    for ks in range(4):
        A(f"v_mfma_f32_16x16x32_bf16 {vr(vD, 4)}, {vr(vW + 4 * ks, 4)}, {vr(vB + 4 * ks, 4)}, {'0' if ks == 0 else vr(vD, 4)}")
    vPub = V("pubaddr")
    A("s_lshl_b32 s8, s3, 6")
    A(f"v_lshlrev_b32 v{vPub}, 4, v{vQd}")
    A(f"v_add_u32 v{vPub}, s8, v{vPub}")
    k.tag4(vD)
    A("s_mov_b64 exec, s[68:69]")
    A(f"global_store_dwordx4 v{vPub}, {vr(vD, 4)}, s[42:43] offset:{B_P1}")
    A("s_mov_b64 exec, -1")
    A.stamp(2)
    vG = V("g", 24)
    vAcc = V("acc")
    A(f"v_lshlrev_b32 v{t0}, 3, v{vRR}")
    A(f"v_and_b32 v{t1}, 3, v{vR}")
    A(f"v_lshl_add_u32 v{t0}, v{t1}, 1, v{t0}")
    A("s_lshr_b32 s8, s3, 1")
    A(f"v_add_u32 v{t0}, s8, v{t0}")
    A(f"v_lshlrev_b32 v{t0}, 12, v{t0}")
    A("s_and_b32 s8, s3, 1")
    A("s_lshl_b32 s8, s8, 7")
    A(f"v_lshl_add_u32 v{t1}, v{vQd}, 5, v{t0}")
    A(f"v_add_u32 v{t1}, s8, v{t1}")
    k.poll([f"global_load_dwordx4 {vr(vG, 4)}, v{t1}, s[44:45] offset:{B_P1} sc1",
            f"global_load_dwordx4 {vr(vG + 4, 4)}, v{t1}, s[44:45] offset:{B_P1 + 16} sc1"],
           [vG, vG + 4], vAcc, True)
    A.stamp(3)
    k.allreduce16("v_add_f32", list(range(vG, vG + 8)), steps=(4, 8))
    for i in range(4):
        A(f"v_cvt_pk_bf16_f32 v{vX + i}, v{vG + 2 * i}, v{vG + 2 * i + 1}")
    A("s_lshl_b32 s8, s3, 10")
    A(f"v_add_u32 v{t0}, s8, v{vL16}")
    vWL = V("wl16")
    A(f"v_mov_b32 v{vWL}, v{t0}")
    vL16Q = V("l16q")
    A(f"v_add_u32 v{vL16Q}, {QF}, v{vL16}")
    A(f"v_add_u32 v{t0}, {QF}, v{vWL}")
    A(f"ds_write_b128 v{t0}, {vr(vX, 4)}")
    k.lds_signal(F_Q)
    vKF = V("kfrag", 32)
    A("s_lshl_b32 s8, s3, 13")
    A(f"v_lshlrev_b32 v{t0}, 8, v{vR}")
    A(f"v_add_u32 v{t0}, s8, v{t0}")
    A(f"v_xor_b32 v{t1}, v{vQd}, v{vR}")
    A(f"v_lshl_add_u32 v{t0}, v{t1}, 4, v{t0}")
    A(f"v_xor_b32 v{t1}, 64, v{t0}")
    A(f"v_xor_b32 v{t2}, 128, v{t0}")
    A(f"v_xor_b32 v{t3}, 192, v{t0}")
    k.lds_wait(F_K, 1, t4)
    for kt in range(2):
        for s, a in enumerate((t0, t1, t2, t3)):
            A(f"ds_read_b128 {vr(vKF + 16 * kt + 4 * s, 4)}, v{a} offset:{KL + kt * 4096}")
    k.lds_wait(F_Q, 4, t4, [f"ds_read_b128 {vr(vB + 4 * s, 4)}, v{vL16Q} offset:{s * 1024}" for s in range(4)])
    for s in range(4):
        for kt in range(2):
            A(f"v_mfma_f32_16x16x32_bf16 {vr(vD + 4 * kt, 4)}, {vr(vKF + 16 * kt + 4 * s, 4)}, {vr(vB + 4 * s, 4)}, {'0' if s == 0 else vr(vD + 4 * kt, 4)}")
    A(f"s_mov_b32 s8, {SCALE:#x}")
    for i in range(4):
        k.round_bf16_pair(vF + 2 * i, vF + 2 * i + 1, vD + 2 * i, vD + 2 * i + 1, t0)
    for i in range(8):
        A(f"v_mul_f32 v{vF + i}, s8, v{vF + i}")
    for i in range(4):
        k.round_bf16_pair(vF + 2 * i, vF + 2 * i + 1, vF + 2 * i, vF + 2 * i + 1, t0)
    A(f"v_max3_f32 v{t0}, v{vF}, v{vF + 1}, v{vF + 2}")
    A(f"v_max3_f32 v{t0}, v{t0}, v{vF + 3}, v{vF + 4}")
    A(f"v_max3_f32 v{t0}, v{t0}, v{vF + 5}, v{vF + 6}")
    A(f"v_max_f32 v{t0}, v{t0}, v{vF + 7}")
    vMXw = V("mxw"); vMXr = V("mxr")
    A(f"v_lshlrev_b32 v{vMXr}, 6, v{vR}")
    A(f"v_add_u32 v{vMXr}, {MX}, v{vMXr}")
    A("s_lshl_b32 s8, s3, 4")
    A(f"v_lshl_add_u32 v{vMXw}, v{vQd}, 2, v{vMXr}")
    A(f"v_add_u32 v{vMXw}, s8, v{vMXw}")
    A(f"ds_write_b32 v{vMXw}, v{t0}")
    k.lds_signal(F_M)
    k.lds_wait(F_M, 4, t4, [f"ds_read_b128 {vr(vG + 4 * i, 4)}, v{vMXr} offset:{16 * i}" for i in range(4)])
    vM = V("m")
    A(f"v_max3_f32 v{vM}, v{vG}, v{vG + 1}, v{vG + 2}")
    for i in range(3, 15, 2):
        A(f"v_max3_f32 v{vM}, v{vM}, v{vG + i}, v{vG + i + 1}")
    A(f"v_max_f32 v{vM}, v{vM}, v{vG + 15}")
    A(f"s_mov_b32 s8, {LOG2E:#x}")
    for i in range(8):
        A(f"v_sub_f32 v{vF + i}, v{vF + i}, v{vM}")
    for i in range(8):
        A(f"v_mul_f32 v{vF + i}, s8, v{vF + i}")
    for i in range(8):
        A(f"v_exp_f32 v{vF + i}, v{vF + i}")
    A(f"v_add_f32 v{t0}, v{vF}, v{vF + 1}")
    for i in range(2, 8):
        A(f"v_add_f32 v{t0}, v{t0}, v{vF + i}")
    for i in range(4):
        A(f"v_cvt_pk_bf16_f32 v{vX + i}, v{vF + 2 * i}, v{vF + 2 * i + 1}")
    A(f"v_add_u32 v{t1}, {PF}, v{vWL}")
    A(f"ds_write_b128 v{t1}, {vr(vX, 4)}")
    A(f"ds_write_b32 v{vMXw}, v{t0} offset:{LS - MX}")
    k.lds_signal(F_P)
    k.lds_wait(F_P, 4, t4,
               [f"ds_read_b128 {vr(vB + 4 * s, 4)}, v{vL16Q} offset:{PF - QF + s * 1024}" for s in range(4)] +
               [f"ds_read_b128 {vr(vG + 4 * i, 4)}, v{vMXr} offset:{LS - MX + 16 * i}" for i in range(4)])
    vML = V("ml", 4)
    A(f"v_add_f32 v{vML + 1}, v{vG}, v{vG + 1}")
    for i in range(2, 16):
        A(f"v_add_f32 v{vML + 1}, v{vML + 1}, v{vG + i}")
    A(f"v_mov_b32 v{vML}, v{vM}")
    A(f"v_mov_b32 v{vML + 2}, 0")
    A(f"v_mov_b32 v{vML + 3}, 0")
    k.tag4(vML)
    skipml = k.newlabel("skipml")
    A("s_cmp_lg_u32 s3, 0")
    A(f"s_cbranch_scc1 {skipml}")
    A("s_mov_b64 exec, 15")
    A(f"global_store_dwordx4 v{vL16}, {vr(vML, 4)}, s[42:43] offset:{B_ML}")
    A("s_mov_b64 exec, -1")
    k.label(skipml)
    vP2a = V("p2a")
    A(f"v_and_b32 v{t0}, 3, v{vR}")
    A(f"v_lshlrev_b32 v{vP2a}, 9, v{t0}")
    A(f"v_lshl_add_u32 v{vP2a}, v{vRR}, 6, v{vP2a}")
    A(f"v_lshl_add_u32 v{vP2a}, v{vQd}, 4, v{vP2a}")
    A("s_lshl_b32 s8, s3, 7")
    A(f"v_add_u32 v{vP2a}, s8, v{vP2a}")
    vH2 = V("h2a", 4)
    A("s_lshr_b32 s9, s5, 3")
    A("s_lshl_b32 s10, s9, 9")
    A("s_add_u32 s10, s10, s8")
    A(f"v_lshlrev_b32 v{t0}, 12, v{vR}")
    A(f"v_lshl_add_u32 v{vH2}, v{vQd}, 4, v{t0}")
    A(f"v_add_u32 v{vH2}, s10, v{vH2}")
    A(f"v_add_u32 v{vH2 + 1}, 0x10000, v{vH2}")
    A("s_lshl_b32 s10, s9, 4")
    A(f"v_add_u32 v{vH2 + 2}, s10, v{t0}")
    A(f"v_add_u32 v{vH2 + 3}, 0x10000, v{vH2 + 2}")
    A.stamp(4)
    k.lds_wait(F_V, 1, t4)
    A.stamp(5)
    for ks in range(4):
        for t in range(2):
            for hf in range(2):
                A(f"ds_read_b64_tr_b16 {vr(vKF + 8 * ks + 4 * t + 2 * hf, 2)}, v{vTR256 + t} offset:{VL + ks * 8192 + hf * 4096}")
    for ks in range(4):
        A(f"s_waitcnt lgkmcnt({12 - 4 * ks})")
        for t in range(2):
            A(f"v_mfma_f32_16x16x32_bf16 {vr(vD + 4 * t, 4)}, {vr(vKF + 8 * ks + 4 * t, 4)}, {vr(vB + 4 * ks, 4)}, {'0' if ks == 0 else vr(vD + 4 * t, 4)}")
    for i in range(4):
        A(f"v_cndmask_b32 v{vD + i}, v{vD + i}, v{vD + 4 + i}, s[72:73]")
    k.tag4(vD)
    A("s_mov_b64 exec, s[70:71]")
    A(f"global_store_dwordx4 v{vP2a}, {vr(vD, 4)}, s[42:43] offset:{B_P2}")
    A("s_mov_b64 exec, -1")
    A.stamp(6)
    k.lds_wait(F_WO, 1, t4)
    for ks in range(4):
        for hf in range(2):
            A(f"ds_read_b64_tr_b16 {vr(vW + 4 * ks + 2 * hf, 2)}, v{vTR128} offset:{WOL - WQL + ks * 4096 + hf * 2048}")
    k.poll([f"global_load_dwordx4 {vr(vG + 16, 4)}, v{vH2 + 2}, s[44:45] offset:{B_ML} sc1",
            f"global_load_dwordx4 {vr(vG + 20, 4)}, v{vH2 + 3}, s[44:45] offset:{B_ML} sc1",
            f"global_load_dwordx4 {vr(vG, 4)}, v{vH2}, s[44:45] offset:{B_P2} sc1",
            f"global_load_dwordx4 {vr(vG + 4, 4)}, v{vH2}, s[44:45] offset:{B_P2 + 64} sc1",
            f"global_load_dwordx4 {vr(vG + 8, 4)}, v{vH2 + 1}, s[44:45] offset:{B_P2} sc1",
            f"global_load_dwordx4 {vr(vG + 12, 4)}, v{vH2 + 1}, s[44:45] offset:{B_P2 + 64} sc1"],
           [vG + 16, vG + 20, vG, vG + 4, vG + 8, vG + 12], vAcc, True)
    A.stamp(7)
    m1, l1, m2, l2 = vG + 16, vG + 17, vG + 20, vG + 21
    A(f"v_and_b32 v{m1}, 0xffffff00, v{m1}")
    A(f"v_and_b32 v{m2}, 0xffffff00, v{m2}")
    A(f"v_max_f32 v{t0}, v{m1}, v{m2}")
    k.allreduce16("v_max_f32", [t0])
    A(f"s_mov_b32 s8, {LOG2E:#x}")
    A(f"v_sub_f32 v{m1}, v{m1}, v{t0}")
    A(f"v_sub_f32 v{m2}, v{m2}, v{t0}")
    A(f"v_mul_f32 v{m1}, s8, v{m1}")
    A(f"v_mul_f32 v{m2}, s8, v{m2}")
    A(f"v_exp_f32 v{m1}, v{m1}")
    A(f"v_exp_f32 v{m2}, v{m2}")
    A(f"v_mul_f32 v{t1}, v{m1}, v{l1}")
    A(f"v_fmac_f32 v{t1}, v{m2}, v{l2}")
    for i in range(8):
        A(f"v_mul_f32 v{vG + i}, v{m1}, v{vG + i}")
    for i in range(8):
        A(f"v_fmac_f32 v{vG + i}, v{m2}, v{vG + 8 + i}")
    k.allreduce16("v_add_f32", [t1] + list(range(vG, vG + 8)))
    A(f"v_rcp_f32 v{t1}, v{t1}")
    for i in range(8):
        A(f"v_mul_f32 v{vG + i}, v{t1}, v{vG + i}")
    for i in range(4):
        A(f"v_cvt_pk_bf16_f32 v{vX + i}, v{vG + 2 * i}, v{vG + 2 * i + 1}")
    A(f"v_add_u32 v{t0}, {OF}, v{vPub}")
    A("s_mov_b64 exec, s[68:69]")
    A(f"ds_write_b128 v{t0}, {vr(vX, 4)}")
    k.lds_signal(F_O)
    vQ16 = V("q16")
    A(f"v_lshlrev_b32 v{vQ16}, 4, v{vQd}")
    A(f"v_add_u32 v{vQ16}, {OF}, v{vQ16}")
    k.lds_wait(F_O, 4, t4, [f"ds_read_b128 {vr(vB + 4 * ks, 4)}, v{vQ16} offset:{ks * 64}" for ks in range(4)])
    for ks in range(4):
        A(f"v_mfma_f32_16x16x32_bf16 {vr(vD, 4)}, {vr(vW + 4 * ks, 4)}, {vr(vB + 4 * ks, 4)}, {'0' if ks == 0 else vr(vD, 4)}")
    A("s_and_b32 s8, s5, 7")
    A("s_lshl_b32 s8, s8, 5")
    A("s_lshl_b32 s9, s4, 2")
    A("s_add_u32 s8, s8, s9")
    A("s_lshr_b32 s9, s5, 3")
    A("s_add_u32 s8, s8, s9")
    A("s_lshl_b32 s8, s8, 8")
    A(f"v_add_u32 v{t0}, s8, v{vPub}")
    k.tag4(vD)
    A("s_mov_b64 exec, s[68:69]")
    A(f"global_store_dwordx4 v{t0}, {vr(vD, 4)}, s[52:53] sc1")
    A("s_mov_b64 exec, -1")
    A.stamp(8)
    A("s_cmp_eq_u32 s4, 7")
    A("s_cbranch_scc1 L_final")

    vW13 = vKF
    k.lds_wait(F_W13, 1, t4)
    for mat, base in enumerate((W1L, W3L)):
        for ks in range(2):
            for hf in range(2):
                A(f"ds_read_b64_tr_b16 {vr(vW13 + 8 * mat + 4 * ks + 2 * hf, 2)}, v{vTR128} offset:{base - WQL + ks * 4096 + hf * 2048}")
    A("s_and_b32 s8, s5, 7")
    A("s_lshl_b32 s8, s8, 13")
    A(f"v_lshl_add_u32 v{t1}, v{vR}, 8, v{vPub}")
    A(f"v_add_u32 v{t1}, s8, v{t1}")
    A(f"v_add_u32 v{t2}, 4096, v{t1}")
    A(f"v_lshlrev_b32 v{vF}, 16, v{vXR}")
    A(f"v_and_b32 v{vF + 1}, 0xffff0000, v{vXR}")
    A(f"v_lshlrev_b32 v{vF + 2}, 16, v{vXR + 1}")
    A(f"v_and_b32 v{vF + 3}, 0xffff0000, v{vXR + 1}")
    vHFw = V("hfw"); vHFa = V("hfa"); vHFb = V("hfb")
    A("s_lshr_b32 s8, s3, 1")
    A("s_lshl_b32 s8, s8, 6")
    A("s_and_b32 s9, s3, 1")
    A("s_lshl_b32 s9, s9, 3")
    A("s_add_u32 s8, s8, s9")
    A(f"v_lshlrev_b32 v{vHFa}, 4, v{vQd}")
    A(f"v_add_u32 v{vHFa}, {HF}, v{vHFa}")
    A(f"v_add_u32 v{vHFw}, s8, v{vHFa}")
    A(f"v_and_b32 v{t0}, 1, v{vR}")
    A(f"v_lshl_add_u32 v{vHFb}, v{t0}, 7, v{vHFa}")
    vP4a = V("p4a")
    A(f"v_lshl_add_u32 v{vP4a}, v{vR}, 8, v{vPub}")
    k.poll([f"global_load_dwordx4 {vr(vG, 4)}, v{t1}, s[52:53] sc1",
            f"global_load_dwordx4 {vr(vG + 4, 4)}, v{t2}, s[52:53] sc1"],
           [vG, vG + 4], vAcc, False)
    A.stamp(9)
    for i in range(4):
        A(f"v_add_f32 v{vG + i}, v{vG + i}, v{vG + 4 + i}")
    k.allreduce16("v_add_f32", list(range(vG, vG + 4)))
    for i in range(2):
        k.round_bf16_pair(vG + 2 * i, vG + 2 * i + 1, vG + 2 * i, vG + 2 * i + 1, t0)
    for i in range(4):
        A(f"v_add_f32 v{vG + i}, v{vG + i}, v{vF + i}")
    for i in range(2):
        A(f"v_cvt_pk_bf16_f32 v{vX + i}, v{vG + 2 * i}, v{vG + 2 * i + 1}")
    A("s_mov_b64 exec, s[68:69]")
    A(f"ds_write_b64 v{vHFw}, {vr(vX, 2)}")
    k.lds_signal(F_H)
    k.lds_wait(F_H, 4, t4,
               [f"ds_read_b128 {vr(vB + 4 * ks, 4)}, v{vHFb} offset:{ks * 64}" for ks in range(2)] +
               [f"ds_read_b128 {vr(vB + 8 + 4 * ks, 4)}, v{vHFa} offset:{ks * 64}" for ks in range(2)])
    vS = V("stat", 4)
    for ks in range(2):
        A(f"v_mfma_f32_16x16x32_bf16 {vr(vD, 4)}, {vr(vW13 + 4 * ks, 4)}, {vr(vB + 4 * ks, 4)}, {'0' if ks == 0 else vr(vD, 4)}")
        A(f"v_mfma_f32_16x16x32_bf16 {vr(vD + 4, 4)}, {vr(vW13 + 8 + 4 * ks, 4)}, {vr(vB + 4 * ks, 4)}, {'0' if ks == 0 else vr(vD + 4, 4)}")
        A(f"v_mfma_f32_16x16x32_bf16 {vr(vS, 4)}, {vr(vB + 8 + 4 * ks, 4)}, {vr(vB + 4 * ks, 4)}, {'0' if ks == 0 else vr(vS, 4)}")
    for i in range(4):
        A(f"v_cndmask_b32 v{vD + i}, v{vD + i}, v{vD + 4 + i}, s[76:77]")
    k.tag4(vD)
    A("s_mov_b64 exec, s[74:75]")
    A(f"global_store_dwordx4 v{vP4a}, {vr(vD, 4)}, s[42:43] offset:{B_P4}")
    A("s_mov_b64 exec, -1")
    skipst = k.newlabel("skipst")
    A("s_cmp_lg_u32 s3, 0")
    A(f"s_cbranch_scc1 {skipst}")
    A(f"v_mov_b32_dpp v{vS + 1}, v{vS} row_shl:1 row_mask:0xf bank_mask:0xf")
    k.tag4(vS)
    A("s_mov_b64 exec, 1")
    A(f"global_store_dwordx4 v{vL16}, {vr(vS, 4)}, s[42:43] offset:{B_ST}")
    A("s_mov_b64 exec, -1")
    k.label(skipst)
    A.stamp(10)
    k.lds_wait(F_W2, 1, t4)
    A(f"v_add_u32 v{t5}, {W2L}, v{vTR256}")
    A(f"v_add_u32 v{t6}, {W2L}, v{vTR256 + 1}")
    for u in range(2):
        for hf in range(2):
            A(f"ds_read_b64_tr_b16 {vr(vW + 4 * u + 2 * hf, 2)}, v{t5 + u} offset:{hf * 4096}")
    A("s_and_b32 s8, s5, 7")
    A("s_lshr_b32 s9, s8, 1")
    A("s_lshl_b32 s9, s9, 15")
    A("s_and_b32 s10, s8, 1")
    A("s_lshl_b32 s10, s10, 7")
    A(f"v_and_b32 v{t0}, 7, v{vR}")
    A(f"v_lshlrev_b32 v{t0}, 12, v{t0}")
    A(f"v_add_u32 v{t0}, s9, v{t0}")
    A(f"v_lshrrev_b32 v{t1}, 3, v{vR}")
    A(f"v_lshl_add_u32 v{t1}, v{t1}, 9, v{t0}")
    A(f"v_lshl_add_u32 v{t1}, v{vQd}, 4, v{t1}")
    A(f"v_add_u32 v{t1}, s10, v{t1}")
    vP5a = V("p5a")
    A("s_lshr_b32 s9, s5, 3")
    A("s_mul_i32 s9, s9, 56")
    A("s_lshl_b32 s10, s4, 3")
    A("s_add_u32 s9, s9, s10")
    A("s_add_u32 s9, s9, s8")
    A("s_lshl_b32 s9, s9, 9")
    A("s_lshl_b32 s10, s3, 7")
    A("s_add_u32 s9, s9, s10")
    A(f"v_lshlrev_b32 v{vP5a}, 4, v{vQd}")
    A(f"v_add_u32 v{vP5a}, s9, v{vP5a}")
    k.poll([f"global_load_dwordx4 {vr(vG + 16, 4)}, v{t0}, s[44:45] offset:{B_ST} sc1",
            f"global_load_dwordx4 {vr(vG, 4)}, v{t1}, s[44:45] offset:{B_P4} sc1",
            f"global_load_dwordx4 {vr(vG + 4, 4)}, v{t1}, s[44:45] offset:{B_P4 + 64} sc1",
            f"global_load_dwordx4 {vr(vG + 8, 4)}, v{t1}, s[44:45] offset:{B_P4 + 256} sc1",
            f"global_load_dwordx4 {vr(vG + 12, 4)}, v{t1}, s[44:45] offset:{B_P4 + 320} sc1"],
           [vG + 16, vG, vG + 4, vG + 8, vG + 12], vAcc, True)
    A.stamp(11)
    A(f"v_mov_b32 v{vZ}, 0")
    A(f"v_mov_b32 v{vZ + 1}, 0")
    A(f"v_mov_b32 v{vZ + 2}, 0")
    A(f"v_mov_b32 v{vZ + 3}, 0")
    k.tag4(vZ)
    A("s_lshl_b32 s8, s3, 4")
    A(f"v_mov_b32 v{t2}, s8")
    A("s_mov_b64 exec, 1")
    A(f"global_store_dwordx4 v{t2}, {vr(vZ, 4)}, s[42:43] offset:{B_ACK}")
    A("s_mov_b64 exec, -1")

    def allred8(regs):
        for md in ("quad_perm:[1,0,3,2]", "quad_perm:[2,3,0,1]", "row_half_mirror"):
            for r_ in regs:
                A(f"v_add_f32_dpp v{r_}, v{r_}, v{r_} {md} row_mask:0xf bank_mask:0xf")
    sq, sm = vG + 16, vG + 17
    allred8([sq, sm])
    A(f"s_mov_b32 s8, {INV512:#x}")
    A(f"v_mul_f32 v{sm}, s8, v{sm}")
    A(f"v_mul_f32 v{sq}, s8, v{sq}")
    A(f"v_fma_f32 v{sq}, -v{sm}, v{sm}, v{sq}")
    A(f"v_max_f32 v{sq}, 0, v{sq}")
    k.round_bf16(sm, sm)
    k.round_bf16(sq, sq)
    A(f"v_add_f32 v{sq}, {EPS:#x}, v{sq}")
    k.round_bf16(sq, sq)
    A(f"v_sqrt_f32 v{sq}, v{sq}")
    k.round_bf16(sq, sq)
    A(f"v_rcp_f32 v{sq}, v{sq}")
    for i in range(8):
        A(f"v_fma_f32 v{vG + i}, -v{sm}, v{vG + 8 + i}, v{vG + i}")
    allred8(list(range(vG, vG + 8)))
    for i in range(8):
        A(f"v_mul_f32 v{vG + i}, v{sq}, v{vG + i}")
    for i in range(4):
        k.round_bf16_pair(vG + 2 * i, vG + 2 * i + 1, vG + 2 * i, vG + 2 * i + 1, t2)
    for i in range(8):
        A(f"v_mov_b32_dpp v{vG + 8 + i}, v{vG + i} row_ror:8 row_mask:0xf bank_mask:0xf")
    A(f"s_mov_b32 s8, {LOG2E | 0x80000000:#x}")
    for i in range(8):
        A(f"v_mul_f32 v{vF + i}, s8, v{vG + i}")
    for i in range(8):
        A(f"v_exp_f32 v{vF + i}, v{vF + i}")
    for i in range(8):
        A(f"v_add_f32 v{vF + i}, 1.0, v{vF + i}")
    for i in range(8):
        A(f"v_rcp_f32 v{vF + i}, v{vF + i}")
    for i in range(8):
        A(f"v_mul_f32 v{vF + i}, v{vF + i}, v{vG + i}")
    for i in range(4):
        k.round_bf16_pair(vF + 2 * i, vF + 2 * i + 1, vF + 2 * i, vF + 2 * i + 1, t2)
    for i in range(8):
        A(f"v_mul_f32 v{vF + i}, v{vF + i}, v{vG + 8 + i}")
    for i in range(4):
        A(f"v_cvt_pk_bf16_f32 v{vB + i}, v{vF + 2 * i}, v{vF + 2 * i + 1}")
    A("s_waitcnt lgkmcnt(0)")
    for u in range(2):
        A(f"v_mfma_f32_16x16x32_bf16 {vr(vD + 4 * u, 4)}, {vr(vW + 4 * u, 4)}, {vr(vB, 4)}, 0")
    k.tag4(vD)
    k.tag4(vD + 4)
    A("s_mov_b64 exec, s[68:69]")
    A(f"global_store_dwordx4 v{vP5a}, {vr(vD, 4)}, s[54:55] sc1")
    A(f"global_store_dwordx4 v{vP5a}, {vr(vD + 4, 4)}, s[54:55] offset:64 sc1")
    A("s_mov_b64 exec, -1")
    A("s_cmp_lg_u32 s3, 0")
    A("s_cbranch_scc1 L_stamp_end")
    A("s_lshr_b32 s8, s5, 3")
    A("s_lshl_b32 s8, s8, 13")
    A(f"v_lshrrev_b32 v{t0}, 3, v{vLane}")
    A(f"v_and_b32 v{t0}, 3, v{t0}")
    A(f"v_lshlrev_b32 v{t0}, 15, v{t0}")
    A(f"v_bfe_u32 v{t1}, v{vLane}, 2, 1")
    A(f"v_lshl_add_u32 v{t0}, v{t1}, 12, v{t0}")
    A(f"v_and_b32 v{t1}, 3, v{vLane}")
    A(f"v_lshl_add_u32 v{t0}, v{t1}, 4, v{t0}")
    A(f"v_add_u32 v{t0}, s8, v{t0}")
    A("s_mov_b32 s61, 0")
    k.label("L_ack")
    A(f"global_load_dwordx4 {vr(vG, 4)}, v{t0}, s[40:41] offset:{B_ACK} sc1")
    A("s_waitcnt vmcnt(0)")
    k.check(vAcc, [vG])
    A(f"v_cmp_ne_u32 vcc, 0, v{vAcc}")
    A("s_cbranch_vccz L_stamp_end")
    A("s_add_u32 s61, s61, 1")
    A(f"s_cmp_lt_u32 s61, {POLL_LIMIT}")
    A("s_cbranch_scc1 L_ack")
    A("s_call_b64 s[64:65], L_panic")
    A("s_branch L_stamp_end")

    k.label("L_final")
    A("s_lshr_b32 s8, s5, 2")
    A("s_lshl_b32 s8, s8, 13")
    A("s_and_b32 s9, s5, 3")
    A("s_lshl_b32 s9, s9, 6")
    A("s_add_u32 s8, s8, s9")
    A("s_lshl_b32 s9, s3, 4")
    A("s_add_u32 s8, s8, s9")
    A(f"v_lshlrev_b32 v{t1}, 8, v{vLane}")
    A(f"v_add_u32 v{t1}, s8, v{t1}")
    for i in range(8):
        A(f"v_mov_b32 v{vG + i}, 0")
    A(f"v_lshlrev_b32 v{vF}, 16, v{vXR}")
    A(f"v_and_b32 v{vF + 1}, 0xffff0000, v{vXR}")
    A(f"v_lshlrev_b32 v{vF + 2}, 16, v{vXR + 1}")
    A(f"v_and_b32 v{vF + 3}, 0xffff0000, v{vXR + 1}")
    A("s_mov_b32 exec_hi, 0")
    k.poll([f"global_load_dwordx4 {vr(vG, 4)}, v{t1}, s[52:53] sc1"], [vG], vAcc, False)
    A("s_mov_b64 exec, -1")
    A.stamp(9)
    k.reduce64_to_lane63(list(range(vG, vG + 4)))
    for i in range(2):
        k.round_bf16_pair(vG + 2 * i, vG + 2 * i + 1, vG + 2 * i, vG + 2 * i + 1, t0)
    for i in range(4):
        A(f"v_add_f32 v{vF + i}, v{vG + i}, v{vF + i}")
    for i in range(2):
        k.round_bf16_pair(vF + 2 * i, vF + 2 * i + 1, vF + 2 * i, vF + 2 * i + 1, t0)
    A("s_lshr_b32 s8, s5, 3")
    A("s_mul_i32 s8, s8, 28672")
    A("s_and_b32 s9, s5, 7")
    A("s_lshl_b32 s9, s9, 6")
    A("s_add_u32 s8, s8, s9")
    A("s_lshl_b32 s9, s3, 4")
    A("s_add_u32 s8, s8, s9")
    A(f"v_lshlrev_b32 v{t1}, 9, v{vLane}")
    A(f"v_add_u32 v{t1}, s8, v{t1}")
    A("s_lshl_b32 s8, s5, 5")
    A("s_lshl_b32 s9, s3, 3")
    A("s_add_u32 s8, s8, s9")
    A(f"v_mov_b32 v{t2}, s8")
    A("s_mov_b32 s8, -1")
    A("s_mov_b32 s9, 0x00ffffff")
    A("s_mov_b64 exec, s[8:9]")
    k.poll([f"global_load_dwordx4 {vr(vG + 4, 4)}, v{t1}, s[54:55] sc1"], [vG + 4], vAcc, False)
    A("s_mov_b64 exec, -1")
    A.stamp(11)
    k.reduce64_to_lane63(list(range(vG + 4, vG + 8)))
    for i in range(2):
        k.round_bf16_pair(vG + 4 + 2 * i, vG + 5 + 2 * i, vG + 4 + 2 * i, vG + 5 + 2 * i, t0)
    for i in range(4):
        A(f"v_add_f32 v{vF + i}, v{vG + 4 + i}, v{vF + i}")
    for i in range(2):
        A(f"v_cvt_pk_bf16_f32 v{vX + i}, v{vF + 2 * i}, v{vF + 2 * i + 1}")
    A("s_mov_b32 s8, 0")
    A("s_mov_b32 s9, 0x80000000")
    A("s_mov_b64 exec, s[8:9]")
    A(f"global_store_dwordx2 v{t2}, {vr(vX, 2)}, s[34:35]")
    A("s_or_b32 s8, s5, s3")
    A("s_cmp_lg_u32 s8, 0")
    A("s_cbranch_scc1 L_stamp_end0")
    A(f"v_mov_b32 v{t0}, 0")
    A(f"v_mov_b32 v{t1}, s13")
    A(f"global_store_dword v{t0}, v{t1}, s[38:39]")
    k.label("L_stamp_end0")
    A("s_mov_b64 exec, -1")
    k.label("L_stamp_end")
    if stamps:
        A("s_memrealtime s[76:77]")
        A("s_waitcnt lgkmcnt(0)")
        A("s_lshl_b32 s8, s2, 3")
        A("s_add_u32 s8, s8, s3")
        A("s_lshl_b32 s8, s8, 6")
        A(f"s_add_u32 s8, s8, {WS_STAMP}")
        A(f"v_mov_b32 v{t0}, s8")
        for i in range(12):
            A(f"v_mov_b32 v{vG + i}, s{78 + 2 * i}")
        A(f"v_mov_b32 v{vG + 12}, s76")
        A("s_mov_b64 exec, 1")
        for q in range(4):
            A(f"global_store_dwordx4 v{t0}, {vr(vG + 4 * q, 4)}, s[38:39] offset:{q * 16}")
    A("s_endpgm")

    vPT = V("panic", 16)
    k.label("L_panic")
    A("s_mov_b64 s[66:67], exec")
    A("s_mov_b64 exec, -1")
    for i in range(4):
        A(f"global_load_dwordx4 {vr(vPT + 4 * i, 4)}, v{vL16}, s[42:43] offset:{i * 1024} sc1")
    A("s_waitcnt vmcnt(0)")
    for i in range(4):
        A(f"global_store_dwordx4 v{vL16}, {vr(vPT + 4 * i, 4)}, s[48:49] offset:{i * 1024} sc1")
    A("s_waitcnt vmcnt(0)")
    A("s_xor_b32 s50, s40, s46")
    A("s_xor_b32 s51, s41, s47")
    A("s_add_u32 s62, s62, 1")
    A(f"s_cmp_ge_u32 s62, {PANIC_MAX}")
    A("s_cbranch_scc1 L_end")
    A("s_mov_b64 exec, s[66:67]")
    A("s_setpc_b64 s[64:65]")

    k.label("L_loader")
    a0, a1, a2, a3, b0, b1, cwo, cw13, d0, d1 = [V(f"ld{i}") for i in range(10)]
    A(f"v_xor_b32 v{t0}, v{vR}, v{vQd}")
    A(f"v_lshlrev_b32 v{t1}, 8, v{vQd}")
    A(f"v_lshl_add_u32 v{a0}, v{t0}, 4, v{t1}")
    A(f"v_xor_b32 v{a1}, 64, v{a0}")
    A(f"v_xor_b32 v{a2}, 128, v{a0}")
    A(f"v_xor_b32 v{a3}, 192, v{a0}")
    A(f"v_lshlrev_b32 v{t0}, 1, v{vQd}")
    A(f"v_xor_b32 v{t0}, v{vR}, v{t0}")
    A(f"v_lshl_add_u32 v{b0}, v{t0}, 4, v{t1}")
    A(f"v_xor_b32 v{b1}, 128, v{b0}")
    A(f"v_lshlrev_b32 v{t1}, 10, v{vQd}")
    A(f"v_lshl_add_u32 v{d0}, v{t0}, 4, v{t1}")
    A(f"v_xor_b32 v{d1}, 128, v{d0}")
    A(f"v_and_b32 v{t0}, 7, v{vLane}")
    A(f"v_lshlrev_b32 v{t1}, 1, v{vQd}")
    A(f"v_xor_b32 v{t0}, v{t0}, v{t1}")
    A(f"v_lshlrev_b32 v{t0}, 4, v{t0}")
    A(f"v_lshrrev_b32 v{t1}, 3, v{vLane}")
    A(f"v_lshl_add_u32 v{cwo}, v{t1}, 10, v{t0}")
    A(f"v_mul_u32_u24 v{cw13}, 3584, v{t1}")
    A(f"v_add_u32 v{cw13}, v{cw13}, v{t0}")
    A("s_lshl_b32 s6, s4, 24")
    A("s_lshl_b32 s7, s5, 15")
    A("s_add_u32 s6, s6, s7")
    A(f"s_add_u32 s6, s6, {61440 * 256}")
    A("s_add_u32 s40, s18, s6"); A("s_addc_u32 s41, s19, 0")
    A("s_add_u32 s42, s20, s6"); A("s_addc_u32 s43, s21, 0")
    A("s_lshl_b32 s6, s4, 2"); A("s_lshr_b32 s7, s5, 3"); A("s_add_u32 s6, s6, s7")
    A("s_and_b32 s8, s5, 7")
    A("s_lshl_b32 s9, s6, 17"); A("s_lshl_b32 s10, s8, 7"); A("s_add_u32 s9, s9, s10")
    A("s_add_u32 s44, s24, s9"); A("s_addc_u32 s45, s25, 0")
    A(f"s_mul_i32 s9, s8, {64 * 3584}"); A("s_lshl_b32 s10, s6, 7"); A("s_add_u32 s9, s9, s10")
    A("s_add_u32 s46, s28, s9"); A("s_addc_u32 s47, s29, 0")
    A("s_add_u32 s48, s30, s9"); A("s_addc_u32 s49, s31, 0")
    A("s_lshl_b32 s9, s4, 18"); A("s_lshl_b32 s10, s8, 15"); A("s_add_u32 s9, s9, s10")
    A("s_lshl_b32 s10, s7, 8"); A("s_add_u32 s9, s9, s10")
    A("s_add_u32 s50, s32, s9"); A("s_addc_u32 s51, s33, 0")

    def dma_list(full):
        ops = []
        for i in range(32):
            pre = []
            if i % 4 == 0:
                pre += [f"s_mov_b32 m0, {KL + i * 1024}"]
                if i:
                    pre += ["s_add_u32 s40, s40, 4096", "s_addc_u32 s41, s41, 0"]
            ops.append(pre + [f"global_load_lds_dwordx4 v{(a0, a1, a2, a3)[i & 3]}, s[40:41] offset:{(i & 3) * 1024} nt"])
        for i in range(32):
            pre = []
            if i % 4 == 0:
                pre += [f"s_mov_b32 m0, {VL + i * 1024}"]
                if i:
                    pre += ["s_add_u32 s42, s42, 4096", "s_addc_u32 s43, s43, 0"]
            ops.append(pre + [f"global_load_lds_dwordx4 v{(b0, b1)[i & 1]}, s[42:43] offset:{(i & 3) * 1024} nt"])
        for i in range(16):
            pre = [f"s_mov_b32 m0, {WOL + i * 1024}"]
            if i:
                pre += ["s_add_u32 s44, s44, 8192", "s_addc_u32 s45, s45, 0"]
            ops.append(pre + [f"global_load_lds_dwordx4 v{cwo}, s[44:45] nt"])
        flags = [(31, F_K), (63, F_V), (79, F_WO)]
        if full:
            for base, sreg in ((W1L, 46), (W3L, 48)):
                for i in range(8):
                    pre = [f"s_mov_b32 m0, {base + i * 1024}"]
                    if i:
                        pre += [f"s_add_u32 s{sreg}, s{sreg}, {8 * 3584}", f"s_addc_u32 s{sreg + 1}, s{sreg + 1}, 0"]
                    ops.append(pre + [f"global_load_lds_dwordx4 v{cw13}, s[{sreg}:{sreg + 1}] nt"])
            for i in range(8):
                pre = [f"s_mov_b32 m0, {W2L + i * 1024}"]
                if i:
                    pre += ["s_add_u32 s50, s50, 4096", "s_addc_u32 s51, s51, 0"]
                ops.append(pre + [f"global_load_lds_dwordx4 v{(d0, d1)[i & 1]}, s[50:51] nt"])
            flags += [(95, F_W13), (103, F_W2)]
        return ops, flags

    def emit_dma(ops, flags, start, stop, final):
        D = k.D
        for n in range(start, stop):
            if n >= D:
                A(f"s_waitcnt vmcnt({D - 1})")
                for (last, f) in flags:
                    if last == n - D:
                        k.lds_signal(f)
            for s_ in ops[n]:
                A(s_)
        if final:
            N = len(ops)
            for (last, f) in flags:
                if last > N - 1 - D:
                    A(f"s_waitcnt vmcnt({N - 1 - last})")
                    k.lds_signal(f)

    opsF, flagsF = dma_list(True)
    opsS, flagsS = dma_list(False)
    emit_dma(opsF, flagsF, 0, 80, False)
    A("s_cmp_eq_u32 s4, 7")
    A("s_cbranch_scc1 L_loader_short")
    emit_dma(opsF, flagsF, 80, len(opsF), True)
    A("s_endpgm")
    k.label("L_loader_short")
    emit_dma(opsS, flagsS, 80, 80, True)
    k.label("L_end")
    A("s_endpgm")

    body = list(k.L)
    body = fix_hazards(body)

    nv = (ra.next + 7) // 8 * 8
    tail = []
    tail.append('.section .rodata,"a"')
    tail.append(".p2align 6")
    tail.append(f".amdhsa_kernel {NAME}")
    tail.append(f"  .amdhsa_next_free_vgpr {nv}")
    tail.append("  .amdhsa_next_free_sgpr 102")
    tail.append(f"  .amdhsa_accum_offset {nv}")
    tail.append("  .amdhsa_group_segment_fixed_size 0")
    tail.append("  .amdhsa_kernarg_size 96")
    tail.append("  .amdhsa_user_sgpr_count 2")
    tail.append("  .amdhsa_user_sgpr_kernarg_segment_ptr 1")
    tail.append("  .amdhsa_system_sgpr_workgroup_id_x 1")
    tail.append(".end_amdhsa_kernel")
    return "\n".join(hdr + body + tail) + "\n"


if __name__ == "__main__":
    import argparse
    ap = argparse.ArgumentParser()
    ap.add_argument("-o", default="sequential_preLN__sliding_block_cached__glu_gated_swiglu__decode.s")
    ap.add_argument("--stamps", action="store_true")
    ap.add_argument("-D", type=int, default=32)
    a = ap.parse_args()
    open(a.o, "w").write(gen(a.stamps, a.D))
```

```python
import sys, os
sys.path.insert(0, os.path.dirname(os.path.abspath(__file__)))
from asmlib import fix_hazards, RegAlloc

NAME = "sequential_preLN__sliding_block_cached__glu_gated_swiglu__decode_kernel"

KL = 0
VL = 32768
WQL = 65536
WOL = 81920
W1L = 98304
W3L = 106496
W2L = 114688
XN = 122880
QF = 126976
PF = 131072
MX = 135168
LS = 136192
OF = 137216
HF = 137472
ONES = 137600
FLAGS = 137728
LDS_BYTES = 138240
F_WQ, F_Q, F_M, F_P, F_O, F_H, F_K, F_V, F_WO, F_W13, F_W2 = [4 * i for i in range(11)]

WS_STAMP = 0x10000
WS_A = 0x100000
WS_B = 0x200000
WS_P3 = 0x300000
WS_P5 = 0x320000
B_P1 = 0
B_ML = 256
B_ST = 384
B_ACK = 512
B_P4 = 1024
B_P2 = 2048

LOG2E = 0x3FB8AA3B
SCALE = 0x3DB504F3
EPS = 0x3727C5AC
INV512 = 0x3B000000

POLL_LIMIT = 512
PANIC_MAX = 4000
LDS_SPIN_MAX = 1 << 24


def vr(b, n):
    return f"v[{b}:{b + n - 1}]" if n > 1 else f"v{b}"


def sr(b, n=2):
    return f"s[{b}:{b + n - 1}]"


class K:
    def __init__(self, stamps=False, D=32):
        self.L = []
        self.stamps = stamps
        self.D = D
        self.uid = 0
        self.nstamp = 0

    def __call__(self, s):
        self.L.append("    " + s)

    def label(self, s):
        self.L.append(s + ":")

    def newlabel(self, p):
        self.uid += 1
        return f"L_{p}_{self.uid}"

    def stamp(self, idx):
        if self.stamps:
            self(f"s_memrealtime {sr(78 + 2 * idx)}")

    def lds_wait(self, off, target, vtmp, extra_reads=()):
        lp = self.newlabel("lw")
        ok = self.newlabel("lwok")
        self(f"s_mov_b32 s63, {LDS_SPIN_MAX}")
        self.label(lp)
        self(f"ds_read_b32 v{vtmp}, v{self.vFlag} offset:{off}")
        for r in extra_reads:
            self(r)
        self("s_waitcnt lgkmcnt(0)")
        self(f"v_cmp_le_u32 vcc, {target}, v{vtmp}")
        self(f"s_cbranch_vccnz {ok}")
        self("s_sub_u32 s63, s63, 1")
        self("s_cmp_eq_u32 s63, 0")
        self(f"s_cbranch_scc0 {lp}")
        self("s_endpgm")
        self.label(ok)

    def lds_signal(self, off):
        self("s_mov_b64 exec, 1")
        self(f"ds_add_u32 v{self.vFlag}, v{self.vOne} offset:{off}")
        self("s_mov_b64 exec, -1")

    def tag4(self, b):
        for i in range(4):
            self(f"v_perm_b32 v{b + i}, v{b + i}, s56, v{self.vSel + i}")

    def check(self, acc, grans):
        first = True
        for b in grans:
            for i in range(4):
                self(f"v_msad_u8 v{acc}, v{b + i}, s{57 + i}, {'0' if first else 'v%d' % acc}")
                first = False

    def poll(self, loads, grans, acc, toggle):
        lp = self.newlabel("poll")
        ok = self.newlabel("pollok")
        nx = self.newlabel("pollnx")
        self("s_mov_b32 s61, 0")
        self.label(lp)
        for l in loads:
            self(l)
        self("s_waitcnt vmcnt(0)")
        self.check(acc, grans)
        self(f"v_cmp_ne_u32 vcc, 0, v{acc}")
        self(f"s_cbranch_vccz {ok}")
        self("s_add_u32 s61, s61, 1")
        self(f"s_and_b32 s6, s61, {POLL_LIMIT - 1}")
        self(f"s_cbranch_scc1 {nx}")
        self("s_call_b64 s[64:65], L_panic")
        self.label(nx)
        if toggle:
            self("s_xor_b32 s44, s44, s50")
            self("s_xor_b32 s45, s45, s51")
        self(f"s_branch {lp}")
        self.label(ok)

    def allreduce16(self, op, regs, steps=(1, 2, 4, 8)):
        for st in steps:
            for r in regs:
                self(f"{op}_dpp v{r}, v{r}, v{r} row_ror:{st} row_mask:0xf bank_mask:0xf")

    def reduce64_to_lane63(self, regs):
        self.allreduce16("v_add_f32", regs)
        for r in regs:
            self(f"v_add_f32_dpp v{r}, v{r}, v{r} row_bcast:15 row_mask:0xa bank_mask:0xf")
        for r in regs:
            self(f"v_add_f32_dpp v{r}, v{r}, v{r} row_bcast:31 row_mask:0xc bank_mask:0xf")

    def round_bf16(self, dst, src):
        self(f"v_cvt_pk_bf16_f32 v{dst}, v{src}, v{src}")
        self(f"v_and_b32 v{dst}, 0xffff0000, v{dst}")

    def round_bf16_pair(self, d0, d1, s0, s1, tmp):
        self(f"v_cvt_pk_bf16_f32 v{tmp}, v{s0}, v{s1}")
        self(f"v_lshlrev_b32 v{d0}, 16, v{tmp}")
        self(f"v_and_b32 v{d1}, 0xffff0000, v{tmp}")


def gen(stamps=False, D=32, dbgtime=False):
    k = K(stamps, D)
    A = k
    ra = RegAlloc(1, 256)
    V = ra.alloc

    hdr = []
    hdr.append(f"; @launch grid=(256,1,1) block=(320,1,1) lds={LDS_BYTES}")
    hdr.append('.amdgcn_target "amdgcn-amd-amdhsa--gfx950"')
    hdr.append(".text")
    hdr.append(f".globl {NAME}")
    hdr.append(".p2align 8")
    hdr.append(f".type {NAME},@function")
    hdr.append(f"{NAME}:")

    vLane = V("lane"); vR = V("r"); vQd = V("qd"); vL16 = V("l16")
    k.vFlag = V("flag"); k.vOne = V("one")
    t0 = V("t0"); t1 = V("t1"); t2 = V("t2"); t3 = V("t3"); t4 = V("t4"); t5 = V("t5"); t6 = V("t6"); t7 = V("t7")

    A.stamp(0)
    if dbgtime:
        A("s_memrealtime s[96:97]")
    A("s_cmp_ge_u32 s2, 256")
    A("s_cbranch_scc1 L_end")
    A("s_load_dwordx16 s[16:31], s[0:1], 0")
    A("s_load_dwordx8 s[32:39], s[0:1], 64")
    A(f"v_lshrrev_b32 v{t0}, 6, v0")
    A(f"v_and_b32 v{vLane}, 63, v0")
    A(f"v_readfirstlane_b32 s3, v{t0}")
    A("s_and_b32 s4, s2, 7")
    A("s_lshr_b32 s5, s2, 3")
    A(f"v_and_b32 v{vR}, 15, v{vLane}")
    A(f"v_lshrrev_b32 v{vQd}, 4, v{vLane}")
    A(f"v_lshlrev_b32 v{vL16}, 4, v{vLane}")
    A(f"v_mov_b32 v{k.vFlag}, {FLAGS}")
    A(f"v_mov_b32 v{k.vOne}, 1")
    A(f"v_lshlrev_b32 v{t0}, 2, v{vLane}")
    A(f"v_add_u32 v{t0}, {ONES}, v{t0}")
    A(f"v_mov_b32 v{t1}, 0")
    A(f"v_mov_b32 v{t2}, 0x3f803f80")
    A(f"ds_write_b32 v{t0}, v{t1} offset:{FLAGS - ONES}")
    A("s_mov_b32 exec_hi, 0")
    A(f"ds_write_b32 v{t0}, v{t2}")
    A("s_mov_b64 exec, -1")
    A("s_waitcnt lgkmcnt(0)")
    A("s_barrier")
    A("s_cmp_eq_u32 s3, 4")
    A("s_cbranch_scc1 L_loader")

    vX = V("x", 4)
    vXR = V("xr", 2)
    vZ = V("zero4", 4)
    k.vSel = V("sel", 4)
    A(f"global_load_dwordx4 {vr(vX, 4)}, v{vL16}, s[16:17]")
    A("s_load_dword s56, s[38:39], 0")
    A(f"v_bfe_u32 v{t0}, v{vLane}, 3, 2")
    A(f"v_lshrrev_b32 v{t1}, 5, v{vLane}")
    A(f"v_lshl_add_u32 v{t0}, v{t1}, 3, v{t0}")
    A(f"v_lshlrev_b32 v{t0}, 13, v{t0}")
    A(f"v_and_b32 v{t1}, 7, v{vLane}")
    A(f"v_lshlrev_b32 v{t2}, 1, v{vQd}")
    A(f"v_xor_b32 v{t1}, v{t1}, v{t2}")
    A(f"v_lshl_add_u32 v{t0}, v{t1}, 4, v{t0}")
    A("s_lshr_b32 s6, s5, 3")
    A("s_and_b32 s7, s5, 7")
    A("s_lshl_b32 s8, s6, 20")
    A("s_lshl_b32 s9, s3, 18")
    A("s_add_u32 s8, s8, s9")
    A("s_lshl_b32 s9, s4, 10")
    A("s_add_u32 s8, s8, s9")
    A("s_lshl_b32 s9, s7, 7")
    A("s_add_u32 s8, s8, s9")
    A("s_lshl_b32 s12, s3, 12")
    A(f"s_add_u32 s12, s12, {WQL}")
    for i, kb in enumerate((0, 16, 4, 20)):
        A(f"s_add_u32 s9, s8, {kb * 8192}")
        A("s_add_u32 s10, s22, s9")
        A("s_addc_u32 s11, s23, 0")
        A(f"s_add_u32 m0, s12, {i * 1024}")
        A(f"global_load_lds_dwordx4 v{t0}, s[10:11] nt")
    A("s_lshl_b32 s8, s7, 7")
    A("s_lshl_b32 s9, s3, 5")
    A("s_add_u32 s8, s8, s9")
    A(f"v_lshlrev_b32 v{t0}, 3, v{vQd}")
    A(f"v_add_u32 v{t0}, s8, v{t0}")
    A("s_lshl_b32 s8, s5, 5")
    A("s_lshl_b32 s9, s3, 3")
    A("s_add_u32 s8, s8, s9")
    A(f"v_mov_b32 v{t1}, s8")
    A("s_cmp_eq_u32 s4, 7")
    A("s_cselect_b64 s[10:11], -1, 0")
    A(f"v_cndmask_b32 v{t0}, v{t0}, v{t1}, s[10:11]")
    A(f"global_load_dwordx2 {vr(vXR, 2)}, v{t0}, s[16:17]")
    A("s_lshl_b32 s8, s4, 17")
    A(f"s_add_u32 s8, s8, {WS_A}")
    A("s_add_u32 s40, s38, s8")
    A("s_addc_u32 s41, s39, 0")
    A("s_lshl_b32 s9, s5, 12")
    A("s_add_u32 s42, s40, s9")
    A("s_addc_u32 s43, s41, 0")
    A("s_mov_b32 s44, s40")
    A("s_mov_b32 s45, s41")
    A(f"s_add_u32 s46, s40, {WS_B - WS_A}")
    A("s_addc_u32 s47, s41, 0")
    A(f"s_add_u32 s48, s42, {WS_B - WS_A}")
    A("s_addc_u32 s49, s43, 0")
    A("s_mov_b32 s50, 0")
    A("s_mov_b32 s51, 0")
    A(f"s_add_u32 s52, s38, {WS_P3}")
    A("s_addc_u32 s53, s39, 0")
    A(f"s_add_u32 s54, s38, {WS_P5}")
    A("s_addc_u32 s55, s39, 0")
    A("s_mov_b32 s62, 0")
    for i in range(4):
        A(f"v_mov_b32 v{vZ + i}, 0")
    A("s_lshl_b32 s8, s3, 10")
    A(f"v_add_u32 v{t0}, s8, v{vL16}")
    A(f"global_store_dwordx4 v{t0}, {vr(vZ, 4)}, s[42:43]")
    for i in range(4):
        A(f"v_mov_b32 v{k.vSel + i}, {0x07060500 + i:#x}")
    A(f"v_cmp_eq_u32 s[68:69], 0, v{vR}")
    A(f"v_cmp_gt_u32 s[70:71], 8, v{vR}")
    A(f"v_lshrrev_b32 v{t0}, 2, v{vR}")
    A(f"v_cmp_eq_u32 s[72:73], 1, v{t0}")
    A(f"v_cmp_gt_u32 s[74:75], 4, v{vR}")
    A(f"v_lshrrev_b32 v{t0}, 1, v{vR}")
    A(f"v_cmp_eq_u32 s[76:77], 1, v{t0}")
    vTR128 = V("tr128")
    vRR = V("rr"); vCC = V("cc")
    A(f"v_lshrrev_b32 v{vRR}, 2, v{vR}")
    A(f"v_and_b32 v{vCC}, 3, v{vLane}")
    A(f"v_lshl_add_u32 v{t0}, v{vQd}, 2, v{vRR}")
    A(f"v_lshlrev_b32 v{vTR128}, 7, v{t0}")
    A(f"v_bfe_u32 v{t1}, v{t0}, 1, 2")
    A(f"v_lshlrev_b32 v{t1}, 1, v{t1}")
    A(f"v_lshrrev_b32 v{t2}, 1, v{vCC}")
    A("s_lshl_b32 s8, s3, 1")
    A(f"v_add_u32 v{t2}, s8, v{t2}")
    A(f"v_xor_b32 v{t2}, v{t2}, v{t1}")
    A(f"v_lshl_add_u32 v{vTR128}, v{t2}, 4, v{vTR128}")
    A(f"v_and_b32 v{t2}, 1, v{vCC}")
    A(f"v_lshl_add_u32 v{vTR128}, v{t2}, 3, v{vTR128}")
    A(f"v_add_u32 v{vTR128}, {WQL}, v{vTR128}")
    vTR256 = V("tr256", 2)
    A(f"v_lshlrev_b32 v{vTR256}, 8, v{t0}")
    A(f"v_and_b32 v{t1}, 7, v{t0}")
    A(f"v_lshlrev_b32 v{t1}, 1, v{t1}")
    A(f"v_lshrrev_b32 v{t3}, 1, v{vCC}")
    A("s_lshl_b32 s8, s3, 2")
    A(f"v_add_u32 v{t3}, s8, v{t3}")
    A(f"v_xor_b32 v{t3}, v{t3}, v{t1}")
    A(f"v_lshl_add_u32 v{vTR256}, v{t3}, 4, v{vTR256}")
    A(f"v_lshl_add_u32 v{vTR256}, v{t2}, 3, v{vTR256}")
    A(f"v_xor_b32 v{vTR256 + 1}, 32, v{vTR256}")

    vF = V("f", 8)
    A("s_waitcnt vmcnt(6)")
    for i in range(4):
        A(f"v_lshlrev_b32 v{vF + 2 * i}, 16, v{vX + i}")
        A(f"v_and_b32 v{vF + 2 * i + 1}, 0xffff0000, v{vX + i}")
    A(f"v_add_f32 v{t0}, v{vF}, v{vF + 1}")
    for i in range(2, 8):
        A(f"v_add_f32 v{t0}, v{t0}, v{vF + i}")
    k.reduce64_to_lane63([t0])
    A(f"v_readlane_b32 s8, v{t0}, 63")
    A(f"v_mov_b32 v{t1}, {INV512:#x}")
    A(f"v_mul_f32 v{t1}, s8, v{t1}")
    A(f"v_sub_f32 v{t2}, v{vF}, v{t1}")
    A(f"v_mul_f32 v{t0}, v{t2}, v{t2}")
    for i in range(1, 8):
        A(f"v_sub_f32 v{t2}, v{vF + i}, v{t1}")
        A(f"v_fmac_f32 v{t0}, v{t2}, v{t2}")
    k.reduce64_to_lane63([t0])
    A(f"v_readlane_b32 s8, v{t0}, 63")
    A(f"v_mov_b32 v{t2}, {INV512:#x}")
    A(f"v_mul_f32 v{t2}, s8, v{t2}")
    k.round_bf16(t1, t1)
    k.round_bf16(t2, t2)
    A(f"v_add_f32 v{t2}, {EPS:#x}, v{t2}")
    k.round_bf16(t2, t2)
    A(f"v_sqrt_f32 v{t2}, v{t2}")
    k.round_bf16(t2, t2)
    A(f"v_rcp_f32 v{t2}, v{t2}")
    for i in range(8):
        A(f"v_sub_f32 v{vF + i}, v{vF + i}, v{t1}")
    for i in range(4):
        k.round_bf16_pair(vF + 2 * i, vF + 2 * i + 1, vF + 2 * i, vF + 2 * i + 1, t3)
    for i in range(8):
        A(f"v_mul_f32 v{vF + i}, v{vF + i}, v{t2}")
    for i in range(4):
        A(f"v_cvt_pk_bf16_f32 v{vX + i}, v{vF + 2 * i}, v{vF + 2 * i + 1}")
    A("s_lshl_b32 s8, s3, 10")
    A(f"s_add_u32 s8, s8, {XN}")
    A(f"v_add_u32 v{t0}, s8, v{vL16}")
    A(f"ds_write_b128 v{t0}, {vr(vX, 4)}")
    vB = V("bfrag", 16)
    A("s_lshl_b32 s9, s6, 8")
    A("s_add_u32 s8, s8, s9")
    A(f"v_lshlrev_b32 v{t0}, 4, v{vQd}")
    A(f"v_add_u32 v{t0}, s8, v{t0}")
    for ks in range(4):
        A(f"ds_read_b128 {vr(vB + 4 * ks, 4)}, v{t0} offset:{ks * 64}")
    A("s_waitcnt lgkmcnt(0)")
    A("s_add_u32 s56, s56, 1")
    A("s_and_b32 s56, s56, 0x0fffffff")
    A("s_mov_b32 s13, s56")
    for i in range(4):
        A(f"s_lshr_b32 s8, s13, {7 * i}")
        A("s_and_b32 s8, s8, 0x7f")
        A(f"s_or_b32 s{57 + i}, s8, 0x80")
    A("s_lshl_b32 s8, s58, 8")
    A("s_or_b32 s56, s57, s8")
    A("s_lshl_b32 s8, s59, 16")
    A("s_or_b32 s56, s56, s8")
    A("s_lshl_b32 s8, s60, 24")
    A("s_or_b32 s56, s56, s8")
    A.stamp(1)
    A("s_waitcnt vmcnt(2)")
    k.lds_signal(F_WQ)
    k.lds_wait(F_WQ, 4, t0)
    vW = V("wfrag", 16)
    for ks in range(4):
        for hf in range(2):
            A(f"ds_read_b64_tr_b16 {vr(vW + 4 * ks + 2 * hf, 2)}, v{vTR128} offset:{ks * 4096 + hf * 2048}")
    vD = V("d", 8)
    A("s_waitcnt lgkmcnt(0)")
    for ks in range(4):
        A(f"v_mfma_f32_16x16x32_bf16 {vr(vD, 4)}, {vr(vW + 4 * ks, 4)}, {vr(vB + 4 * ks, 4)}, {'0' if ks == 0 else vr(vD, 4)}")
    vPub = V("pubaddr")
    A("s_lshl_b32 s8, s3, 6")
    A(f"v_lshlrev_b32 v{vPub}, 4, v{vQd}")
    A(f"v_add_u32 v{vPub}, s8, v{vPub}")
    k.tag4(vD)
    A("s_mov_b64 exec, s[68:69]")
    A(f"global_store_dwordx4 v{vPub}, {vr(vD, 4)}, s[42:43] offset:{B_P1}")
    A("s_mov_b64 exec, -1")
    A.stamp(2)
    vG = V("g", 24)
    vAcc = V("acc")
    A(f"v_lshlrev_b32 v{t0}, 3, v{vRR}")
    A(f"v_and_b32 v{t1}, 3, v{vR}")
    A(f"v_lshl_add_u32 v{t0}, v{t1}, 1, v{t0}")
    A("s_lshr_b32 s8, s3, 1")
    A(f"v_add_u32 v{t0}, s8, v{t0}")
    A(f"v_lshlrev_b32 v{t0}, 12, v{t0}")
    A("s_and_b32 s8, s3, 1")
    A("s_lshl_b32 s8, s8, 7")
    A(f"v_lshl_add_u32 v{t1}, v{vQd}, 5, v{t0}")
    A(f"v_add_u32 v{t1}, s8, v{t1}")
    k.poll([f"global_load_dwordx4 {vr(vG, 4)}, v{t1}, s[44:45] offset:{B_P1} sc1",
            f"global_load_dwordx4 {vr(vG + 4, 4)}, v{t1}, s[44:45] offset:{B_P1 + 16} sc1"],
           [vG, vG + 4], vAcc, True)
    A.stamp(3)
    k.allreduce16("v_add_f32", list(range(vG, vG + 8)), steps=(4, 8))
    for i in range(4):
        A(f"v_cvt_pk_bf16_f32 v{vX + i}, v{vG + 2 * i}, v{vG + 2 * i + 1}")
    A("s_lshl_b32 s8, s3, 10")
    A(f"v_add_u32 v{t0}, s8, v{vL16}")
    vWL = V("wl16")
    A(f"v_mov_b32 v{vWL}, v{t0}")
    vL16Q = V("l16q")
    A(f"v_add_u32 v{vL16Q}, {QF}, v{vL16}")
    A(f"v_add_u32 v{t0}, {QF}, v{vWL}")
    A(f"ds_write_b128 v{t0}, {vr(vX, 4)}")
    k.lds_signal(F_Q)
    vKF = V("kfrag", 32)
    A("s_lshl_b32 s8, s3, 13")
    A(f"v_lshlrev_b32 v{t0}, 8, v{vR}")
    A(f"v_add_u32 v{t0}, s8, v{t0}")
    A(f"v_xor_b32 v{t1}, v{vQd}, v{vR}")
    A(f"v_lshl_add_u32 v{t0}, v{t1}, 4, v{t0}")
    A(f"v_xor_b32 v{t1}, 64, v{t0}")
    A(f"v_xor_b32 v{t2}, 128, v{t0}")
    A(f"v_xor_b32 v{t3}, 192, v{t0}")
    k.lds_wait(F_K, 1, t4)
    for kt in range(2):
        for s, a in enumerate((t0, t1, t2, t3)):
            A(f"ds_read_b128 {vr(vKF + 16 * kt + 4 * s, 4)}, v{a} offset:{KL + kt * 4096}")
    k.lds_wait(F_Q, 4, t4, [f"ds_read_b128 {vr(vB + 4 * s, 4)}, v{vL16Q} offset:{s * 1024}" for s in range(4)])
    for s in range(4):
        for kt in range(2):
            A(f"v_mfma_f32_16x16x32_bf16 {vr(vD + 4 * kt, 4)}, {vr(vKF + 16 * kt + 4 * s, 4)}, {vr(vB + 4 * s, 4)}, {'0' if s == 0 else vr(vD + 4 * kt, 4)}")
    A(f"s_mov_b32 s8, {SCALE:#x}")
    for i in range(4):
        k.round_bf16_pair(vF + 2 * i, vF + 2 * i + 1, vD + 2 * i, vD + 2 * i + 1, t0)
    for i in range(8):
        A(f"v_mul_f32 v{vF + i}, s8, v{vF + i}")
    for i in range(4):
        k.round_bf16_pair(vF + 2 * i, vF + 2 * i + 1, vF + 2 * i, vF + 2 * i + 1, t0)
    A(f"v_max3_f32 v{t0}, v{vF}, v{vF + 1}, v{vF + 2}")
    A(f"v_max3_f32 v{t0}, v{t0}, v{vF + 3}, v{vF + 4}")
    A(f"v_max3_f32 v{t0}, v{t0}, v{vF + 5}, v{vF + 6}")
    A(f"v_max_f32 v{t0}, v{t0}, v{vF + 7}")
    vMXw = V("mxw"); vMXr = V("mxr")
    A(f"v_lshlrev_b32 v{vMXr}, 6, v{vR}")
    A(f"v_add_u32 v{vMXr}, {MX}, v{vMXr}")
    A("s_lshl_b32 s8, s3, 4")
    A(f"v_lshl_add_u32 v{vMXw}, v{vQd}, 2, v{vMXr}")
    A(f"v_add_u32 v{vMXw}, s8, v{vMXw}")
    A(f"ds_write_b32 v{vMXw}, v{t0}")
    k.lds_signal(F_M)
    k.lds_wait(F_M, 4, t4, [f"ds_read_b128 {vr(vG + 4 * i, 4)}, v{vMXr} offset:{16 * i}" for i in range(4)])
    vM = V("m")
    A(f"v_max3_f32 v{vM}, v{vG}, v{vG + 1}, v{vG + 2}")
    for i in range(3, 15, 2):
        A(f"v_max3_f32 v{vM}, v{vM}, v{vG + i}, v{vG + i + 1}")
    A(f"v_max_f32 v{vM}, v{vM}, v{vG + 15}")
    A(f"s_mov_b32 s8, {LOG2E:#x}")
    for i in range(8):
        A(f"v_sub_f32 v{vF + i}, v{vF + i}, v{vM}")
    for i in range(8):
        A(f"v_mul_f32 v{vF + i}, s8, v{vF + i}")
    for i in range(8):
        A(f"v_exp_f32 v{vF + i}, v{vF + i}")
    A(f"v_add_f32 v{t0}, v{vF}, v{vF + 1}")
    for i in range(2, 8):
        A(f"v_add_f32 v{t0}, v{t0}, v{vF + i}")
    for i in range(4):
        A(f"v_cvt_pk_bf16_f32 v{vX + i}, v{vF + 2 * i}, v{vF + 2 * i + 1}")
    A(f"v_add_u32 v{t1}, {PF}, v{vWL}")
    A(f"ds_write_b128 v{t1}, {vr(vX, 4)}")
    A(f"ds_write_b32 v{vMXw}, v{t0} offset:{LS - MX}")
    k.lds_signal(F_P)
    k.lds_wait(F_P, 4, t4,
               [f"ds_read_b128 {vr(vB + 4 * s, 4)}, v{vL16Q} offset:{PF - QF + s * 1024}" for s in range(4)] +
               [f"ds_read_b128 {vr(vG + 4 * i, 4)}, v{vMXr} offset:{LS - MX + 16 * i}" for i in range(4)])
    vML = V("ml", 4)
    A(f"v_add_f32 v{vML + 1}, v{vG}, v{vG + 1}")
    for i in range(2, 16):
        A(f"v_add_f32 v{vML + 1}, v{vML + 1}, v{vG + i}")
    A(f"v_mov_b32 v{vML}, v{vM}")
    A(f"v_mov_b32 v{vML + 2}, 0")
    A(f"v_mov_b32 v{vML + 3}, 0")
    k.tag4(vML)
    skipml = k.newlabel("skipml")
    A("s_cmp_lg_u32 s3, 0")
    A(f"s_cbranch_scc1 {skipml}")
    A("s_mov_b64 exec, 15")
    A(f"global_store_dwordx4 v{vL16}, {vr(vML, 4)}, s[42:43] offset:{B_ML}")
    A("s_mov_b64 exec, -1")
    k.label(skipml)
    vP2a = V("p2a")
    A(f"v_and_b32 v{t0}, 3, v{vR}")
    A(f"v_lshlrev_b32 v{vP2a}, 9, v{t0}")
    A(f"v_lshl_add_u32 v{vP2a}, v{vRR}, 6, v{vP2a}")
    A(f"v_lshl_add_u32 v{vP2a}, v{vQd}, 4, v{vP2a}")
    A("s_lshl_b32 s8, s3, 7")
    A(f"v_add_u32 v{vP2a}, s8, v{vP2a}")
    vH2 = V("h2a", 4)
    A("s_lshr_b32 s9, s5, 3")
    A("s_lshl_b32 s10, s9, 9")
    A("s_add_u32 s10, s10, s8")
    A(f"v_lshlrev_b32 v{t0}, 12, v{vR}")
    A(f"v_lshl_add_u32 v{vH2}, v{vQd}, 4, v{t0}")
    A(f"v_add_u32 v{vH2}, s10, v{vH2}")
    A(f"v_add_u32 v{vH2 + 1}, 0x10000, v{vH2}")
    A("s_lshl_b32 s10, s9, 4")
    A(f"v_add_u32 v{vH2 + 2}, s10, v{t0}")
    A(f"v_add_u32 v{vH2 + 3}, 0x10000, v{vH2 + 2}")
    A.stamp(4)
    k.lds_wait(F_V, 1, t4)
    A.stamp(5)
    for ks in range(4):
        for t in range(2):
            for hf in range(2):
                A(f"ds_read_b64_tr_b16 {vr(vKF + 8 * ks + 4 * t + 2 * hf, 2)}, v{vTR256 + t} offset:{VL + ks * 8192 + hf * 4096}")
    for ks in range(4):
        A(f"s_waitcnt lgkmcnt({12 - 4 * ks})")
        for t in range(2):
            A(f"v_mfma_f32_16x16x32_bf16 {vr(vD + 4 * t, 4)}, {vr(vKF + 8 * ks + 4 * t, 4)}, {vr(vB + 4 * ks, 4)}, {'0' if ks == 0 else vr(vD + 4 * t, 4)}")
    for i in range(4):
        A(f"v_cndmask_b32 v{vD + i}, v{vD + i}, v{vD + 4 + i}, s[72:73]")
    k.tag4(vD)
    A("s_mov_b64 exec, s[70:71]")
    A(f"global_store_dwordx4 v{vP2a}, {vr(vD, 4)}, s[42:43] offset:{B_P2}")
    A("s_mov_b64 exec, -1")
    A.stamp(6)
    k.lds_wait(F_WO, 1, t4)
    for ks in range(4):
        for hf in range(2):
            A(f"ds_read_b64_tr_b16 {vr(vW + 4 * ks + 2 * hf, 2)}, v{vTR128} offset:{WOL - WQL + ks * 4096 + hf * 2048}")
    k.poll([f"global_load_dwordx4 {vr(vG + 16, 4)}, v{vH2 + 2}, s[44:45] offset:{B_ML} sc1",
            f"global_load_dwordx4 {vr(vG + 20, 4)}, v{vH2 + 3}, s[44:45] offset:{B_ML} sc1",
            f"global_load_dwordx4 {vr(vG, 4)}, v{vH2}, s[44:45] offset:{B_P2} sc1",
            f"global_load_dwordx4 {vr(vG + 4, 4)}, v{vH2}, s[44:45] offset:{B_P2 + 64} sc1",
            f"global_load_dwordx4 {vr(vG + 8, 4)}, v{vH2 + 1}, s[44:45] offset:{B_P2} sc1",
            f"global_load_dwordx4 {vr(vG + 12, 4)}, v{vH2 + 1}, s[44:45] offset:{B_P2 + 64} sc1"],
           [vG + 16, vG + 20, vG, vG + 4, vG + 8, vG + 12], vAcc, True)
    A.stamp(7)
    m1, l1, m2, l2 = vG + 16, vG + 17, vG + 20, vG + 21
    A(f"v_and_b32 v{m1}, 0xffffff00, v{m1}")
    A(f"v_and_b32 v{m2}, 0xffffff00, v{m2}")
    A(f"v_max_f32 v{t0}, v{m1}, v{m2}")
    k.allreduce16("v_max_f32", [t0])
    A(f"s_mov_b32 s8, {LOG2E:#x}")
    A(f"v_sub_f32 v{m1}, v{m1}, v{t0}")
    A(f"v_sub_f32 v{m2}, v{m2}, v{t0}")
    A(f"v_mul_f32 v{m1}, s8, v{m1}")
    A(f"v_mul_f32 v{m2}, s8, v{m2}")
    A(f"v_exp_f32 v{m1}, v{m1}")
    A(f"v_exp_f32 v{m2}, v{m2}")
    A(f"v_mul_f32 v{t1}, v{m1}, v{l1}")
    A(f"v_fmac_f32 v{t1}, v{m2}, v{l2}")
    for i in range(8):
        A(f"v_mul_f32 v{vG + i}, v{m1}, v{vG + i}")
    for i in range(8):
        A(f"v_fmac_f32 v{vG + i}, v{m2}, v{vG + 8 + i}")
    k.allreduce16("v_add_f32", [t1] + list(range(vG, vG + 8)))
    A(f"v_rcp_f32 v{t1}, v{t1}")
    for i in range(8):
        A(f"v_mul_f32 v{vG + i}, v{t1}, v{vG + i}")
    for i in range(4):
        A(f"v_cvt_pk_bf16_f32 v{vX + i}, v{vG + 2 * i}, v{vG + 2 * i + 1}")
    A(f"v_add_u32 v{t0}, {OF}, v{vPub}")
    A("s_mov_b64 exec, s[68:69]")
    A(f"ds_write_b128 v{t0}, {vr(vX, 4)}")
    k.lds_signal(F_O)
    vQ16 = V("q16")
    A(f"v_lshlrev_b32 v{vQ16}, 4, v{vQd}")
    A(f"v_add_u32 v{vQ16}, {OF}, v{vQ16}")
    k.lds_wait(F_O, 4, t4, [f"ds_read_b128 {vr(vB + 4 * ks, 4)}, v{vQ16} offset:{ks * 64}" for ks in range(4)])
    for ks in range(4):
        A(f"v_mfma_f32_16x16x32_bf16 {vr(vD, 4)}, {vr(vW + 4 * ks, 4)}, {vr(vB + 4 * ks, 4)}, {'0' if ks == 0 else vr(vD, 4)}")
    A("s_and_b32 s8, s5, 7")
    A("s_lshl_b32 s8, s8, 5")
    A("s_lshl_b32 s9, s4, 2")
    A("s_add_u32 s8, s8, s9")
    A("s_lshr_b32 s9, s5, 3")
    A("s_add_u32 s8, s8, s9")
    A("s_lshl_b32 s8, s8, 8")
    A(f"v_add_u32 v{t0}, s8, v{vPub}")
    k.tag4(vD)
    A("s_mov_b64 exec, s[68:69]")
    A(f"global_store_dwordx4 v{t0}, {vr(vD, 4)}, s[52:53] sc1")
    A("s_mov_b64 exec, -1")
    A.stamp(8)
    A("s_cmp_eq_u32 s4, 7")
    A("s_cbranch_scc1 L_final")

    vW13 = vKF
    k.lds_wait(F_W13, 1, t4)
    for mat, base in enumerate((W1L, W3L)):
        for ks in range(2):
            for hf in range(2):
                A(f"ds_read_b64_tr_b16 {vr(vW13 + 8 * mat + 4 * ks + 2 * hf, 2)}, v{vTR128} offset:{base - WQL + ks * 4096 + hf * 2048}")
    A("s_and_b32 s8, s5, 7")
    A("s_lshl_b32 s8, s8, 13")
    A(f"v_lshl_add_u32 v{t1}, v{vR}, 8, v{vPub}")
    A(f"v_add_u32 v{t1}, s8, v{t1}")
    A(f"v_add_u32 v{t2}, 4096, v{t1}")
    A(f"v_lshlrev_b32 v{vF}, 16, v{vXR}")
    A(f"v_and_b32 v{vF + 1}, 0xffff0000, v{vXR}")
    A(f"v_lshlrev_b32 v{vF + 2}, 16, v{vXR + 1}")
    A(f"v_and_b32 v{vF + 3}, 0xffff0000, v{vXR + 1}")
    vHFw = V("hfw"); vHFa = V("hfa"); vHFb = V("hfb")
    A("s_lshr_b32 s8, s3, 1")
    A("s_lshl_b32 s8, s8, 6")
    A("s_and_b32 s9, s3, 1")
    A("s_lshl_b32 s9, s9, 3")
    A("s_add_u32 s8, s8, s9")
    A(f"v_lshlrev_b32 v{vHFa}, 4, v{vQd}")
    A(f"v_add_u32 v{vHFa}, {HF}, v{vHFa}")
    A(f"v_add_u32 v{vHFw}, s8, v{vHFa}")
    A(f"v_and_b32 v{t0}, 1, v{vR}")
    A(f"v_lshl_add_u32 v{vHFb}, v{t0}, 7, v{vHFa}")
    vP4a = V("p4a")
    A(f"v_lshl_add_u32 v{vP4a}, v{vR}, 8, v{vPub}")
    k.poll([f"global_load_dwordx4 {vr(vG, 4)}, v{t1}, s[52:53] sc1",
            f"global_load_dwordx4 {vr(vG + 4, 4)}, v{t2}, s[52:53] sc1"],
           [vG, vG + 4], vAcc, False)
    A.stamp(9)
    for i in range(4):
        A(f"v_add_f32 v{vG + i}, v{vG + i}, v{vG + 4 + i}")
    k.allreduce16("v_add_f32", list(range(vG, vG + 4)))
    for i in range(2):
        k.round_bf16_pair(vG + 2 * i, vG + 2 * i + 1, vG + 2 * i, vG + 2 * i + 1, t0)
    for i in range(4):
        A(f"v_add_f32 v{vG + i}, v{vG + i}, v{vF + i}")
    for i in range(2):
        A(f"v_cvt_pk_bf16_f32 v{vX + i}, v{vG + 2 * i}, v{vG + 2 * i + 1}")
    A("s_mov_b64 exec, s[68:69]")
    A(f"ds_write_b64 v{vHFw}, {vr(vX, 2)}")
    k.lds_signal(F_H)
    k.lds_wait(F_H, 4, t4,
               [f"ds_read_b128 {vr(vB + 4 * ks, 4)}, v{vHFb} offset:{ks * 64}" for ks in range(2)] +
               [f"ds_read_b128 {vr(vB + 8 + 4 * ks, 4)}, v{vHFa} offset:{ks * 64}" for ks in range(2)])
    vS = V("stat", 4)
    for ks in range(2):
        A(f"v_mfma_f32_16x16x32_bf16 {vr(vD, 4)}, {vr(vW13 + 4 * ks, 4)}, {vr(vB + 4 * ks, 4)}, {'0' if ks == 0 else vr(vD, 4)}")
        A(f"v_mfma_f32_16x16x32_bf16 {vr(vD + 4, 4)}, {vr(vW13 + 8 + 4 * ks, 4)}, {vr(vB + 4 * ks, 4)}, {'0' if ks == 0 else vr(vD + 4, 4)}")
        A(f"v_mfma_f32_16x16x32_bf16 {vr(vS, 4)}, {vr(vB + 8 + 4 * ks, 4)}, {vr(vB + 4 * ks, 4)}, {'0' if ks == 0 else vr(vS, 4)}")
    for i in range(4):
        A(f"v_cndmask_b32 v{vD + i}, v{vD + i}, v{vD + 4 + i}, s[76:77]")
    k.tag4(vD)
    A("s_mov_b64 exec, s[74:75]")
    A(f"global_store_dwordx4 v{vP4a}, {vr(vD, 4)}, s[42:43] offset:{B_P4}")
    A("s_mov_b64 exec, -1")
    skipst = k.newlabel("skipst")
    A("s_cmp_lg_u32 s3, 0")
    A(f"s_cbranch_scc1 {skipst}")
    A(f"v_mov_b32_dpp v{vS + 1}, v{vS} row_shl:1 row_mask:0xf bank_mask:0xf")
    k.tag4(vS)
    A("s_mov_b64 exec, 1")
    A(f"global_store_dwordx4 v{vL16}, {vr(vS, 4)}, s[42:43] offset:{B_ST}")
    A("s_mov_b64 exec, -1")
    k.label(skipst)
    A.stamp(10)
    k.lds_wait(F_W2, 1, t4)
    A(f"v_add_u32 v{t5}, {W2L}, v{vTR256}")
    A(f"v_add_u32 v{t6}, {W2L}, v{vTR256 + 1}")
    for u in range(2):
        for hf in range(2):
            A(f"ds_read_b64_tr_b16 {vr(vW + 4 * u + 2 * hf, 2)}, v{t5 + u} offset:{hf * 4096}")
    A("s_and_b32 s8, s5, 7")
    A("s_lshr_b32 s9, s8, 1")
    A("s_lshl_b32 s9, s9, 15")
    A("s_and_b32 s10, s8, 1")
    A("s_lshl_b32 s10, s10, 7")
    A(f"v_and_b32 v{t0}, 7, v{vR}")
    A(f"v_lshlrev_b32 v{t0}, 12, v{t0}")
    A(f"v_add_u32 v{t0}, s9, v{t0}")
    A(f"v_lshrrev_b32 v{t1}, 3, v{vR}")
    A(f"v_lshl_add_u32 v{t1}, v{t1}, 9, v{t0}")
    A(f"v_lshl_add_u32 v{t1}, v{vQd}, 4, v{t1}")
    A(f"v_add_u32 v{t1}, s10, v{t1}")
    vP5a = V("p5a")
    A("s_lshr_b32 s9, s5, 3")
    A("s_mul_i32 s9, s9, 56")
    A("s_lshl_b32 s10, s4, 3")
    A("s_add_u32 s9, s9, s10")
    A("s_add_u32 s9, s9, s8")
    A("s_lshl_b32 s9, s9, 9")
    A("s_lshl_b32 s10, s3, 7")
    A("s_add_u32 s9, s9, s10")
    A(f"v_lshlrev_b32 v{vP5a}, 4, v{vQd}")
    A(f"v_add_u32 v{vP5a}, s9, v{vP5a}")
    k.poll([f"global_load_dwordx4 {vr(vG + 16, 4)}, v{t0}, s[44:45] offset:{B_ST} sc1",
            f"global_load_dwordx4 {vr(vG, 4)}, v{t1}, s[44:45] offset:{B_P4} sc1",
            f"global_load_dwordx4 {vr(vG + 4, 4)}, v{t1}, s[44:45] offset:{B_P4 + 64} sc1",
            f"global_load_dwordx4 {vr(vG + 8, 4)}, v{t1}, s[44:45] offset:{B_P4 + 256} sc1",
            f"global_load_dwordx4 {vr(vG + 12, 4)}, v{t1}, s[44:45] offset:{B_P4 + 320} sc1"],
           [vG + 16, vG, vG + 4, vG + 8, vG + 12], vAcc, True)
    A.stamp(11)
    A(f"v_mov_b32 v{vZ}, 0")
    A(f"v_mov_b32 v{vZ + 1}, 0")
    A(f"v_mov_b32 v{vZ + 2}, 0")
    A(f"v_mov_b32 v{vZ + 3}, 0")
    k.tag4(vZ)
    A("s_lshl_b32 s8, s3, 4")
    A(f"v_mov_b32 v{t2}, s8")
    A("s_mov_b64 exec, 1")
    A(f"global_store_dwordx4 v{t2}, {vr(vZ, 4)}, s[42:43] offset:{B_ACK}")
    A("s_mov_b64 exec, -1")

    def allred8(regs):
        for md in ("quad_perm:[1,0,3,2]", "quad_perm:[2,3,0,1]", "row_half_mirror"):
            for r_ in regs:
                A(f"v_add_f32_dpp v{r_}, v{r_}, v{r_} {md} row_mask:0xf bank_mask:0xf")
    sq, sm = vG + 16, vG + 17
    allred8([sq, sm])
    A(f"s_mov_b32 s8, {INV512:#x}")
    A(f"v_mul_f32 v{sm}, s8, v{sm}")
    A(f"v_mul_f32 v{sq}, s8, v{sq}")
    A(f"v_fma_f32 v{sq}, -v{sm}, v{sm}, v{sq}")
    A(f"v_max_f32 v{sq}, 0, v{sq}")
    k.round_bf16(sm, sm)
    k.round_bf16(sq, sq)
    A(f"v_add_f32 v{sq}, {EPS:#x}, v{sq}")
    k.round_bf16(sq, sq)
    A(f"v_sqrt_f32 v{sq}, v{sq}")
    k.round_bf16(sq, sq)
    A(f"v_rcp_f32 v{sq}, v{sq}")
    for i in range(8):
        A(f"v_fma_f32 v{vG + i}, -v{sm}, v{vG + 8 + i}, v{vG + i}")
    allred8(list(range(vG, vG + 8)))
    for i in range(8):
        A(f"v_mul_f32 v{vG + i}, v{sq}, v{vG + i}")
    for i in range(4):
        k.round_bf16_pair(vG + 2 * i, vG + 2 * i + 1, vG + 2 * i, vG + 2 * i + 1, t2)
    for i in range(8):
        A(f"v_mov_b32_dpp v{vG + 8 + i}, v{vG + i} row_ror:8 row_mask:0xf bank_mask:0xf")
    A(f"s_mov_b32 s8, {LOG2E | 0x80000000:#x}")
    for i in range(8):
        A(f"v_mul_f32 v{vF + i}, s8, v{vG + i}")
    for i in range(8):
        A(f"v_exp_f32 v{vF + i}, v{vF + i}")
    for i in range(8):
        A(f"v_add_f32 v{vF + i}, 1.0, v{vF + i}")
    for i in range(8):
        A(f"v_rcp_f32 v{vF + i}, v{vF + i}")
    for i in range(8):
        A(f"v_mul_f32 v{vF + i}, v{vF + i}, v{vG + i}")
    for i in range(4):
        k.round_bf16_pair(vF + 2 * i, vF + 2 * i + 1, vF + 2 * i, vF + 2 * i + 1, t2)
    for i in range(8):
        A(f"v_mul_f32 v{vF + i}, v{vF + i}, v{vG + 8 + i}")
    for i in range(4):
        A(f"v_cvt_pk_bf16_f32 v{vB + i}, v{vF + 2 * i}, v{vF + 2 * i + 1}")
    A("s_waitcnt lgkmcnt(0)")
    for u in range(2):
        A(f"v_mfma_f32_16x16x32_bf16 {vr(vD + 4 * u, 4)}, {vr(vW + 4 * u, 4)}, {vr(vB, 4)}, 0")
    k.tag4(vD)
    k.tag4(vD + 4)
    A("s_mov_b64 exec, s[68:69]")
    A(f"global_store_dwordx4 v{vP5a}, {vr(vD, 4)}, s[54:55] sc1")
    A(f"global_store_dwordx4 v{vP5a}, {vr(vD + 4, 4)}, s[54:55] offset:64 sc1")
    A("s_mov_b64 exec, -1")
    A("s_cmp_lg_u32 s3, 0")
    A("s_cbranch_scc1 L_stamp_end")
    A("s_lshr_b32 s8, s5, 3")
    A("s_lshl_b32 s8, s8, 13")
    A(f"v_lshrrev_b32 v{t0}, 3, v{vLane}")
    A(f"v_and_b32 v{t0}, 3, v{t0}")
    A(f"v_lshlrev_b32 v{t0}, 15, v{t0}")
    A(f"v_bfe_u32 v{t1}, v{vLane}, 2, 1")
    A(f"v_lshl_add_u32 v{t0}, v{t1}, 12, v{t0}")
    A(f"v_and_b32 v{t1}, 3, v{vLane}")
    A(f"v_lshl_add_u32 v{t0}, v{t1}, 4, v{t0}")
    A(f"v_add_u32 v{t0}, s8, v{t0}")
    A("s_mov_b32 s61, 0")
    k.label("L_ack")
    A(f"global_load_dwordx4 {vr(vG, 4)}, v{t0}, s[40:41] offset:{B_ACK} sc1")
    A("s_waitcnt vmcnt(0)")
    k.check(vAcc, [vG])
    A(f"v_cmp_ne_u32 vcc, 0, v{vAcc}")
    A("s_cbranch_vccz L_stamp_end")
    A("s_add_u32 s61, s61, 1")
    A(f"s_cmp_lt_u32 s61, {POLL_LIMIT}")
    A("s_cbranch_scc1 L_ack")
    A("s_call_b64 s[64:65], L_panic")
    A("s_branch L_stamp_end")

    k.label("L_final")
    A("s_lshr_b32 s8, s5, 2")
    A("s_lshl_b32 s8, s8, 13")
    A("s_and_b32 s9, s5, 3")
    A("s_lshl_b32 s9, s9, 6")
    A("s_add_u32 s8, s8, s9")
    A("s_lshl_b32 s9, s3, 4")
    A("s_add_u32 s8, s8, s9")
    A(f"v_lshlrev_b32 v{t1}, 8, v{vLane}")
    A(f"v_add_u32 v{t1}, s8, v{t1}")
    for i in range(8):
        A(f"v_mov_b32 v{vG + i}, 0")
    A(f"v_lshlrev_b32 v{vF}, 16, v{vXR}")
    A(f"v_and_b32 v{vF + 1}, 0xffff0000, v{vXR}")
    A(f"v_lshlrev_b32 v{vF + 2}, 16, v{vXR + 1}")
    A(f"v_and_b32 v{vF + 3}, 0xffff0000, v{vXR + 1}")
    A("s_mov_b32 exec_hi, 0")
    k.poll([f"global_load_dwordx4 {vr(vG, 4)}, v{t1}, s[52:53] sc1"], [vG], vAcc, False)
    A("s_mov_b64 exec, -1")
    A.stamp(9)
    k.reduce64_to_lane63(list(range(vG, vG + 4)))
    for i in range(2):
        k.round_bf16_pair(vG + 2 * i, vG + 2 * i + 1, vG + 2 * i, vG + 2 * i + 1, t0)
    for i in range(4):
        A(f"v_add_f32 v{vF + i}, v{vG + i}, v{vF + i}")
    for i in range(2):
        k.round_bf16_pair(vF + 2 * i, vF + 2 * i + 1, vF + 2 * i, vF + 2 * i + 1, t0)
    A("s_lshr_b32 s8, s5, 3")
    A("s_mul_i32 s8, s8, 28672")
    A("s_and_b32 s9, s5, 7")
    A("s_lshl_b32 s9, s9, 6")
    A("s_add_u32 s8, s8, s9")
    A("s_lshl_b32 s9, s3, 4")
    A("s_add_u32 s8, s8, s9")
    A(f"v_lshlrev_b32 v{t1}, 9, v{vLane}")
    A(f"v_add_u32 v{t1}, s8, v{t1}")
    A("s_lshl_b32 s8, s5, 5")
    A("s_lshl_b32 s9, s3, 3")
    A("s_add_u32 s8, s8, s9")
    A(f"v_mov_b32 v{t2}, s8")
    A("s_mov_b32 s8, -1")
    A("s_mov_b32 s9, 0x00ffffff")
    A("s_mov_b64 exec, s[8:9]")
    k.poll([f"global_load_dwordx4 {vr(vG + 4, 4)}, v{t1}, s[54:55] sc1"], [vG + 4], vAcc, False)
    A("s_mov_b64 exec, -1")
    A.stamp(11)
    k.reduce64_to_lane63(list(range(vG + 4, vG + 8)))
    for i in range(2):
        k.round_bf16_pair(vG + 4 + 2 * i, vG + 5 + 2 * i, vG + 4 + 2 * i, vG + 5 + 2 * i, t0)
    for i in range(4):
        A(f"v_add_f32 v{vF + i}, v{vG + 4 + i}, v{vF + i}")
    for i in range(2):
        A(f"v_cvt_pk_bf16_f32 v{vX + i}, v{vF + 2 * i}, v{vF + 2 * i + 1}")
    A("s_mov_b32 s8, 0")
    A("s_mov_b32 s9, 0x80000000")
    A("s_mov_b64 exec, s[8:9]")
    A(f"global_store_dwordx2 v{t2}, {vr(vX, 2)}, s[34:35]")
    A("s_or_b32 s8, s5, s3")
    A("s_cmp_lg_u32 s8, 0")
    A("s_cbranch_scc1 L_stamp_end0")
    A(f"v_mov_b32 v{t0}, 0")
    A(f"v_mov_b32 v{t1}, s13")
    A(f"global_store_dword v{t0}, v{t1}, s[38:39]")
    k.label("L_stamp_end0")
    A("s_mov_b64 exec, -1")
    k.label("L_stamp_end")
    if dbgtime:
        A("s_memrealtime s[98:99]")
        A("s_waitcnt lgkmcnt(0)")
        A("s_not_b32 s96, s96")
        A(f"v_mov_b32 v{t0}, 0")
        A(f"v_mov_b32 v{t1}, s96")
        A(f"v_mov_b32 v{t2}, s98")
        A("s_mov_b64 exec, 1")
        A(f"global_atomic_umax v{t0}, v{t1}, s[36:37]")
        A(f"global_atomic_umax v{t0}, v{t2}, s[36:37] offset:4")
    if stamps:
        A("s_memrealtime s[76:77]")
        A("s_waitcnt lgkmcnt(0)")
        A("s_lshl_b32 s8, s2, 3")
        A("s_add_u32 s8, s8, s3")
        A("s_lshl_b32 s8, s8, 6")
        A(f"s_add_u32 s8, s8, {WS_STAMP}")
        A(f"v_mov_b32 v{t0}, s8")
        for i in range(12):
            A(f"v_mov_b32 v{vG + i}, s{78 + 2 * i}")
        A(f"v_mov_b32 v{vG + 12}, s76")
        A("s_mov_b64 exec, 1")
        for q in range(4):
            A(f"global_store_dwordx4 v{t0}, {vr(vG + 4 * q, 4)}, s[38:39] offset:{q * 16}")
    A("s_endpgm")

    vPT = V("panic", 16)
    k.label("L_panic")
    A("s_mov_b64 s[66:67], exec")
    A("s_mov_b64 exec, -1")
    for i in range(4):
        A(f"global_load_dwordx4 {vr(vPT + 4 * i, 4)}, v{vL16}, s[42:43] offset:{i * 1024} sc1")
    A("s_waitcnt vmcnt(0)")
    for i in range(4):
        A(f"global_store_dwordx4 v{vL16}, {vr(vPT + 4 * i, 4)}, s[48:49] offset:{i * 1024} sc1")
    A("s_waitcnt vmcnt(0)")
    A("s_xor_b32 s50, s40, s46")
    A("s_xor_b32 s51, s41, s47")
    A("s_add_u32 s62, s62, 1")
    A(f"s_cmp_ge_u32 s62, {PANIC_MAX}")
    A("s_cbranch_scc1 L_end")
    A("s_mov_b64 exec, s[66:67]")
    A("s_setpc_b64 s[64:65]")

    k.label("L_loader")
    a0, a1, a2, a3, b0, b1, cwo, cw13, d0, d1 = [V(f"ld{i}") for i in range(10)]
    A(f"v_xor_b32 v{t0}, v{vR}, v{vQd}")
    A(f"v_lshlrev_b32 v{t1}, 8, v{vQd}")
    A(f"v_lshl_add_u32 v{a0}, v{t0}, 4, v{t1}")
    A(f"v_xor_b32 v{a1}, 64, v{a0}")
    A(f"v_xor_b32 v{a2}, 128, v{a0}")
    A(f"v_xor_b32 v{a3}, 192, v{a0}")
    A(f"v_lshlrev_b32 v{t0}, 1, v{vQd}")
    A(f"v_xor_b32 v{t0}, v{vR}, v{t0}")
    A(f"v_lshl_add_u32 v{b0}, v{t0}, 4, v{t1}")
    A(f"v_xor_b32 v{b1}, 128, v{b0}")
    A(f"v_lshlrev_b32 v{t1}, 10, v{vQd}")
    A(f"v_lshl_add_u32 v{d0}, v{t0}, 4, v{t1}")
    A(f"v_xor_b32 v{d1}, 128, v{d0}")
    A(f"v_and_b32 v{t0}, 7, v{vLane}")
    A(f"v_lshlrev_b32 v{t1}, 1, v{vQd}")
    A(f"v_xor_b32 v{t0}, v{t0}, v{t1}")
    A(f"v_lshlrev_b32 v{t0}, 4, v{t0}")
    A(f"v_lshrrev_b32 v{t1}, 3, v{vLane}")
    A(f"v_lshl_add_u32 v{cwo}, v{t1}, 10, v{t0}")
    A(f"v_mul_u32_u24 v{cw13}, 3584, v{t1}")
    A(f"v_add_u32 v{cw13}, v{cw13}, v{t0}")
    A("s_lshl_b32 s6, s4, 24")
    A("s_lshl_b32 s7, s5, 15")
    A("s_add_u32 s6, s6, s7")
    A(f"s_add_u32 s6, s6, {61440 * 256}")
    A("s_add_u32 s40, s18, s6"); A("s_addc_u32 s41, s19, 0")
    A("s_add_u32 s42, s20, s6"); A("s_addc_u32 s43, s21, 0")
    A("s_lshl_b32 s6, s4, 2"); A("s_lshr_b32 s7, s5, 3"); A("s_add_u32 s6, s6, s7")
    A("s_and_b32 s8, s5, 7")
    A("s_lshl_b32 s9, s6, 17"); A("s_lshl_b32 s10, s8, 7"); A("s_add_u32 s9, s9, s10")
    A("s_add_u32 s44, s24, s9"); A("s_addc_u32 s45, s25, 0")
    A(f"s_mul_i32 s9, s8, {64 * 3584}"); A("s_lshl_b32 s10, s6, 7"); A("s_add_u32 s9, s9, s10")
    A("s_add_u32 s46, s28, s9"); A("s_addc_u32 s47, s29, 0")
    A("s_add_u32 s48, s30, s9"); A("s_addc_u32 s49, s31, 0")
    A("s_lshl_b32 s9, s4, 18"); A("s_lshl_b32 s10, s8, 15"); A("s_add_u32 s9, s9, s10")
    A("s_lshl_b32 s10, s7, 8"); A("s_add_u32 s9, s9, s10")
    A("s_add_u32 s50, s32, s9"); A("s_addc_u32 s51, s33, 0")

    def dma_list(full):
        ops = []
        for i in range(32):
            pre = []
            if i % 4 == 0:
                pre += [f"s_mov_b32 m0, {KL + i * 1024}"]
                if i:
                    pre += ["s_add_u32 s40, s40, 4096", "s_addc_u32 s41, s41, 0"]
            ops.append(pre + [f"global_load_lds_dwordx4 v{(a0, a1, a2, a3)[i & 3]}, s[40:41] offset:{(i & 3) * 1024} nt"])
        for i in range(32):
            pre = []
            if i % 4 == 0:
                pre += [f"s_mov_b32 m0, {VL + i * 1024}"]
                if i:
                    pre += ["s_add_u32 s42, s42, 4096", "s_addc_u32 s43, s43, 0"]
            ops.append(pre + [f"global_load_lds_dwordx4 v{(b0, b1)[i & 1]}, s[42:43] offset:{(i & 3) * 1024} nt"])
        for i in range(16):
            pre = [f"s_mov_b32 m0, {WOL + i * 1024}"]
            if i:
                pre += ["s_add_u32 s44, s44, 8192", "s_addc_u32 s45, s45, 0"]
            ops.append(pre + [f"global_load_lds_dwordx4 v{cwo}, s[44:45] nt"])
        flags = [(31, F_K), (63, F_V), (79, F_WO)]
        if full:
            for base, sreg in ((W1L, 46), (W3L, 48)):
                for i in range(8):
                    pre = [f"s_mov_b32 m0, {base + i * 1024}"]
                    if i:
                        pre += [f"s_add_u32 s{sreg}, s{sreg}, {8 * 3584}", f"s_addc_u32 s{sreg + 1}, s{sreg + 1}, 0"]
                    ops.append(pre + [f"global_load_lds_dwordx4 v{cw13}, s[{sreg}:{sreg + 1}] nt"])
            for i in range(8):
                pre = [f"s_mov_b32 m0, {W2L + i * 1024}"]
                if i:
                    pre += ["s_add_u32 s50, s50, 4096", "s_addc_u32 s51, s51, 0"]
                ops.append(pre + [f"global_load_lds_dwordx4 v{(d0, d1)[i & 1]}, s[50:51] nt"])
            flags += [(95, F_W13), (103, F_W2)]
        return ops, flags

    def emit_dma(ops, flags, start, stop, final):
        D = k.D
        for n in range(start, stop):
            if n >= D:
                A(f"s_waitcnt vmcnt({D - 1})")
                for (last, f) in flags:
                    if last == n - D:
                        k.lds_signal(f)
            for s_ in ops[n]:
                A(s_)
        if final:
            N = len(ops)
            for (last, f) in flags:
                if last > N - 1 - D:
                    A(f"s_waitcnt vmcnt({N - 1 - last})")
                    k.lds_signal(f)

    opsF, flagsF = dma_list(True)
    opsS, flagsS = dma_list(False)
    emit_dma(opsF, flagsF, 0, 80, False)
    A("s_cmp_eq_u32 s4, 7")
    A("s_cbranch_scc1 L_loader_short")
    emit_dma(opsF, flagsF, 80, len(opsF), True)
    A("s_endpgm")
    k.label("L_loader_short")
    emit_dma(opsS, flagsS, 80, 80, True)
    k.label("L_end")
    A("s_endpgm")

    body = list(k.L)
    body = fix_hazards(body)

    nv = (ra.next + 7) // 8 * 8
    tail = []
    tail.append('.section .rodata,"a"')
    tail.append(".p2align 6")
    tail.append(f".amdhsa_kernel {NAME}")
    tail.append(f"  .amdhsa_next_free_vgpr {nv}")
    tail.append("  .amdhsa_next_free_sgpr 102")
    tail.append(f"  .amdhsa_accum_offset {nv}")
    tail.append("  .amdhsa_group_segment_fixed_size 0")
    tail.append("  .amdhsa_kernarg_size 96")
    tail.append("  .amdhsa_user_sgpr_count 2")
    tail.append("  .amdhsa_user_sgpr_kernarg_segment_ptr 1")
    tail.append("  .amdhsa_system_sgpr_workgroup_id_x 1")
    tail.append(".end_amdhsa_kernel")
    return "\n".join(hdr + body + tail) + "\n"


if __name__ == "__main__":
    import argparse
    ap = argparse.ArgumentParser()
    ap.add_argument("-o", default="sequential_preLN__sliding_block_cached__glu_gated_swiglu__decode.s")
    ap.add_argument("--stamps", action="store_true")
    ap.add_argument("-D", type=int, default=32)
    ap.add_argument("--dbgtime", action="store_true")
    a = ap.parse_args()
    open(a.o, "w").write(gen(a.stamps, a.D, a.dbgtime))
```

```python
import sys, os
sys.path.insert(0, os.path.dirname(os.path.abspath(__file__)))
from asmlib import fix_hazards, RegAlloc

NAME = "sequential_preLN__sliding_block_cached__glu_gated_swiglu__decode_kernel"

KL = 0
VL = 32768
WQL = 65536
WOL = 81920
W1L = 98304
W3L = 106496
W2L = 114688
XN = 122880
QF = 126976
PF = 131072
MX = 135168
LS = 136192
OF = 137216
HF = 137472
ONES = 137600
FLAGS = 137728
LDS_BYTES = 138240
F_WQ, F_Q, F_M, F_P, F_O, F_H, F_K, F_V, F_WO, F_W13, F_W2 = [4 * i for i in range(11)]

WS_STAMP = 0x10000
WS_A = 0x100000
WS_B = 0x200000
WS_P3 = 0x300000
WS_P5 = 0x320000
B_P1 = 0
B_ML = 256
B_ST = 384
B_ACK = 512
B_P4 = 1024
B_P2 = 2048

LOG2E = 0x3FB8AA3B
SCALE = 0x3DB504F3
EPS = 0x3727C5AC
INV512 = 0x3B000000

POLL_LIMIT = 512
PANIC_MAX = 4000
LDS_SPIN_MAX = 1 << 24


def vr(b, n):
    return f"v[{b}:{b + n - 1}]" if n > 1 else f"v{b}"


def sr(b, n=2):
    return f"s[{b}:{b + n - 1}]"


class K:
    def __init__(self, stamps=False, D=32):
        self.L = []
        self.stamps = stamps
        self.D = D
        self.uid = 0
        self.nstamp = 0

    def __call__(self, s):
        self.L.append("    " + s)

    def label(self, s):
        self.L.append(s + ":")

    def newlabel(self, p):
        self.uid += 1
        return f"L_{p}_{self.uid}"

    def stamp(self, idx):
        if self.stamps:
            self(f"s_memrealtime {sr(78 + 2 * idx)}")

    def lds_wait(self, off, target, vtmp, extra_reads=()):
        lp = self.newlabel("lw")
        ok = self.newlabel("lwok")
        self(f"s_mov_b32 s63, {LDS_SPIN_MAX}")
        self.label(lp)
        self(f"ds_read_b32 v{vtmp}, v{self.vFlag} offset:{off}")
        for r in extra_reads:
            self(r)
        self("s_waitcnt lgkmcnt(0)")
        self(f"v_cmp_le_u32 vcc, {target}, v{vtmp}")
        self(f"s_cbranch_vccnz {ok}")
        self("s_sub_u32 s63, s63, 1")
        self("s_cmp_eq_u32 s63, 0")
        self(f"s_cbranch_scc0 {lp}")
        self("s_endpgm")
        self.label(ok)

    def lds_signal(self, off):
        self("s_mov_b64 exec, 1")
        self(f"ds_add_u32 v{self.vFlag}, v{self.vOne} offset:{off}")
        self("s_mov_b64 exec, -1")

    def tag4(self, b):
        for i in range(4):
            self(f"v_perm_b32 v{b + i}, v{b + i}, s56, v{self.vSel + i}")

    def check(self, acc, grans):
        first = True
        for b in grans:
            for i in range(4):
                self(f"v_msad_u8 v{acc}, v{b + i}, s{57 + i}, {'0' if first else 'v%d' % acc}")
                first = False

    def poll(self, loads, grans, acc, toggle):
        lp = self.newlabel("poll")
        ok = self.newlabel("pollok")
        nx = self.newlabel("pollnx")
        self("s_mov_b32 s61, 0")
        self.label(lp)
        for l in loads:
            self(l)
        self("s_waitcnt vmcnt(0)")
        self.check(acc, grans)
        self(f"v_cmp_ne_u32 vcc, 0, v{acc}")
        self(f"s_cbranch_vccz {ok}")
        self("s_add_u32 s61, s61, 1")
        self(f"s_and_b32 s6, s61, {POLL_LIMIT - 1}")
        self(f"s_cbranch_scc1 {nx}")
        self("s_call_b64 s[64:65], L_panic")
        self.label(nx)
        if toggle:
            self("s_xor_b32 s44, s44, s50")
            self("s_xor_b32 s45, s45, s51")
        self(f"s_branch {lp}")
        self.label(ok)

    def allreduce16(self, op, regs, steps=(1, 2, 4, 8)):
        for st in steps:
            for r in regs:
                self(f"{op}_dpp v{r}, v{r}, v{r} row_ror:{st} row_mask:0xf bank_mask:0xf")

    def reduce64_to_lane63(self, regs):
        self.allreduce16("v_add_f32", regs)
        for r in regs:
            self(f"v_add_f32_dpp v{r}, v{r}, v{r} row_bcast:15 row_mask:0xa bank_mask:0xf")
        for r in regs:
            self(f"v_add_f32_dpp v{r}, v{r}, v{r} row_bcast:31 row_mask:0xc bank_mask:0xf")

    def round_bf16(self, dst, src):
        self(f"v_cvt_pk_bf16_f32 v{dst}, v{src}, v{src}")
        self(f"v_and_b32 v{dst}, 0xffff0000, v{dst}")

    def round_bf16_pair(self, d0, d1, s0, s1, tmp):
        self(f"v_cvt_pk_bf16_f32 v{tmp}, v{s0}, v{s1}")
        self(f"v_lshlrev_b32 v{d0}, 16, v{tmp}")
        self(f"v_and_b32 v{d1}, 0xffff0000, v{tmp}")


def gen(stamps=False, D=32, dbgtime=False):
    k = K(stamps, D)
    A = k
    ra = RegAlloc(1, 256)
    V = ra.alloc

    hdr = []
    hdr.append(f"; @launch grid=(256,1,1) block=(320,1,1) lds={LDS_BYTES}")
    hdr.append('.amdgcn_target "amdgcn-amd-amdhsa--gfx950"')
    hdr.append(".text")
    hdr.append(f".globl {NAME}")
    hdr.append(".p2align 8")
    hdr.append(f".type {NAME},@function")
    hdr.append(f"{NAME}:")

    vLane = V("lane"); vR = V("r"); vQd = V("qd"); vL16 = V("l16")
    k.vFlag = V("flag"); k.vOne = V("one")
    t0 = V("t0"); t1 = V("t1"); t2 = V("t2"); t3 = V("t3"); t4 = V("t4"); t5 = V("t5"); t6 = V("t6"); t7 = V("t7")

    A.stamp(0)
    if dbgtime:
        A("s_memrealtime s[96:97]")
    A("s_cmp_ge_u32 s2, 256")
    A("s_cbranch_scc1 L_end")
    A("s_load_dwordx16 s[16:31], s[0:1], 0")
    A("s_load_dwordx8 s[32:39], s[0:1], 64")
    A(f"v_lshrrev_b32 v{t0}, 6, v0")
    A(f"v_and_b32 v{vLane}, 63, v0")
    A(f"v_readfirstlane_b32 s3, v{t0}")
    A("s_and_b32 s4, s2, 7")
    A("s_lshr_b32 s5, s2, 3")
    A(f"v_and_b32 v{vR}, 15, v{vLane}")
    A(f"v_lshrrev_b32 v{vQd}, 4, v{vLane}")
    A(f"v_lshlrev_b32 v{vL16}, 4, v{vLane}")
    A(f"v_mov_b32 v{k.vFlag}, {FLAGS}")
    A(f"v_mov_b32 v{k.vOne}, 1")
    A(f"v_lshlrev_b32 v{t0}, 2, v{vLane}")
    A(f"v_add_u32 v{t0}, {ONES}, v{t0}")
    A(f"v_mov_b32 v{t1}, 0")
    A(f"v_mov_b32 v{t2}, 0x3f803f80")
    A(f"ds_write_b32 v{t0}, v{t1} offset:{FLAGS - ONES}")
    A("s_mov_b32 exec_hi, 0")
    A(f"ds_write_b32 v{t0}, v{t2}")
    A("s_mov_b64 exec, -1")
    A("s_waitcnt lgkmcnt(0)")
    A("s_barrier")
    A("s_cmp_eq_u32 s3, 4")
    A("s_cbranch_scc1 L_loader")

    vX = V("x", 4)
    vXR = V("xr", 2)
    vZ = V("zero4", 4)
    k.vSel = V("sel", 4)
    A(f"global_load_dwordx4 {vr(vX, 4)}, v{vL16}, s[16:17]")
    A("s_load_dword s56, s[38:39], 0")
    A(f"v_bfe_u32 v{t0}, v{vLane}, 3, 2")
    A(f"v_lshrrev_b32 v{t1}, 5, v{vLane}")
    A(f"v_lshl_add_u32 v{t0}, v{t1}, 3, v{t0}")
    A(f"v_lshlrev_b32 v{t0}, 13, v{t0}")
    A(f"v_and_b32 v{t1}, 7, v{vLane}")
    A(f"v_lshlrev_b32 v{t2}, 1, v{vQd}")
    A(f"v_xor_b32 v{t1}, v{t1}, v{t2}")
    A(f"v_lshl_add_u32 v{t0}, v{t1}, 4, v{t0}")
    A("s_lshr_b32 s6, s5, 3")
    A("s_and_b32 s7, s5, 7")
    A("s_lshl_b32 s8, s6, 20")
    A("s_lshl_b32 s9, s3, 18")
    A("s_add_u32 s8, s8, s9")
    A("s_lshl_b32 s9, s4, 10")
    A("s_add_u32 s8, s8, s9")
    A("s_lshl_b32 s9, s7, 7")
    A("s_add_u32 s8, s8, s9")
    A("s_lshl_b32 s12, s3, 12")
    A(f"s_add_u32 s12, s12, {WQL}")
    for i, kb in enumerate((0, 16, 4, 20)):
        A(f"s_add_u32 s9, s8, {kb * 8192}")
        A("s_add_u32 s10, s22, s9")
        A("s_addc_u32 s11, s23, 0")
        A(f"s_add_u32 m0, s12, {i * 1024}")
        A(f"global_load_lds_dwordx4 v{t0}, s[10:11] nt")
    A("s_lshl_b32 s8, s7, 7")
    A("s_lshl_b32 s9, s3, 5")
    A("s_add_u32 s8, s8, s9")
    A(f"v_lshlrev_b32 v{t0}, 3, v{vQd}")
    A(f"v_add_u32 v{t0}, s8, v{t0}")
    A("s_lshl_b32 s8, s5, 5")
    A("s_lshl_b32 s9, s3, 3")
    A("s_add_u32 s8, s8, s9")
    A(f"v_mov_b32 v{t1}, s8")
    A("s_cmp_eq_u32 s4, 7")
    A("s_cselect_b64 s[10:11], -1, 0")
    A(f"v_cndmask_b32 v{t0}, v{t0}, v{t1}, s[10:11]")
    A(f"global_load_dwordx2 {vr(vXR, 2)}, v{t0}, s[16:17]")
    A("s_lshl_b32 s8, s4, 17")
    A(f"s_add_u32 s8, s8, {WS_A}")
    A("s_add_u32 s40, s38, s8")
    A("s_addc_u32 s41, s39, 0")
    A("s_lshl_b32 s9, s5, 12")
    A("s_add_u32 s42, s40, s9")
    A("s_addc_u32 s43, s41, 0")
    A("s_mov_b32 s44, s40")
    A("s_mov_b32 s45, s41")
    A(f"s_add_u32 s46, s40, {WS_B - WS_A}")
    A("s_addc_u32 s47, s41, 0")
    A(f"s_add_u32 s48, s42, {WS_B - WS_A}")
    A("s_addc_u32 s49, s43, 0")
    A("s_mov_b32 s50, 0")
    A("s_mov_b32 s51, 0")
    A(f"s_add_u32 s52, s38, {WS_P3}")
    A("s_addc_u32 s53, s39, 0")
    A(f"s_add_u32 s54, s38, {WS_P5}")
    A("s_addc_u32 s55, s39, 0")
    A("s_mov_b32 s62, 0")
    for i in range(4):
        A(f"v_mov_b32 v{vZ + i}, 0")
    A("s_lshl_b32 s8, s3, 10")
    A(f"v_add_u32 v{t0}, s8, v{vL16}")
    A(f"global_store_dwordx4 v{t0}, {vr(vZ, 4)}, s[42:43]")
    for i in range(4):
        A(f"v_mov_b32 v{k.vSel + i}, {0x07060500 + i:#x}")
    A(f"v_cmp_eq_u32 s[68:69], 0, v{vR}")
    A(f"v_cmp_gt_u32 s[70:71], 8, v{vR}")
    A(f"v_lshrrev_b32 v{t0}, 2, v{vR}")
    A(f"v_cmp_eq_u32 s[72:73], 1, v{t0}")
    A(f"v_cmp_gt_u32 s[74:75], 4, v{vR}")
    A(f"v_lshrrev_b32 v{t0}, 1, v{vR}")
    A(f"v_cmp_eq_u32 s[76:77], 1, v{t0}")
    vTR128 = V("tr128")
    vRR = V("rr"); vCC = V("cc")
    A(f"v_lshrrev_b32 v{vRR}, 2, v{vR}")
    A(f"v_and_b32 v{vCC}, 3, v{vLane}")
    A(f"v_lshl_add_u32 v{t0}, v{vQd}, 2, v{vRR}")
    A(f"v_lshlrev_b32 v{vTR128}, 7, v{t0}")
    A(f"v_bfe_u32 v{t1}, v{t0}, 1, 2")
    A(f"v_lshlrev_b32 v{t1}, 1, v{t1}")
    A(f"v_lshrrev_b32 v{t2}, 1, v{vCC}")
    A("s_lshl_b32 s8, s3, 1")
    A(f"v_add_u32 v{t2}, s8, v{t2}")
    A(f"v_xor_b32 v{t2}, v{t2}, v{t1}")
    A(f"v_lshl_add_u32 v{vTR128}, v{t2}, 4, v{vTR128}")
    A(f"v_and_b32 v{t2}, 1, v{vCC}")
    A(f"v_lshl_add_u32 v{vTR128}, v{t2}, 3, v{vTR128}")
    A(f"v_add_u32 v{vTR128}, {WQL}, v{vTR128}")
    vTR256 = V("tr256", 2)
    A(f"v_lshlrev_b32 v{vTR256}, 8, v{t0}")
    A(f"v_and_b32 v{t1}, 7, v{t0}")
    A(f"v_lshlrev_b32 v{t1}, 1, v{t1}")
    A(f"v_lshrrev_b32 v{t3}, 1, v{vCC}")
    A("s_lshl_b32 s8, s3, 2")
    A(f"v_add_u32 v{t3}, s8, v{t3}")
    A(f"v_xor_b32 v{t3}, v{t3}, v{t1}")
    A(f"v_lshl_add_u32 v{vTR256}, v{t3}, 4, v{vTR256}")
    A(f"v_lshl_add_u32 v{vTR256}, v{t2}, 3, v{vTR256}")
    A(f"v_xor_b32 v{vTR256 + 1}, 32, v{vTR256}")

    vF = V("f", 8)
    A("s_waitcnt vmcnt(6)")
    for i in range(4):
        A(f"v_lshlrev_b32 v{vF + 2 * i}, 16, v{vX + i}")
        A(f"v_and_b32 v{vF + 2 * i + 1}, 0xffff0000, v{vX + i}")
    A(f"v_add_f32 v{t0}, v{vF}, v{vF + 1}")
    for i in range(2, 8):
        A(f"v_add_f32 v{t0}, v{t0}, v{vF + i}")
    k.reduce64_to_lane63([t0])
    A(f"v_readlane_b32 s8, v{t0}, 63")
    A(f"v_mov_b32 v{t1}, {INV512:#x}")
    A(f"v_mul_f32 v{t1}, s8, v{t1}")
    A(f"v_sub_f32 v{t2}, v{vF}, v{t1}")
    A(f"v_mul_f32 v{t0}, v{t2}, v{t2}")
    for i in range(1, 8):
        A(f"v_sub_f32 v{t2}, v{vF + i}, v{t1}")
        A(f"v_fmac_f32 v{t0}, v{t2}, v{t2}")
    k.reduce64_to_lane63([t0])
    A(f"v_readlane_b32 s8, v{t0}, 63")
    A(f"v_mov_b32 v{t2}, {INV512:#x}")
    A(f"v_mul_f32 v{t2}, s8, v{t2}")
    k.round_bf16(t1, t1)
    k.round_bf16(t2, t2)
    A(f"v_add_f32 v{t2}, {EPS:#x}, v{t2}")
    k.round_bf16(t2, t2)
    A(f"v_sqrt_f32 v{t2}, v{t2}")
    k.round_bf16(t2, t2)
    A(f"v_rcp_f32 v{t2}, v{t2}")
    for i in range(8):
        A(f"v_sub_f32 v{vF + i}, v{vF + i}, v{t1}")
    for i in range(4):
        k.round_bf16_pair(vF + 2 * i, vF + 2 * i + 1, vF + 2 * i, vF + 2 * i + 1, t3)
    for i in range(8):
        A(f"v_mul_f32 v{vF + i}, v{vF + i}, v{t2}")
    for i in range(4):
        A(f"v_cvt_pk_bf16_f32 v{vX + i}, v{vF + 2 * i}, v{vF + 2 * i + 1}")
    A("s_lshl_b32 s8, s3, 10")
    A(f"s_add_u32 s8, s8, {XN}")
    A(f"v_add_u32 v{t0}, s8, v{vL16}")
    A(f"ds_write_b128 v{t0}, {vr(vX, 4)}")
    vB = V("bfrag", 16)
    A("s_lshl_b32 s9, s6, 8")
    A("s_add_u32 s8, s8, s9")
    A(f"v_lshlrev_b32 v{t0}, 4, v{vQd}")
    A(f"v_add_u32 v{t0}, s8, v{t0}")
    for ks in range(4):
        A(f"ds_read_b128 {vr(vB + 4 * ks, 4)}, v{t0} offset:{ks * 64}")
    A("s_waitcnt lgkmcnt(0)")
    A("s_add_u32 s56, s56, 1")
    A("s_and_b32 s56, s56, 0x0fffffff")
    A("s_mov_b32 s13, s56")
    for i in range(4):
        A(f"s_lshr_b32 s8, s13, {7 * i}")
        A("s_and_b32 s8, s8, 0x7f")
        A(f"s_or_b32 s{57 + i}, s8, 0x80")
    A("s_lshl_b32 s8, s58, 8")
    A("s_or_b32 s56, s57, s8")
    A("s_lshl_b32 s8, s59, 16")
    A("s_or_b32 s56, s56, s8")
    A("s_lshl_b32 s8, s60, 24")
    A("s_or_b32 s56, s56, s8")
    A.stamp(1)
    A("s_waitcnt vmcnt(2)")
    k.lds_signal(F_WQ)
    k.lds_wait(F_WQ, 4, t0)
    vW = V("wfrag", 16)
    for ks in range(4):
        for hf in range(2):
            A(f"ds_read_b64_tr_b16 {vr(vW + 4 * ks + 2 * hf, 2)}, v{vTR128} offset:{ks * 4096 + hf * 2048}")
    vD = V("d", 8)
    A("s_waitcnt lgkmcnt(0)")
    for ks in range(4):
        A(f"v_mfma_f32_16x16x32_bf16 {vr(vD, 4)}, {vr(vW + 4 * ks, 4)}, {vr(vB + 4 * ks, 4)}, {'0' if ks == 0 else vr(vD, 4)}")
    vPub = V("pubaddr")
    A("s_lshl_b32 s8, s3, 6")
    A(f"v_lshlrev_b32 v{vPub}, 4, v{vQd}")
    A(f"v_add_u32 v{vPub}, s8, v{vPub}")
    k.tag4(vD)
    A("s_mov_b64 exec, s[68:69]")
    A(f"global_store_dwordx4 v{vPub}, {vr(vD, 4)}, s[42:43] offset:{B_P1}")
    A("s_mov_b64 exec, -1")
    A.stamp(2)
    vG = V("g", 24)
    vAcc = V("acc")
    A(f"v_lshlrev_b32 v{t0}, 3, v{vRR}")
    A(f"v_and_b32 v{t1}, 3, v{vR}")
    A(f"v_lshl_add_u32 v{t0}, v{t1}, 1, v{t0}")
    A("s_lshr_b32 s8, s3, 1")
    A(f"v_add_u32 v{t0}, s8, v{t0}")
    A(f"v_lshlrev_b32 v{t0}, 12, v{t0}")
    A("s_and_b32 s8, s3, 1")
    A("s_lshl_b32 s8, s8, 7")
    A(f"v_lshl_add_u32 v{t1}, v{vQd}, 5, v{t0}")
    A(f"v_add_u32 v{t1}, s8, v{t1}")
    k.poll([f"global_load_dwordx4 {vr(vG, 4)}, v{t1}, s[44:45] offset:{B_P1} sc1",
            f"global_load_dwordx4 {vr(vG + 4, 4)}, v{t1}, s[44:45] offset:{B_P1 + 16} sc1"],
           [vG, vG + 4], vAcc, True)
    A.stamp(3)
    k.allreduce16("v_add_f32", list(range(vG, vG + 8)), steps=(4, 8))
    for i in range(4):
        A(f"v_cvt_pk_bf16_f32 v{vX + i}, v{vG + 2 * i}, v{vG + 2 * i + 1}")
    A("s_lshl_b32 s8, s3, 10")
    A(f"v_add_u32 v{t0}, s8, v{vL16}")
    vWL = V("wl16")
    A(f"v_mov_b32 v{vWL}, v{t0}")
    vL16Q = V("l16q")
    A(f"v_add_u32 v{vL16Q}, {QF}, v{vL16}")
    A(f"v_add_u32 v{t0}, {QF}, v{vWL}")
    A(f"ds_write_b128 v{t0}, {vr(vX, 4)}")
    k.lds_signal(F_Q)
    vKF = V("kfrag", 32)
    A("s_lshl_b32 s8, s3, 13")
    A(f"v_lshlrev_b32 v{t0}, 8, v{vR}")
    A(f"v_add_u32 v{t0}, s8, v{t0}")
    A(f"v_xor_b32 v{t1}, v{vQd}, v{vR}")
    A(f"v_lshl_add_u32 v{t0}, v{t1}, 4, v{t0}")
    A(f"v_xor_b32 v{t1}, 64, v{t0}")
    A(f"v_xor_b32 v{t2}, 128, v{t0}")
    A(f"v_xor_b32 v{t3}, 192, v{t0}")
    k.lds_wait(F_K, 1, t4)
    for kt in range(2):
        for s, a in enumerate((t0, t1, t2, t3)):
            A(f"ds_read_b128 {vr(vKF + 16 * kt + 4 * s, 4)}, v{a} offset:{KL + kt * 4096}")
    k.lds_wait(F_Q, 4, t4, [f"ds_read_b128 {vr(vB + 4 * s, 4)}, v{vL16Q} offset:{s * 1024}" for s in range(4)])
    for s in range(4):
        for kt in range(2):
            A(f"v_mfma_f32_16x16x32_bf16 {vr(vD + 4 * kt, 4)}, {vr(vKF + 16 * kt + 4 * s, 4)}, {vr(vB + 4 * s, 4)}, {'0' if s == 0 else vr(vD + 4 * kt, 4)}")
    A(f"s_mov_b32 s8, {SCALE:#x}")
    for i in range(4):
        k.round_bf16_pair(vF + 2 * i, vF + 2 * i + 1, vD + 2 * i, vD + 2 * i + 1, t0)
    for i in range(8):
        A(f"v_mul_f32 v{vF + i}, s8, v{vF + i}")
    for i in range(4):
        k.round_bf16_pair(vF + 2 * i, vF + 2 * i + 1, vF + 2 * i, vF + 2 * i + 1, t0)
    A(f"v_max3_f32 v{t0}, v{vF}, v{vF + 1}, v{vF + 2}")
    A(f"v_max3_f32 v{t0}, v{t0}, v{vF + 3}, v{vF + 4}")
    A(f"v_max3_f32 v{t0}, v{t0}, v{vF + 5}, v{vF + 6}")
    A(f"v_max_f32 v{t0}, v{t0}, v{vF + 7}")
    vMXw = V("mxw"); vMXr = V("mxr")
    A(f"v_lshlrev_b32 v{vMXr}, 6, v{vR}")
    A(f"v_add_u32 v{vMXr}, {MX}, v{vMXr}")
    A("s_lshl_b32 s8, s3, 4")
    A(f"v_lshl_add_u32 v{vMXw}, v{vQd}, 2, v{vMXr}")
    A(f"v_add_u32 v{vMXw}, s8, v{vMXw}")
    A(f"ds_write_b32 v{vMXw}, v{t0}")
    k.lds_signal(F_M)
    k.lds_wait(F_M, 4, t4, [f"ds_read_b128 {vr(vG + 4 * i, 4)}, v{vMXr} offset:{16 * i}" for i in range(4)])
    vM = V("m")
    A(f"v_max3_f32 v{vM}, v{vG}, v{vG + 1}, v{vG + 2}")
    for i in range(3, 15, 2):
        A(f"v_max3_f32 v{vM}, v{vM}, v{vG + i}, v{vG + i + 1}")
    A(f"v_max_f32 v{vM}, v{vM}, v{vG + 15}")
    A(f"s_mov_b32 s8, {LOG2E:#x}")
    for i in range(8):
        A(f"v_sub_f32 v{vF + i}, v{vF + i}, v{vM}")
    for i in range(8):
        A(f"v_mul_f32 v{vF + i}, s8, v{vF + i}")
    for i in range(8):
        A(f"v_exp_f32 v{vF + i}, v{vF + i}")
    A(f"v_add_f32 v{t0}, v{vF}, v{vF + 1}")
    for i in range(2, 8):
        A(f"v_add_f32 v{t0}, v{t0}, v{vF + i}")
    for i in range(4):
        A(f"v_cvt_pk_bf16_f32 v{vX + i}, v{vF + 2 * i}, v{vF + 2 * i + 1}")
    A(f"v_add_u32 v{t1}, {PF}, v{vWL}")
    A(f"ds_write_b128 v{t1}, {vr(vX, 4)}")
    A(f"ds_write_b32 v{vMXw}, v{t0} offset:{LS - MX}")
    k.lds_signal(F_P)
    k.lds_wait(F_P, 4, t4,
               [f"ds_read_b128 {vr(vB + 4 * s, 4)}, v{vL16Q} offset:{PF - QF + s * 1024}" for s in range(4)] +
               [f"ds_read_b128 {vr(vG + 4 * i, 4)}, v{vMXr} offset:{LS - MX + 16 * i}" for i in range(4)])
    vML = V("ml", 4)
    A(f"v_add_f32 v{vML + 1}, v{vG}, v{vG + 1}")
    for i in range(2, 16):
        A(f"v_add_f32 v{vML + 1}, v{vML + 1}, v{vG + i}")
    A(f"v_mov_b32 v{vML}, v{vM}")
    A(f"v_mov_b32 v{vML + 2}, 0")
    A(f"v_mov_b32 v{vML + 3}, 0")
    k.tag4(vML)
    skipml = k.newlabel("skipml")
    A("s_cmp_lg_u32 s3, 0")
    A(f"s_cbranch_scc1 {skipml}")
    A("s_mov_b64 exec, 15")
    A(f"global_store_dwordx4 v{vL16}, {vr(vML, 4)}, s[42:43] offset:{B_ML}")
    A("s_mov_b64 exec, -1")
    k.label(skipml)
    vP2a = V("p2a")
    A(f"v_and_b32 v{t0}, 3, v{vR}")
    A(f"v_lshlrev_b32 v{vP2a}, 9, v{t0}")
    A(f"v_lshl_add_u32 v{vP2a}, v{vRR}, 6, v{vP2a}")
    A(f"v_lshl_add_u32 v{vP2a}, v{vQd}, 4, v{vP2a}")
    A("s_lshl_b32 s8, s3, 7")
    A(f"v_add_u32 v{vP2a}, s8, v{vP2a}")
    vH2 = V("h2a", 4)
    A("s_lshr_b32 s9, s5, 3")
    A("s_lshl_b32 s10, s9, 9")
    A("s_add_u32 s10, s10, s8")
    A(f"v_lshlrev_b32 v{t0}, 12, v{vR}")
    A(f"v_lshl_add_u32 v{vH2}, v{vQd}, 4, v{t0}")
    A(f"v_add_u32 v{vH2}, s10, v{vH2}")
    A(f"v_add_u32 v{vH2 + 1}, 0x10000, v{vH2}")
    A("s_lshl_b32 s10, s9, 4")
    A(f"v_add_u32 v{vH2 + 2}, s10, v{t0}")
    A(f"v_add_u32 v{vH2 + 3}, 0x10000, v{vH2 + 2}")
    A.stamp(4)
    k.lds_wait(F_V, 1, t4)
    A.stamp(5)
    for ks in range(4):
        for t in range(2):
            for hf in range(2):
                A(f"ds_read_b64_tr_b16 {vr(vKF + 8 * ks + 4 * t + 2 * hf, 2)}, v{vTR256 + t} offset:{VL + ks * 8192 + hf * 4096}")
    for ks in range(4):
        A(f"s_waitcnt lgkmcnt({12 - 4 * ks})")
        for t in range(2):
            A(f"v_mfma_f32_16x16x32_bf16 {vr(vD + 4 * t, 4)}, {vr(vKF + 8 * ks + 4 * t, 4)}, {vr(vB + 4 * ks, 4)}, {'0' if ks == 0 else vr(vD + 4 * t, 4)}")
    for i in range(4):
        A(f"v_cndmask_b32 v{vD + i}, v{vD + i}, v{vD + 4 + i}, s[72:73]")
    k.tag4(vD)
    A("s_mov_b64 exec, s[70:71]")
    A(f"global_store_dwordx4 v{vP2a}, {vr(vD, 4)}, s[42:43] offset:{B_P2}")
    A("s_mov_b64 exec, -1")
    A.stamp(6)
    k.lds_wait(F_WO, 1, t4)
    for ks in range(4):
        for hf in range(2):
            A(f"ds_read_b64_tr_b16 {vr(vW + 4 * ks + 2 * hf, 2)}, v{vTR128} offset:{WOL - WQL + ks * 4096 + hf * 2048}")
    k.poll([f"global_load_dwordx4 {vr(vG + 16, 4)}, v{vH2 + 2}, s[44:45] offset:{B_ML} sc1",
            f"global_load_dwordx4 {vr(vG + 20, 4)}, v{vH2 + 3}, s[44:45] offset:{B_ML} sc1",
            f"global_load_dwordx4 {vr(vG, 4)}, v{vH2}, s[44:45] offset:{B_P2} sc1",
            f"global_load_dwordx4 {vr(vG + 4, 4)}, v{vH2}, s[44:45] offset:{B_P2 + 64} sc1",
            f"global_load_dwordx4 {vr(vG + 8, 4)}, v{vH2 + 1}, s[44:45] offset:{B_P2} sc1",
            f"global_load_dwordx4 {vr(vG + 12, 4)}, v{vH2 + 1}, s[44:45] offset:{B_P2 + 64} sc1"],
           [vG + 16, vG + 20, vG, vG + 4, vG + 8, vG + 12], vAcc, True)
    A.stamp(7)
    m1, l1, m2, l2 = vG + 16, vG + 17, vG + 20, vG + 21
    A(f"v_and_b32 v{m1}, 0xffffff00, v{m1}")
    A(f"v_and_b32 v{m2}, 0xffffff00, v{m2}")
    A(f"v_max_f32 v{t0}, v{m1}, v{m2}")
    k.allreduce16("v_max_f32", [t0])
    A(f"s_mov_b32 s8, {LOG2E:#x}")
    A(f"v_sub_f32 v{m1}, v{m1}, v{t0}")
    A(f"v_sub_f32 v{m2}, v{m2}, v{t0}")
    A(f"v_mul_f32 v{m1}, s8, v{m1}")
    A(f"v_mul_f32 v{m2}, s8, v{m2}")
    A(f"v_exp_f32 v{m1}, v{m1}")
    A(f"v_exp_f32 v{m2}, v{m2}")
    A(f"v_mul_f32 v{t1}, v{m1}, v{l1}")
    A(f"v_fmac_f32 v{t1}, v{m2}, v{l2}")
    for i in range(8):
        A(f"v_mul_f32 v{vG + i}, v{m1}, v{vG + i}")
    for i in range(8):
        A(f"v_fmac_f32 v{vG + i}, v{m2}, v{vG + 8 + i}")
    k.allreduce16("v_add_f32", [t1] + list(range(vG, vG + 8)))
    A(f"v_rcp_f32 v{t1}, v{t1}")
    for i in range(8):
        A(f"v_mul_f32 v{vG + i}, v{t1}, v{vG + i}")
    for i in range(4):
        A(f"v_cvt_pk_bf16_f32 v{vX + i}, v{vG + 2 * i}, v{vG + 2 * i + 1}")
    A(f"v_add_u32 v{t0}, {OF}, v{vPub}")
    A("s_mov_b64 exec, s[68:69]")
    A(f"ds_write_b128 v{t0}, {vr(vX, 4)}")
    k.lds_signal(F_O)
    vQ16 = V("q16")
    A(f"v_lshlrev_b32 v{vQ16}, 4, v{vQd}")
    A(f"v_add_u32 v{vQ16}, {OF}, v{vQ16}")
    k.lds_wait(F_O, 4, t4, [f"ds_read_b128 {vr(vB + 4 * ks, 4)}, v{vQ16} offset:{ks * 64}" for ks in range(4)])
    for ks in range(4):
        A(f"v_mfma_f32_16x16x32_bf16 {vr(vD, 4)}, {vr(vW + 4 * ks, 4)}, {vr(vB + 4 * ks, 4)}, {'0' if ks == 0 else vr(vD, 4)}")
    A("s_and_b32 s8, s5, 7")
    A("s_lshl_b32 s8, s8, 5")
    A("s_lshl_b32 s9, s4, 2")
    A("s_add_u32 s8, s8, s9")
    A("s_lshr_b32 s9, s5, 3")
    A("s_add_u32 s8, s8, s9")
    A("s_lshl_b32 s8, s8, 8")
    A(f"v_add_u32 v{t0}, s8, v{vPub}")
    k.tag4(vD)
    A("s_mov_b64 exec, s[68:69]")
    A(f"global_store_dwordx4 v{t0}, {vr(vD, 4)}, s[52:53] sc1")
    A("s_mov_b64 exec, -1")
    A.stamp(8)
    A("s_cmp_eq_u32 s4, 7")
    A("s_cbranch_scc1 L_final")

    vW13 = vKF
    k.lds_wait(F_W13, 1, t4)
    for mat, base in enumerate((W1L, W3L)):
        for ks in range(2):
            for hf in range(2):
                A(f"ds_read_b64_tr_b16 {vr(vW13 + 8 * mat + 4 * ks + 2 * hf, 2)}, v{vTR128} offset:{base - WQL + ks * 4096 + hf * 2048}")
    A("s_and_b32 s8, s5, 7")
    A("s_lshl_b32 s8, s8, 13")
    A(f"v_lshl_add_u32 v{t1}, v{vR}, 8, v{vPub}")
    A(f"v_add_u32 v{t1}, s8, v{t1}")
    A(f"v_add_u32 v{t2}, 4096, v{t1}")
    A(f"v_lshlrev_b32 v{vF}, 16, v{vXR}")
    A(f"v_and_b32 v{vF + 1}, 0xffff0000, v{vXR}")
    A(f"v_lshlrev_b32 v{vF + 2}, 16, v{vXR + 1}")
    A(f"v_and_b32 v{vF + 3}, 0xffff0000, v{vXR + 1}")
    vHFw = V("hfw"); vHFa = V("hfa"); vHFb = V("hfb")
    A("s_lshr_b32 s8, s3, 1")
    A("s_lshl_b32 s8, s8, 6")
    A("s_and_b32 s9, s3, 1")
    A("s_lshl_b32 s9, s9, 3")
    A("s_add_u32 s8, s8, s9")
    A(f"v_lshlrev_b32 v{vHFa}, 4, v{vQd}")
    A(f"v_add_u32 v{vHFa}, {HF}, v{vHFa}")
    A(f"v_add_u32 v{vHFw}, s8, v{vHFa}")
    A(f"v_and_b32 v{t0}, 1, v{vR}")
    A(f"v_lshl_add_u32 v{vHFb}, v{t0}, 7, v{vHFa}")
    vP4a = V("p4a")
    A(f"v_lshl_add_u32 v{vP4a}, v{vR}, 8, v{vPub}")
    k.poll([f"global_load_dwordx4 {vr(vG, 4)}, v{t1}, s[52:53] sc1",
            f"global_load_dwordx4 {vr(vG + 4, 4)}, v{t2}, s[52:53] sc1"],
           [vG, vG + 4], vAcc, False)
    A.stamp(9)
    for i in range(4):
        A(f"v_add_f32 v{vG + i}, v{vG + i}, v{vG + 4 + i}")
    k.allreduce16("v_add_f32", list(range(vG, vG + 4)))
    for i in range(2):
        k.round_bf16_pair(vG + 2 * i, vG + 2 * i + 1, vG + 2 * i, vG + 2 * i + 1, t0)
    for i in range(4):
        A(f"v_add_f32 v{vG + i}, v{vG + i}, v{vF + i}")
    for i in range(2):
        A(f"v_cvt_pk_bf16_f32 v{vX + i}, v{vG + 2 * i}, v{vG + 2 * i + 1}")
    A("s_mov_b64 exec, s[68:69]")
    A(f"ds_write_b64 v{vHFw}, {vr(vX, 2)}")
    k.lds_signal(F_H)
    k.lds_wait(F_H, 4, t4,
               [f"ds_read_b128 {vr(vB + 4 * ks, 4)}, v{vHFb} offset:{ks * 64}" for ks in range(2)] +
               [f"ds_read_b128 {vr(vB + 8 + 4 * ks, 4)}, v{vHFa} offset:{ks * 64}" for ks in range(2)])
    vS = V("stat", 4)
    for ks in range(2):
        A(f"v_mfma_f32_16x16x32_bf16 {vr(vD, 4)}, {vr(vW13 + 4 * ks, 4)}, {vr(vB + 4 * ks, 4)}, {'0' if ks == 0 else vr(vD, 4)}")
        A(f"v_mfma_f32_16x16x32_bf16 {vr(vD + 4, 4)}, {vr(vW13 + 8 + 4 * ks, 4)}, {vr(vB + 4 * ks, 4)}, {'0' if ks == 0 else vr(vD + 4, 4)}")
        A(f"v_mfma_f32_16x16x32_bf16 {vr(vS, 4)}, {vr(vB + 8 + 4 * ks, 4)}, {vr(vB + 4 * ks, 4)}, {'0' if ks == 0 else vr(vS, 4)}")
    for i in range(4):
        A(f"v_cndmask_b32 v{vD + i}, v{vD + i}, v{vD + 4 + i}, s[76:77]")
    k.tag4(vD)
    A("s_mov_b64 exec, s[74:75]")
    A(f"global_store_dwordx4 v{vP4a}, {vr(vD, 4)}, s[42:43] offset:{B_P4}")
    A("s_mov_b64 exec, -1")
    skipst = k.newlabel("skipst")
    A("s_cmp_lg_u32 s3, 0")
    A(f"s_cbranch_scc1 {skipst}")
    A(f"v_mov_b32_dpp v{vS + 1}, v{vS} row_shl:1 row_mask:0xf bank_mask:0xf")
    k.tag4(vS)
    A("s_mov_b64 exec, 1")
    A(f"global_store_dwordx4 v{vL16}, {vr(vS, 4)}, s[42:43] offset:{B_ST}")
    A("s_mov_b64 exec, -1")
    k.label(skipst)
    A.stamp(10)
    k.lds_wait(F_W2, 1, t4)
    A(f"v_add_u32 v{t5}, {W2L}, v{vTR256}")
    A(f"v_add_u32 v{t6}, {W2L}, v{vTR256 + 1}")
    for u in range(2):
        for hf in range(2):
            A(f"ds_read_b64_tr_b16 {vr(vW + 4 * u + 2 * hf, 2)}, v{t5 + u} offset:{hf * 4096}")
    A("s_and_b32 s8, s5, 7")
    A("s_lshr_b32 s9, s8, 1")
    A("s_lshl_b32 s9, s9, 15")
    A("s_and_b32 s10, s8, 1")
    A("s_lshl_b32 s10, s10, 7")
    A(f"v_and_b32 v{t0}, 7, v{vR}")
    A(f"v_lshlrev_b32 v{t0}, 12, v{t0}")
    A(f"v_add_u32 v{t0}, s9, v{t0}")
    A(f"v_lshrrev_b32 v{t1}, 3, v{vR}")
    A(f"v_lshl_add_u32 v{t1}, v{t1}, 9, v{t0}")
    A(f"v_lshl_add_u32 v{t1}, v{vQd}, 4, v{t1}")
    A(f"v_add_u32 v{t1}, s10, v{t1}")
    vP5a = V("p5a")
    A("s_lshr_b32 s9, s5, 3")
    A("s_mul_i32 s9, s9, 56")
    A("s_lshl_b32 s10, s4, 3")
    A("s_add_u32 s9, s9, s10")
    A("s_add_u32 s9, s9, s8")
    A("s_lshl_b32 s9, s9, 9")
    A("s_lshl_b32 s10, s3, 7")
    A("s_add_u32 s9, s9, s10")
    A(f"v_lshlrev_b32 v{vP5a}, 4, v{vQd}")
    A(f"v_add_u32 v{vP5a}, s9, v{vP5a}")
    k.poll([f"global_load_dwordx4 {vr(vG + 16, 4)}, v{t0}, s[44:45] offset:{B_ST} sc1",
            f"global_load_dwordx4 {vr(vG, 4)}, v{t1}, s[44:45] offset:{B_P4} sc1",
            f"global_load_dwordx4 {vr(vG + 4, 4)}, v{t1}, s[44:45] offset:{B_P4 + 64} sc1",
            f"global_load_dwordx4 {vr(vG + 8, 4)}, v{t1}, s[44:45] offset:{B_P4 + 256} sc1",
            f"global_load_dwordx4 {vr(vG + 12, 4)}, v{t1}, s[44:45] offset:{B_P4 + 320} sc1"],
           [vG + 16, vG, vG + 4, vG + 8, vG + 12], vAcc, True)
    A.stamp(11)
    A(f"v_mov_b32 v{vZ}, 0")
    A(f"v_mov_b32 v{vZ + 1}, 0")
    A(f"v_mov_b32 v{vZ + 2}, 0")
    A(f"v_mov_b32 v{vZ + 3}, 0")
    k.tag4(vZ)
    A("s_lshl_b32 s8, s3, 4")
    A(f"v_mov_b32 v{t2}, s8")
    A("s_mov_b64 exec, 1")
    A(f"global_store_dwordx4 v{t2}, {vr(vZ, 4)}, s[42:43] offset:{B_ACK}")
    A("s_mov_b64 exec, -1")

    def allred8(regs):
        for md in ("quad_perm:[1,0,3,2]", "quad_perm:[2,3,0,1]", "row_half_mirror"):
            for r_ in regs:
                A(f"v_add_f32_dpp v{r_}, v{r_}, v{r_} {md} row_mask:0xf bank_mask:0xf")
    sq, sm = vG + 16, vG + 17
    allred8([sq, sm])
    A(f"s_mov_b32 s8, {INV512:#x}")
    A(f"v_mul_f32 v{sm}, s8, v{sm}")
    A(f"v_mul_f32 v{sq}, s8, v{sq}")
    A(f"v_fma_f32 v{sq}, -v{sm}, v{sm}, v{sq}")
    A(f"v_max_f32 v{sq}, 0, v{sq}")
    k.round_bf16(sm, sm)
    k.round_bf16(sq, sq)
    A(f"v_add_f32 v{sq}, {EPS:#x}, v{sq}")
    k.round_bf16(sq, sq)
    A(f"v_sqrt_f32 v{sq}, v{sq}")
    k.round_bf16(sq, sq)
    A(f"v_rcp_f32 v{sq}, v{sq}")
    for i in range(8):
        A(f"v_fma_f32 v{vG + i}, -v{sm}, v{vG + 8 + i}, v{vG + i}")
    allred8(list(range(vG, vG + 8)))
    for i in range(8):
        A(f"v_mul_f32 v{vG + i}, v{sq}, v{vG + i}")
    for i in range(4):
        k.round_bf16_pair(vG + 2 * i, vG + 2 * i + 1, vG + 2 * i, vG + 2 * i + 1, t2)
    for i in range(8):
        A(f"v_mov_b32_dpp v{vG + 8 + i}, v{vG + i} row_ror:8 row_mask:0xf bank_mask:0xf")
    A(f"s_mov_b32 s8, {LOG2E | 0x80000000:#x}")
    for i in range(8):
        A(f"v_mul_f32 v{vF + i}, s8, v{vG + i}")
    for i in range(8):
        A(f"v_exp_f32 v{vF + i}, v{vF + i}")
    for i in range(8):
        A(f"v_add_f32 v{vF + i}, 1.0, v{vF + i}")
    for i in range(8):
        A(f"v_rcp_f32 v{vF + i}, v{vF + i}")
    for i in range(8):
        A(f"v_mul_f32 v{vF + i}, v{vF + i}, v{vG + i}")
    for i in range(4):
        k.round_bf16_pair(vF + 2 * i, vF + 2 * i + 1, vF + 2 * i, vF + 2 * i + 1, t2)
    for i in range(8):
        A(f"v_mul_f32 v{vF + i}, v{vF + i}, v{vG + 8 + i}")
    for i in range(4):
        A(f"v_cvt_pk_bf16_f32 v{vB + i}, v{vF + 2 * i}, v{vF + 2 * i + 1}")
    A("s_waitcnt lgkmcnt(0)")
    for u in range(2):
        A(f"v_mfma_f32_16x16x32_bf16 {vr(vD + 4 * u, 4)}, {vr(vW + 4 * u, 4)}, {vr(vB, 4)}, 0")
    k.tag4(vD)
    k.tag4(vD + 4)
    A("s_mov_b64 exec, s[68:69]")
    A(f"global_store_dwordx4 v{vP5a}, {vr(vD, 4)}, s[54:55] sc1")
    A(f"global_store_dwordx4 v{vP5a}, {vr(vD + 4, 4)}, s[54:55] offset:64 sc1")
    A("s_mov_b64 exec, -1")
    A("s_cmp_lg_u32 s3, 0")
    A("s_cbranch_scc1 L_stamp_end")
    A("s_lshr_b32 s8, s5, 3")
    A("s_lshl_b32 s8, s8, 13")
    A(f"v_lshrrev_b32 v{t0}, 3, v{vLane}")
    A(f"v_and_b32 v{t0}, 3, v{t0}")
    A(f"v_lshlrev_b32 v{t0}, 15, v{t0}")
    A(f"v_bfe_u32 v{t1}, v{vLane}, 2, 1")
    A(f"v_lshl_add_u32 v{t0}, v{t1}, 12, v{t0}")
    A(f"v_and_b32 v{t1}, 3, v{vLane}")
    A(f"v_lshl_add_u32 v{t0}, v{t1}, 4, v{t0}")
    A(f"v_add_u32 v{t0}, s8, v{t0}")
    A("s_mov_b32 s61, 0")
    k.label("L_ack")
    A(f"global_load_dwordx4 {vr(vG, 4)}, v{t0}, s[40:41] offset:{B_ACK} sc1")
    A("s_waitcnt vmcnt(0)")
    k.check(vAcc, [vG])
    A(f"v_cmp_ne_u32 vcc, 0, v{vAcc}")
    A("s_cbranch_vccz L_stamp_end")
    A("s_add_u32 s61, s61, 1")
    A(f"s_cmp_lt_u32 s61, {POLL_LIMIT}")
    A("s_cbranch_scc1 L_ack")
    A("s_call_b64 s[64:65], L_panic")
    A("s_branch L_stamp_end")

    k.label("L_final")
    A("s_lshr_b32 s8, s5, 2")
    A("s_lshl_b32 s8, s8, 13")
    A("s_and_b32 s9, s5, 3")
    A("s_lshl_b32 s9, s9, 6")
    A("s_add_u32 s8, s8, s9")
    A("s_lshl_b32 s9, s3, 4")
    A("s_add_u32 s8, s8, s9")
    A(f"v_lshlrev_b32 v{t1}, 8, v{vLane}")
    A(f"v_add_u32 v{t1}, s8, v{t1}")
    for i in range(8):
        A(f"v_mov_b32 v{vG + i}, 0")
    A(f"v_lshlrev_b32 v{vF}, 16, v{vXR}")
    A(f"v_and_b32 v{vF + 1}, 0xffff0000, v{vXR}")
    A(f"v_lshlrev_b32 v{vF + 2}, 16, v{vXR + 1}")
    A(f"v_and_b32 v{vF + 3}, 0xffff0000, v{vXR + 1}")
    A("s_mov_b32 exec_hi, 0")
    k.poll([f"global_load_dwordx4 {vr(vG, 4)}, v{t1}, s[52:53] sc1"], [vG], vAcc, False)
    A("s_mov_b64 exec, -1")
    A.stamp(9)
    k.reduce64_to_lane63(list(range(vG, vG + 4)))
    for i in range(2):
        k.round_bf16_pair(vG + 2 * i, vG + 2 * i + 1, vG + 2 * i, vG + 2 * i + 1, t0)
    for i in range(4):
        A(f"v_add_f32 v{vF + i}, v{vG + i}, v{vF + i}")
    for i in range(2):
        k.round_bf16_pair(vF + 2 * i, vF + 2 * i + 1, vF + 2 * i, vF + 2 * i + 1, t0)
    A("s_lshr_b32 s8, s5, 3")
    A("s_mul_i32 s8, s8, 28672")
    A("s_and_b32 s9, s5, 7")
    A("s_lshl_b32 s9, s9, 6")
    A("s_add_u32 s8, s8, s9")
    A("s_lshl_b32 s9, s3, 4")
    A("s_add_u32 s8, s8, s9")
    A(f"v_lshlrev_b32 v{t1}, 9, v{vLane}")
    A(f"v_add_u32 v{t1}, s8, v{t1}")
    A("s_lshl_b32 s8, s5, 5")
    A("s_lshl_b32 s9, s3, 3")
    A("s_add_u32 s8, s8, s9")
    A(f"v_mov_b32 v{t2}, s8")
    A("s_mov_b32 s8, -1")
    A("s_mov_b32 s9, 0x00ffffff")
    A("s_mov_b64 exec, s[8:9]")
    k.poll([f"global_load_dwordx4 {vr(vG + 4, 4)}, v{t1}, s[54:55] sc1"], [vG + 4], vAcc, False)
    A("s_mov_b64 exec, -1")
    A.stamp(11)
    k.reduce64_to_lane63(list(range(vG + 4, vG + 8)))
    for i in range(2):
        k.round_bf16_pair(vG + 4 + 2 * i, vG + 5 + 2 * i, vG + 4 + 2 * i, vG + 5 + 2 * i, t0)
    for i in range(4):
        A(f"v_add_f32 v{vF + i}, v{vG + 4 + i}, v{vF + i}")
    for i in range(2):
        A(f"v_cvt_pk_bf16_f32 v{vX + i}, v{vF + 2 * i}, v{vF + 2 * i + 1}")
    A("s_mov_b32 s8, 0")
    A("s_mov_b32 s9, 0x80000000")
    A("s_mov_b64 exec, s[8:9]")
    A(f"global_store_dwordx2 v{t2}, {vr(vX, 2)}, s[34:35]")
    A("s_or_b32 s8, s5, s3")
    A("s_cmp_lg_u32 s8, 0")
    A("s_cbranch_scc1 L_stamp_end0")
    A(f"v_mov_b32 v{t0}, 0")
    A(f"v_mov_b32 v{t1}, s13")
    A(f"global_store_dword v{t0}, v{t1}, s[38:39]")
    k.label("L_stamp_end0")
    A("s_mov_b64 exec, -1")
    k.label("L_stamp_end")
    if dbgtime:
        A("s_cmp_lg_u32 s4, 7")
        A("s_cbranch_scc1 L_end")
        A("s_and_b32 s8, s5, 3")
        A("s_or_b32 s8, s8, s3")
        A("s_cmp_lg_u32 s8, 0")
        A("s_cbranch_scc1 L_end")
        A("s_memrealtime s[98:99]")
        A("s_waitcnt lgkmcnt(0)")
        A("s_not_b32 s96, s96")
        A(f"v_mov_b32 v{t0}, 0")
        A(f"v_mov_b32 v{t1}, s96")
        A(f"v_mov_b32 v{t2}, s98")
        A("s_mov_b64 exec, 1")
        A(f"global_atomic_umax v{t0}, v{t1}, s[36:37]")
        A(f"global_atomic_umax v{t0}, v{t2}, s[36:37] offset:4")
    if stamps:
        A("s_memrealtime s[76:77]")
        A("s_waitcnt lgkmcnt(0)")
        A("s_lshl_b32 s8, s2, 3")
        A("s_add_u32 s8, s8, s3")
        A("s_lshl_b32 s8, s8, 6")
        A(f"s_add_u32 s8, s8, {WS_STAMP}")
        A(f"v_mov_b32 v{t0}, s8")
        for i in range(12):
            A(f"v_mov_b32 v{vG + i}, s{78 + 2 * i}")
        A(f"v_mov_b32 v{vG + 12}, s76")
        A("s_mov_b64 exec, 1")
        for q in range(4):
            A(f"global_store_dwordx4 v{t0}, {vr(vG + 4 * q, 4)}, s[38:39] offset:{q * 16}")
    A("s_endpgm")

    vPT = V("panic", 16)
    k.label("L_panic")
    A("s_mov_b64 s[66:67], exec")
    A("s_mov_b64 exec, -1")
    for i in range(4):
        A(f"global_load_dwordx4 {vr(vPT + 4 * i, 4)}, v{vL16}, s[42:43] offset:{i * 1024} sc1")
    A("s_waitcnt vmcnt(0)")
    for i in range(4):
        A(f"global_store_dwordx4 v{vL16}, {vr(vPT + 4 * i, 4)}, s[48:49] offset:{i * 1024} sc1")
    A("s_waitcnt vmcnt(0)")
    A("s_xor_b32 s50, s40, s46")
    A("s_xor_b32 s51, s41, s47")
    A("s_add_u32 s62, s62, 1")
    A(f"s_cmp_ge_u32 s62, {PANIC_MAX}")
    A("s_cbranch_scc1 L_end")
    A("s_mov_b64 exec, s[66:67]")
    A("s_setpc_b64 s[64:65]")

    k.label("L_loader")
    a0, a1, a2, a3, b0, b1, cwo, cw13, d0, d1 = [V(f"ld{i}") for i in range(10)]
    A(f"v_xor_b32 v{t0}, v{vR}, v{vQd}")
    A(f"v_lshlrev_b32 v{t1}, 8, v{vQd}")
    A(f"v_lshl_add_u32 v{a0}, v{t0}, 4, v{t1}")
    A(f"v_xor_b32 v{a1}, 64, v{a0}")
    A(f"v_xor_b32 v{a2}, 128, v{a0}")
    A(f"v_xor_b32 v{a3}, 192, v{a0}")
    A(f"v_lshlrev_b32 v{t0}, 1, v{vQd}")
    A(f"v_xor_b32 v{t0}, v{vR}, v{t0}")
    A(f"v_lshl_add_u32 v{b0}, v{t0}, 4, v{t1}")
    A(f"v_xor_b32 v{b1}, 128, v{b0}")
    A(f"v_lshlrev_b32 v{t1}, 10, v{vQd}")
    A(f"v_lshl_add_u32 v{d0}, v{t0}, 4, v{t1}")
    A(f"v_xor_b32 v{d1}, 128, v{d0}")
    A(f"v_and_b32 v{t0}, 7, v{vLane}")
    A(f"v_lshlrev_b32 v{t1}, 1, v{vQd}")
    A(f"v_xor_b32 v{t0}, v{t0}, v{t1}")
    A(f"v_lshlrev_b32 v{t0}, 4, v{t0}")
    A(f"v_lshrrev_b32 v{t1}, 3, v{vLane}")
    A(f"v_lshl_add_u32 v{cwo}, v{t1}, 10, v{t0}")
    A(f"v_mul_u32_u24 v{cw13}, 3584, v{t1}")
    A(f"v_add_u32 v{cw13}, v{cw13}, v{t0}")
    A("s_lshl_b32 s6, s4, 24")
    A("s_lshl_b32 s7, s5, 15")
    A("s_add_u32 s6, s6, s7")
    A(f"s_add_u32 s6, s6, {61440 * 256}")
    A("s_add_u32 s40, s18, s6"); A("s_addc_u32 s41, s19, 0")
    A("s_add_u32 s42, s20, s6"); A("s_addc_u32 s43, s21, 0")
    A("s_lshl_b32 s6, s4, 2"); A("s_lshr_b32 s7, s5, 3"); A("s_add_u32 s6, s6, s7")
    A("s_and_b32 s8, s5, 7")
    A("s_lshl_b32 s9, s6, 17"); A("s_lshl_b32 s10, s8, 7"); A("s_add_u32 s9, s9, s10")
    A("s_add_u32 s44, s24, s9"); A("s_addc_u32 s45, s25, 0")
    A(f"s_mul_i32 s9, s8, {64 * 3584}"); A("s_lshl_b32 s10, s6, 7"); A("s_add_u32 s9, s9, s10")
    A("s_add_u32 s46, s28, s9"); A("s_addc_u32 s47, s29, 0")
    A("s_add_u32 s48, s30, s9"); A("s_addc_u32 s49, s31, 0")
    A("s_lshl_b32 s9, s4, 18"); A("s_lshl_b32 s10, s8, 15"); A("s_add_u32 s9, s9, s10")
    A("s_lshl_b32 s10, s7, 8"); A("s_add_u32 s9, s9, s10")
    A("s_add_u32 s50, s32, s9"); A("s_addc_u32 s51, s33, 0")

    def dma_list(full):
        ops = []
        for i in range(32):
            pre = []
            if i % 4 == 0:
                pre += [f"s_mov_b32 m0, {KL + i * 1024}"]
                if i:
                    pre += ["s_add_u32 s40, s40, 4096", "s_addc_u32 s41, s41, 0"]
            ops.append(pre + [f"global_load_lds_dwordx4 v{(a0, a1, a2, a3)[i & 3]}, s[40:41] offset:{(i & 3) * 1024} nt"])
        for i in range(32):
            pre = []
            if i % 4 == 0:
                pre += [f"s_mov_b32 m0, {VL + i * 1024}"]
                if i:
                    pre += ["s_add_u32 s42, s42, 4096", "s_addc_u32 s43, s43, 0"]
            ops.append(pre + [f"global_load_lds_dwordx4 v{(b0, b1)[i & 1]}, s[42:43] offset:{(i & 3) * 1024} nt"])
        for i in range(16):
            pre = [f"s_mov_b32 m0, {WOL + i * 1024}"]
            if i:
                pre += ["s_add_u32 s44, s44, 8192", "s_addc_u32 s45, s45, 0"]
            ops.append(pre + [f"global_load_lds_dwordx4 v{cwo}, s[44:45] nt"])
        flags = [(31, F_K), (63, F_V), (79, F_WO)]
        if full:
            for base, sreg in ((W1L, 46), (W3L, 48)):
                for i in range(8):
                    pre = [f"s_mov_b32 m0, {base + i * 1024}"]
                    if i:
                        pre += [f"s_add_u32 s{sreg}, s{sreg}, {8 * 3584}", f"s_addc_u32 s{sreg + 1}, s{sreg + 1}, 0"]
                    ops.append(pre + [f"global_load_lds_dwordx4 v{cw13}, s[{sreg}:{sreg + 1}] nt"])
            for i in range(8):
                pre = [f"s_mov_b32 m0, {W2L + i * 1024}"]
                if i:
                    pre += ["s_add_u32 s50, s50, 4096", "s_addc_u32 s51, s51, 0"]
                ops.append(pre + [f"global_load_lds_dwordx4 v{(d0, d1)[i & 1]}, s[50:51] nt"])
            flags += [(95, F_W13), (103, F_W2)]
        return ops, flags

    def emit_dma(ops, flags, start, stop, final):
        D = k.D
        for n in range(start, stop):
            if n >= D:
                A(f"s_waitcnt vmcnt({D - 1})")
                for (last, f) in flags:
                    if last == n - D:
                        k.lds_signal(f)
            for s_ in ops[n]:
                A(s_)
        if final:
            N = len(ops)
            for (last, f) in flags:
                if last > N - 1 - D:
                    A(f"s_waitcnt vmcnt({N - 1 - last})")
                    k.lds_signal(f)

    opsF, flagsF = dma_list(True)
    opsS, flagsS = dma_list(False)
    emit_dma(opsF, flagsF, 0, 80, False)
    A("s_cmp_eq_u32 s4, 7")
    A("s_cbranch_scc1 L_loader_short")
    emit_dma(opsF, flagsF, 80, len(opsF), True)
    A("s_endpgm")
    k.label("L_loader_short")
    emit_dma(opsS, flagsS, 80, 80, True)
    k.label("L_end")
    A("s_endpgm")

    body = list(k.L)
    body = fix_hazards(body)

    nv = (ra.next + 7) // 8 * 8
    tail = []
    tail.append('.section .rodata,"a"')
    tail.append(".p2align 6")
    tail.append(f".amdhsa_kernel {NAME}")
    tail.append(f"  .amdhsa_next_free_vgpr {nv}")
    tail.append("  .amdhsa_next_free_sgpr 102")
    tail.append(f"  .amdhsa_accum_offset {nv}")
    tail.append("  .amdhsa_group_segment_fixed_size 0")
    tail.append("  .amdhsa_kernarg_size 96")
    tail.append("  .amdhsa_user_sgpr_count 2")
    tail.append("  .amdhsa_user_sgpr_kernarg_segment_ptr 1")
    tail.append("  .amdhsa_system_sgpr_workgroup_id_x 1")
    tail.append(".end_amdhsa_kernel")
    return "\n".join(hdr + body + tail) + "\n"


if __name__ == "__main__":
    import argparse
    ap = argparse.ArgumentParser()
    ap.add_argument("-o", default="sequential_preLN__sliding_block_cached__glu_gated_swiglu__decode.s")
    ap.add_argument("--stamps", action="store_true")
    ap.add_argument("-D", type=int, default=32)
    ap.add_argument("--dbgtime", action="store_true")
    a = ap.parse_args()
    open(a.o, "w").write(gen(a.stamps, a.D, a.dbgtime))
```

```python
import sys, os
sys.path.insert(0, os.path.dirname(os.path.abspath(__file__)))
from asmlib import fix_hazards, RegAlloc

NAME = "sequential_preLN__sliding_block_cached__glu_gated_swiglu__decode_kernel"

KL = 0
VL = 32768
WQL = 65536
WOL = 81920
W1L = 98304
W3L = 106496
W2L = 114688
XN = 122880
QF = 126976
PF = 131072
MX = 135168
LS = 136192
OF = 137216
HF = 137472
ONES = 137600
FLAGS = 137728
HH = 137984
LDS_BYTES = 138240
F_WQ, F_Q, F_M, F_P, F_O, F_H, F_K, F_V, F_WO, F_W13, F_W2, F_G2, F_HH, F_G1 = [4 * i for i in range(14)]

WS_STAMP = 0x10000
BS = 4224
WS_A = 0x100000
WS_B = 0x300000
WS_P3 = 0x500000
WS_P5 = 0x520000
WS_HINT = 0x540000
B_P1 = 0
B_ML = 256
B_ST = 384
B_ACK = 512
B_P4 = 1024
B_P2 = 2048

LOG2E = 0x3FB8AA3B
SCALE = 0x3DB504F3
EPS = 0x3727C5AC
INV512 = 0x3B000000

POLL_LIMIT = 512
HINT_LIMIT = 400
PANIC_MAX = 4000
LDS_SPIN_MAX = 1 << 24
CODE_PF_BYTES = 17408


def vr(b, n):
    return f"v[{b}:{b + n - 1}]" if n > 1 else f"v{b}"


def sr(b, n=2):
    return f"s[{b}:{b + n - 1}]"


DPPM = "row_mask:0xf bank_mask:0xf"


class K:
    def __init__(self, stamps, opts):
        self.L = []
        self.stamps = stamps
        self.o = opts
        self.uid = 0
        self.ncnt = 0

    def __call__(self, s):
        self.L.append("    " + s)

    def label(self, s):
        self.L.append(s + ":")

    def newlabel(self, p):
        self.uid += 1
        return f"L_{p}_{self.uid}"

    def stamp(self, idx, alt=0):
        if self.o.get("alt", 0) != alt and idx in (1, 2, 4, 5):
            return
        if self.stamps and idx in self.stamps:
            self(f"s_memrealtime {sr(78 + 2 * idx)}")

    def count(self):
        if self.stamps:
            self(f"v_writelane_b32 v{self.vCnt}, s61, {self.ncnt}")
            self.ncnt += 1

    def lds_wait(self, off, target, vtmp, extra_reads=(), sleep=None):
        lp = self.newlabel("lw")
        ok = self.newlabel("lwok")
        if sleep is None:
            sleep = self.o["lsleep"]
        self(f"ds_read_b32 v{vtmp}, v{self.vFlag} offset:{off}")
        for r in extra_reads:
            self(r)
        self("s_waitcnt lgkmcnt(0)")
        self(f"v_cmp_le_u32 vcc, {target}, v{vtmp}")
        self(f"s_cbranch_vccnz {ok}")
        self(f"s_mov_b32 s63, {LDS_SPIN_MAX}")
        self.label(lp)
        if sleep:
            self(f"s_sleep {sleep}")
        self(f"ds_read_b32 v{vtmp}, v{self.vFlag} offset:{off}")
        self("s_sub_u32 s63, s63, 1")
        self("s_cbranch_scc1 L_end")
        self("s_waitcnt lgkmcnt(0)")
        self(f"v_cmp_le_u32 vcc, {target}, v{vtmp}")
        self(f"s_cbranch_vccz {lp}")
        if extra_reads:
            for r in extra_reads:
                self(r)
            self("s_waitcnt lgkmcnt(0)")
        self.label(ok)

    def lds_signal(self, off):
        if self.stamps and getattr(self, "in_loader", False):
            idx = {F_WQ: 1, F_K: 2, F_V: 3, F_WO: 4, F_W13: 5, F_W2: 6}[off]
            self(f"s_memrealtime {sr(78 + 2 * idx)}")
        self("s_mov_b64 exec, 1")
        self(f"ds_add_u32 v{self.vFlag}, v{self.vOne} offset:{off}")
        self("s_mov_b64 exec, -1")

    def tag4(self, b):
        for i in range(4):
            self(f"v_perm_b32 v{b + i}, v{b + i}, s56, v{self.vSel + i}")

    def check(self, acc, grans):
        first = True
        for b in grans:
            for i in range(4):
                self(f"v_msad_u8 v{acc}, v{b + i}, s{57 + i}, {'0' if first else 'v%d' % acc}")
                first = False

    def retry_tail(self, lp, toggle):
        nx = self.newlabel("pollnx")
        self("s_add_u32 s61, s61, 1")
        self(f"s_and_b32 s6, s61, {POLL_LIMIT - 1}")
        self(f"s_cbranch_scc1 {nx}")
        self("s_call_b64 s[64:65], L_panic")
        self.label(nx)
        if toggle:
            self("s_xor_b32 s44, s44, s50")
            self("s_xor_b32 s45, s45, s51")
        self(f"s_branch {lp}")

    def poll(self, loads, grans, acc, toggle, hook=None, preissued=False, first_wait=0):
        wt = self.newlabel("pollw")
        lp = self.newlabel("poll")
        ok = self.newlabel("pollok")
        self("s_mov_b32 s61, 0")
        if not preissued:
            for l in loads:
                self(l)
        if hook:
            hook()
        if first_wait:
            self(f"s_waitcnt vmcnt({first_wait})")
            self(f"s_branch {wt}2")
        self.label(wt)
        self("s_waitcnt vmcnt(0)")
        if first_wait:
            self.label(wt + "2")
        self.check(acc, grans)
        self(f"v_cmp_ne_u32 vcc, 0, v{acc}")
        self(f"s_cbranch_vccz {ok}")
        nx = self.newlabel("pollnx")
        self("s_add_u32 s61, s61, 1")
        self(f"s_and_b32 s6, s61, {POLL_LIMIT - 1}")
        self(f"s_cbranch_scc1 {nx}")
        self("s_call_b64 s[64:65], L_panic")
        self.label(nx)
        if toggle:
            self("s_xor_b32 s44, s44, s50")
            self("s_xor_b32 s45, s45, s51")
        if self.o.get("psleep", 0):
            self(f"s_sleep {self.o['psleep']}")
        for l in loads:
            self(l)
        self(f"s_branch {wt}")
        self.label(ok)
        self.count()

    def ring_poll(self, name, nsets, issue, grans, nld, acc, toggle, gap, on_ok, hook=None, filler=None, pace=0):
        issue(0)
        if filler:
            filler()
        for s_ in range(1, nsets):
            if gap and not (s_ == 1 and filler):
                self(f"s_sleep {gap}")
            issue(s_)
        if hook:
            hook()
        self("s_mov_b32 s61, 0")
        self.label(f"L_{name}")
        for s_ in range(nsets):
            self(f"s_waitcnt vmcnt({nld * (nsets - 1)})")
            self.check(acc, grans(s_))
            self(f"v_cmp_ne_u32 vcc, 0, v{acc}")
            self(f"s_cbranch_vccz L_{name}ok{s_}")
            if pace:
                self(f"s_sleep {pace}")
            issue(s_)
        self("s_add_u32 s61, s61, 1")
        self(f"s_and_b32 s6, s61, {POLL_LIMIT // 4 - 1}")
        self(f"s_cbranch_scc1 L_{name}nx")
        self("s_call_b64 s[64:65], L_panic")
        self.label(f"L_{name}nx")
        if toggle:
            self("s_xor_b32 s44, s44, s50")
            self("s_xor_b32 s45, s45, s51")
        self(f"s_branch L_{name}")
        for s_ in range(nsets):
            self.label(f"L_{name}ok{s_}")
            on_ok(s_)
            if s_ < nsets - 1:
                self(f"s_branch L_{name}done")
        self.label(f"L_{name}done")
        self.count()
        self("s_nop 1")

    def hint_ring(self, name, vaddr, off, vregs, nlanes_mask, filler=None, gap=None):
        n = len(vregs)
        self(nlanes_mask)
        self(f"global_load_dword v{vregs[0]}, v{vaddr}, s[14:15] offset:{off} sc1")
        if filler:
            self("s_mov_b64 exec, -1")
            filler()
            self(nlanes_mask)
        for i in range(1, n):
            self(f"s_sleep {self.o['HGAP'] if gap is None else gap}")
            self(f"global_load_dword v{vregs[i]}, v{vaddr}, s[14:15] offset:{off} sc1")
        self(f"s_mov_b32 s61, {HINT_LIMIT // n}")
        self.label(f"L_{name}")
        for i in range(n):
            self(f"s_waitcnt vmcnt({n - 1})")
            self(f"v_cmp_ne_u32 vcc, s12, v{vregs[i]}")
            self(f"s_cbranch_vccz L_{name}ok")
            self(f"global_load_dword v{vregs[i]}, v{vaddr}, s[14:15] offset:{off} sc1")
        self("s_sub_u32 s61, s61, 1")
        self(f"s_cbranch_scc0 L_{name}")
        self.label(f"L_{name}ok")
        self.count()
        self("s_mov_b64 exec, -1")

    def hint_wait(self, vaddr, off, vtmp):
        lp = self.newlabel("hint")
        ok = self.newlabel("hintok")
        self(f"s_mov_b32 s61, {HINT_LIMIT}")
        self("s_mov_b64 exec, 0xff")
        self.label(lp)
        self(f"global_load_dword v{vtmp}, v{vaddr}, s[14:15] offset:{off} sc1")
        self("s_waitcnt vmcnt(0)")
        self(f"v_cmp_ne_u32 vcc, s12, v{vtmp}")
        self(f"s_cbranch_vccz {ok}")
        if self.o.get("hsleep", 0):
            self(f"s_sleep {self.o['hsleep']}")
        self("s_sub_u32 s61, s61, 1")
        self(f"s_cbranch_scc0 {lp}")
        self.label(ok)
        self.count()
        self("s_mov_b64 exec, -1")

    def allreduce16(self, op, regs, steps=(1, 2, 4, 8)):
        for st in steps:
            for r in regs:
                self(f"{op}_dpp v{r}, v{r}, v{r} row_ror:{st} {DPPM}")

    def reduce64_to_lane63(self, regs):
        self.allreduce16("v_add_f32", regs)
        for r in regs:
            self(f"v_add_f32_dpp v{r}, v{r}, v{r} row_bcast:15 row_mask:0xa bank_mask:0xf")
        for r in regs:
            self(f"v_add_f32_dpp v{r}, v{r}, v{r} row_bcast:31 row_mask:0xc bank_mask:0xf")

    def round_bf16(self, dst, src):
        self(f"v_cvt_pk_bf16_f32 v{dst}, v{src}, v{src}")
        self(f"v_and_b32 v{dst}, 0xffff0000, v{dst}")

    def round_bf16_pair(self, d0, d1, s0, s1, tmp):
        self(f"v_cvt_pk_bf16_f32 v{tmp}, v{s0}, v{s1}")
        self(f"v_lshlrev_b32 v{d0}, 16, v{tmp}")
        self(f"v_and_b32 v{d1}, 0xffff0000, v{tmp}")

    def ln_scalars(self, sm, sq):
        self(f"s_mov_b32 s8, {INV512:#x}")
        self(f"v_mul_f32 v{sm}, s8, v{sm}")
        self(f"v_mul_f32 v{sq}, s8, v{sq}")
        self(f"v_fma_f32 v{sq}, -v{sm}, v{sm}, v{sq}")
        self(f"v_max_f32 v{sq}, 0, v{sq}")
        self.round_bf16(sq, sq)
        self(f"v_add_f32 v{sq}, {EPS:#x}, v{sq}")
        self.round_bf16(sq, sq)
        self(f"v_sqrt_f32 v{sq}, v{sq}")
        self.round_bf16(sm, sm)
        self.round_bf16(sq, sq)
        self(f"v_rcp_f32 v{sq}, v{sq}")


def gen(stamps=None, dbgtime=False, **opts):
    o = dict(NP=6, GAP=7, pf=1, order="q0,k16,v32,o16,a16,b16", ptc=0, ptp=0, ptx=0, ptf='nt', pff='', lsleep=0, PACE=8, GAP0=4, wl=1, TZ=0, DS=8, TX=8, mlsep=1, NH2=0, L3=0, P3S=0, L5=0, L7=0, P5S=0, hint1=1, NH=6, HGAP=4, mlpre=1, pxf='', xf='', wsoff=0, hint2=1, hint4=1, N3=5, G3=4)
    o.update(opts)
    k = K(stamps, o)
    A = k
    ra = RegAlloc(1, 256)
    V = ra.alloc
    NP = o["NP"]

    hdr = []
    hdr.append("; 256 workgroups (one per CU) x 5 waves: 4 compute waves + 1 LDS-DMA loader wave.")
    hdr.append(f"; @launch grid=(256,1,1) block=(320,1,1) lds={LDS_BYTES}")
    hdr.append('.amdgcn_target "amdgcn-amd-amdhsa--gfx950"')
    hdr.append(".text")
    hdr.append(f".globl {NAME}")
    hdr.append(".p2align 8")
    hdr.append(f".type {NAME},@function")
    hdr.append(f"{NAME}:")

    vLane = V("lane"); vR = V("r"); vQd = V("qd"); vL16 = V("l16")
    k.vFlag = V("flag"); k.vOne = V("one")
    t0 = V("t0"); t1 = V("t1"); t2 = V("t2"); t3 = V("t3"); t4 = V("t4"); t5 = V("t5"); t6 = V("t6"); t7 = V("t7")
    vJunk = V("junk")
    k.vCnt = V("cnt")
    vPT = V("panic", 4)

    A.stamp(0)
    if dbgtime:
        A("s_memrealtime s[96:97]")
    A("s_cmp_ge_u32 s2, 256")
    A("s_cbranch_scc1 L_end")
    A("s_load_dwordx16 s[16:31], s[0:1], 0")
    A("s_load_dwordx8 s[32:39], s[0:1], 64")
    if o["pf"]:
        A("s_getpc_b64 s[14:15]")
        A(f"v_lshlrev_b32 v{t0}, 7, v0")
        A(f"v_min_u32 v{t0}, {CODE_PF_BYTES - 128}, v{t0}")
        A(f"global_load_dword v{vJunk}, v{t0}, s[14:15] {o['pff']}")
    A(f"v_lshrrev_b32 v{t0}, 6, v0")
    A(f"v_and_b32 v{vLane}, 63, v0")
    A(f"v_readfirstlane_b32 s3, v{t0}")
    A("s_and_b32 s4, s2, 7")
    A("s_lshr_b32 s5, s2, 3")
    A(f"v_and_b32 v{vR}, 15, v{vLane}")
    A(f"v_lshrrev_b32 v{vQd}, 4, v{vLane}")
    A(f"v_lshlrev_b32 v{vL16}, 4, v{vLane}")
    A(f"v_mov_b32 v{k.vFlag}, {FLAGS}")
    A(f"v_mov_b32 v{k.vOne}, 1")
    A(f"v_lshlrev_b32 v{t0}, 2, v{vLane}")
    A(f"v_add_u32 v{t0}, {ONES}, v{t0}")
    A(f"v_mov_b32 v{t1}, 0")
    A(f"v_mov_b32 v{t2}, 0x3f803f80")
    A(f"ds_write_b32 v{t0}, v{t1} offset:{FLAGS - ONES}")
    A("s_mov_b32 exec_hi, 0")
    A(f"ds_write_b32 v{t0}, v{t2}")
    A("s_mov_b64 exec, -1")
    vX = V("x", 4)
    vXR = V("xr", 2)
    vZ = V("zero4", 4)
    k.vSel = V("sel", 4)
    A("s_waitcnt lgkmcnt(0)")
    if o["wsoff"]:
        A(f"s_add_u32 s38, s38, {o['wsoff'] << 20}")
        A("s_addc_u32 s39, s39, 0")
    A(f"global_load_dwordx4 {vr(vX, 4)}, v{vL16}, s[16:17] {o['xf']}")
    A("s_load_dword s56, s[38:39], 0")
    A("s_barrier")
    A("s_cmp_lg_u32 s3, 4")
    A("s_cbranch_scc1 L_compute")
    A(";;LOADER_HERE")
    k.label("L_compute")
    A("s_lshr_b32 s9, s5, 3")
    A("s_and_b32 s7, s5, 7")
    A("s_lshl_b32 s8, s7, 7")
    A("s_lshl_b32 s10, s3, 5")
    A("s_add_u32 s8, s8, s10")
    A(f"v_lshlrev_b32 v{t0}, 3, v{vQd}")
    A(f"v_add_u32 v{t0}, s8, v{t0}")
    A("s_lshl_b32 s8, s5, 5")
    A("s_lshl_b32 s10, s3, 3")
    A("s_add_u32 s8, s8, s10")
    A(f"v_mov_b32 v{t1}, s8")
    A("s_cmp_eq_u32 s4, 7")
    A("s_cselect_b64 s[10:11], -1, 0")
    A(f"v_cndmask_b32 v{t0}, v{t0}, v{t1}, s[10:11]")
    A(f"global_load_dwordx2 {vr(vXR, 2)}, v{t0}, s[16:17]")
    A(f"s_mul_i32 s8, s4, {32 * BS}")
    A(f"s_add_u32 s8, s8, {WS_A}")
    A("s_add_u32 s40, s38, s8")
    A("s_addc_u32 s41, s39, 0")
    A(f"s_mul_i32 s8, s5, {BS}")
    A("s_add_u32 s42, s40, s8")
    A("s_addc_u32 s43, s41, 0")
    for i in range(4):
        A(f"v_mov_b32 v{vZ + i}, 0")
    vWL = V("wl16")
    A("s_lshl_b32 s8, s3, 10")
    A(f"v_add_u32 v{vWL}, s8, v{vL16}")
    A(f"global_load_dword v{vJunk}, v{vWL}, s[42:43] {o['ptf']}")
    A(f"global_store_dwordx4 v{vWL}, {vr(vZ, 4)}, s[42:43]")
    A("s_lshl_b32 s8, s4, 11")
    A(f"s_add_u32 s8, s8, {WS_HINT}")
    A("s_add_u32 s14, s38, s8")
    A("s_addc_u32 s15, s39, 0")
    vL4 = V("l4")
    A(f"v_lshlrev_b32 v{vL4}, 2, v{vLane}")
    A(f"v_lshlrev_b32 v{t0}, 5, v{vLane}")
    A(f"global_load_dword v{vJunk}, v{t0}, s[14:15] {o['ptf']}")
    A("s_mov_b32 s44, s40")
    A("s_mov_b32 s45, s41")
    A(f"s_add_u32 s46, s40, {WS_B - WS_A}")
    A("s_addc_u32 s47, s41, 0")
    A(f"s_add_u32 s48, s42, {WS_B - WS_A}")
    A("s_addc_u32 s49, s43, 0")
    A("s_mov_b32 s50, 0")
    A("s_mov_b32 s51, 0")
    A(f"s_add_u32 s52, s38, {WS_P3}")
    A("s_addc_u32 s53, s39, 0")
    A(f"s_add_u32 s54, s38, {WS_P5}")
    A("s_addc_u32 s55, s39, 0")
    A("s_mov_b32 s62, 0")
    if o["ptx"]:
        A("s_lshl_b32 s8, s7, 5")
        A("s_lshl_b32 s10, s4, 2")
        A("s_add_u32 s8, s8, s10")
        A("s_add_u32 s8, s8, s9")
        A("s_mul_i32 s10, s9, 56")
        A("s_lshl_b32 s11, s4, 3")
        A("s_add_u32 s10, s10, s11")
        A("s_add_u32 s10, s10, s7")
        A(f"s_add_u32 s10, s10, {(WS_P5 - WS_P3) // 512}")
        A("s_cmp_eq_u32 s4, 7")
        A("s_cselect_b32 s10, s8, s10")
        A(f"v_mov_b32 v{t0}, s8")
        A(f"v_writelane_b32 v{t0}, s10, 1")
        A(f"v_lshlrev_b32 v{t0}, 9, v{t0}")
        A("s_lshl_b32 s8, s3, 7")
        A(f"v_add_u32 v{t0}, s8, v{t0}")
        A("s_mov_b64 exec, 3")
        A(f"global_load_dword v{vJunk}, v{t0}, s[52:53] {o['pxf']}")
        A("s_mov_b64 exec, -1")
    for i in range(4):
        A(f"v_mov_b32 v{k.vSel + i}, {0x07060500 + i:#x}")
    vRR = V("rr"); vCC = V("cc")
    A(f"v_lshrrev_b32 v{vRR}, 2, v{vR}")
    A(f"v_and_b32 v{vCC}, 3, v{vLane}")
    A(f"v_cmp_eq_u32 s[68:69], 0, v{vR}")
    A(f"v_cmp_gt_u32 s[70:71], 8, v{vR}")
    A(f"v_cmp_eq_u32 s[72:73], 1, v{vRR}")
    A(f"v_cmp_gt_u32 s[74:75], 4, v{vR}")
    A(f"v_and_b32 v{t0}, 2, v{vR}")
    A(f"v_cmp_ne_u32 s[76:77], 0, v{t0}")
    A(f"v_and_b32 v{t0}, 1, v{vR}")
    A(f"v_cmp_ne_u32 s[66:67], 0, v{t0}")
    vTR128 = V("tr128")
    A(f"v_lshl_add_u32 v{t0}, v{vQd}, 2, v{vRR}")
    A(f"v_lshlrev_b32 v{vTR128}, 7, v{t0}")
    A(f"v_bfe_u32 v{t1}, v{t0}, 1, 2")
    A(f"v_lshlrev_b32 v{t1}, 1, v{t1}")
    A(f"v_lshrrev_b32 v{t2}, 1, v{vCC}")
    A("s_lshl_b32 s8, s3, 1")
    A(f"v_add_u32 v{t2}, s8, v{t2}")
    A(f"v_xor_b32 v{t2}, v{t2}, v{t1}")
    A(f"v_lshl_add_u32 v{vTR128}, v{t2}, 4, v{vTR128}")
    A(f"v_and_b32 v{t2}, 1, v{vCC}")
    A(f"v_lshl_add_u32 v{vTR128}, v{t2}, 3, v{vTR128}")
    A(f"v_add_u32 v{vTR128}, {WQL}, v{vTR128}")
    vTR256 = V("tr256", 2)
    A(f"v_lshlrev_b32 v{vTR256}, 8, v{t0}")
    A(f"v_and_b32 v{t1}, 7, v{t0}")
    A(f"v_lshlrev_b32 v{t1}, 1, v{t1}")
    A(f"v_lshrrev_b32 v{t3}, 1, v{vCC}")
    A("s_lshl_b32 s8, s3, 2")
    A(f"v_add_u32 v{t3}, s8, v{t3}")
    A(f"v_xor_b32 v{t3}, v{t3}, v{t1}")
    A(f"v_lshl_add_u32 v{vTR256}, v{t3}, 4, v{vTR256}")
    A(f"v_lshl_add_u32 v{vTR256}, v{t2}, 3, v{vTR256}")
    A(f"v_xor_b32 v{vTR256 + 1}, 32, v{vTR256}")
    vPub = V("pubaddr")
    A("s_lshl_b32 s8, s3, 6")
    A(f"v_lshlrev_b32 v{vPub}, 4, v{vQd}")
    A(f"v_add_u32 v{vPub}, s8, v{vPub}")
    vH1 = V("h1a")
    A(f"v_lshlrev_b32 v{t0}, 3, v{vRR}")
    A(f"v_and_b32 v{t1}, 3, v{vR}")
    A(f"v_lshl_add_u32 v{t0}, v{t1}, 1, v{t0}")
    A("s_lshr_b32 s8, s3, 1")
    A(f"v_add_u32 v{t0}, s8, v{t0}")
    A(f"v_mul_u32_u24 v{t0}, {BS}, v{t0}")
    A("s_and_b32 s8, s3, 1")
    A("s_lshl_b32 s8, s8, 7")
    A(f"v_lshl_add_u32 v{vH1}, v{vQd}, 5, v{t0}")
    A(f"v_add_u32 v{vH1}, s8, v{vH1}")
    vXNr = V("xnr")
    A("s_lshl_b32 s8, s3, 10")
    A("s_lshl_b32 s10, s9, 8")
    A("s_add_u32 s8, s8, s10")
    A(f"s_add_u32 s8, s8, {XN}")
    A(f"v_lshlrev_b32 v{vXNr}, 4, v{vQd}")
    A(f"v_add_u32 v{vXNr}, s8, v{vXNr}")
    A(f"v_add_u32 v{t7}, {XN}, v{vWL}")

    vF = V("f", 8)
    A(f"s_waitcnt vmcnt({5 if o['ptx'] else 4})")
    for i in range(4):
        A(f"v_lshlrev_b32 v{vF + 2 * i}, 16, v{vX + i}")
        A(f"v_and_b32 v{vF + 2 * i + 1}, 0xffff0000, v{vX + i}")
    A(f"v_add_f32 v{t0}, v{vF}, v{vF + 1}")
    A(f"v_mul_f32 v{t1}, v{vF}, v{vF}")
    A(f"v_fmac_f32 v{t1}, v{vF + 1}, v{vF + 1}")
    for i in range(2, 8):
        A(f"v_add_f32 v{t0}, v{t0}, v{vF + i}")
        A(f"v_fmac_f32 v{t1}, v{vF + i}, v{vF + i}")
    k.reduce64_to_lane63([t0, t1])
    A(f"v_readlane_b32 s8, v{t0}, 63")
    A(f"v_readlane_b32 s10, v{t1}, 63")
    A(f"v_mov_b32 v{t0}, s8")
    A(f"v_mov_b32 v{t1}, s10")
    k.ln_scalars(t0, t1)
    for i in range(8):
        A(f"v_sub_f32 v{vF + i}, v{vF + i}, v{t0}")
    for i in range(4):
        k.round_bf16_pair(vF + 2 * i, vF + 2 * i + 1, vF + 2 * i, vF + 2 * i + 1, t3)
    for i in range(8):
        A(f"v_mul_f32 v{vF + i}, v{vF + i}, v{t1}")
    for i in range(4):
        A(f"v_cvt_pk_bf16_f32 v{vX + i}, v{vF + 2 * i}, v{vF + 2 * i + 1}")
    A(f"ds_write_b128 v{t7}, {vr(vX, 4)}")
    vB = V("bfrag", 16)
    for ks in range(4):
        A(f"ds_read_b128 {vr(vB + 4 * ks, 4)}, v{vXNr} offset:{ks * 64}")
    A("s_waitcnt lgkmcnt(0)")
    A("s_add_u32 s13, s56, 1")
    A("s_and_b32 s13, s13, 0x0fffffff")
    for i in range(4):
        A(f"s_bfe_u32 s8, s13, {(7 << 16) | (7 * i):#x}")
        A(f"s_or_b32 s{57 + i}, s8, 0x80")
    A("s_lshl_b32 s8, s58, 8")
    A("s_or_b32 s56, s57, s8")
    A("s_lshl_b32 s8, s59, 16")
    A("s_or_b32 s56, s56, s8")
    A("s_lshl_b32 s8, s60, 24")
    A("s_or_b32 s56, s56, s8")
    A("s_mul_i32 s12, s57, 0x01010101")
    vHs1 = V("hs1")
    A("s_lshl_b32 s8, s5, 2")
    A("s_add_u32 s8, s8, s3")
    A(f"v_mov_b32 v{vHs1}, s8")
    vHB = V("hintbyte")
    A(f"v_mov_b32 v{vHB}, s57")
    A.stamp(1)
    vW = V("wfrag", 16)
    k.lds_wait(F_WQ, 1, t0)
    for ks in range(4):
        for hf in range(2):
            A(f"ds_read_b64_tr_b16 {vr(vW + 4 * ks + 2 * hf, 2)}, v{vTR128} offset:{ks * 4096 + hf * 2048}")
    vD = V("d", 8)
    for ks in range(4):
        A(f"s_waitcnt lgkmcnt({6 - 2 * ks})")
        A(f"v_mfma_f32_16x16x32_bf16 {vr(vD, 4)}, {vr(vW + 4 * ks, 4)}, {vr(vB + 4 * ks, 4)}, {'0' if ks == 0 else vr(vD, 4)}")
    k.tag4(vD)
    A("s_mov_b64 exec, s[68:69]")
    A(f"global_store_dwordx4 v{vPub}, {vr(vD, 4)}, s[42:43] offset:{B_P1}")
    A("s_mov_b64 exec, 1")
    A(f"global_store_byte v{vHs1}, v{vHB}, s[14:15] offset:1024")
    A("s_mov_b64 exec, -1")
    A.stamp(2)
    vG = V("g", 24)
    vAcc = V("acc")
    vRing = V("ring", max(24, 8 * NP))

    def h1_issue(s):
        A(f"global_load_dwordx4 {vr(vRing + 8 * s, 4)}, v{vH1}, s[44:45] offset:{B_P1} sc1")
        A(f"global_load_dwordx4 {vr(vRing + 8 * s + 4, 4)}, v{vH1}, s[44:45] offset:{B_P1 + 16} sc1")

    later = []
    LA = later.append
    vL16Q = V("l16q")
    LA(f"v_add_u32 v{vL16Q}, {QF}, v{vL16}")
    vKa = V("ka", 4)
    LA("s_lshl_b32 s8, s3, 13")
    LA(f"v_lshlrev_b32 v{vKa}, 8, v{vR}")
    LA(f"v_add_u32 v{vKa}, s8, v{vKa}")
    LA(f"v_xor_b32 v{t1}, v{vQd}, v{vR}")
    LA(f"v_lshl_add_u32 v{vKa}, v{t1}, 4, v{vKa}")
    LA(f"v_xor_b32 v{vKa + 1}, 64, v{vKa}")
    LA(f"v_xor_b32 v{vKa + 2}, 128, v{vKa}")
    LA(f"v_xor_b32 v{vKa + 3}, 192, v{vKa}")
    vMXw = V("mxw"); vMXr = V("mxr")
    LA(f"v_lshlrev_b32 v{vMXr}, 6, v{vR}")
    LA(f"v_add_u32 v{vMXr}, {MX}, v{vMXr}")
    LA("s_lshl_b32 s8, s3, 4")
    LA(f"v_lshl_add_u32 v{vMXw}, v{vQd}, 2, v{vMXr}")
    LA(f"v_add_u32 v{vMXw}, s8, v{vMXw}")
    vP2a = V("p2a")
    LA(f"v_and_b32 v{t0}, 3, v{vR}")
    LA(f"v_lshlrev_b32 v{vP2a}, 9, v{t0}")
    LA(f"v_lshl_add_u32 v{vP2a}, v{vRR}, 6, v{vP2a}")
    LA(f"v_lshl_add_u32 v{vP2a}, v{vQd}, 4, v{vP2a}")
    LA("s_lshl_b32 s8, s3, 7")
    LA(f"v_add_u32 v{vP2a}, s8, v{vP2a}")
    vH2 = V("h2a", 4)
    LA("s_lshl_b32 s10, s9, 9")
    LA("s_add_u32 s10, s10, s8")
    LA(f"v_mul_u32_u24 v{t0}, {BS}, v{vR}")
    LA(f"v_lshl_add_u32 v{vH2}, v{vQd}, 4, v{t0}")
    LA(f"v_add_u32 v{vH2}, s10, v{vH2}")
    LA(f"v_add_u32 v{vH2 + 1}, {16 * BS}, v{vH2}")
    LA("s_lshl_b32 s10, s9, 4")
    LA(f"v_add_u32 v{vH2 + 2}, s10, v{t0}")
    LA(f"v_add_u32 v{vH2 + 3}, {16 * BS}, v{vH2 + 2}")
    vHs2 = V("hs2"); vHr2 = V("hr2"); vHs4 = V("hs4"); vHr4 = V("hr4")
    LA("s_lshl_b32 s8, s3, 7")
    LA(f"v_add_u32 v{vHr2}, s8, v{vL4}")
    LA("s_add_u32 s8, s8, s5")
    LA(f"v_mov_b32 v{vHs2}, s8")
    LA("s_lshl_b32 s8, s9, 7")
    LA("s_lshl_b32 s10, s7, 2")
    LA("s_add_u32 s8, s8, s10")
    LA("s_add_u32 s8, s8, s3")
    LA(f"v_mov_b32 v{vHs4}, s8")
    LA("s_lshr_b32 s8, s7, 1")
    LA("s_lshl_b32 s8, s8, 7")
    LA(f"v_add_u32 v{vHr4}, s8, v{vL4}")
    vOFw = V("ofw"); vQ16 = V("q16")
    LA(f"v_add_u32 v{vOFw}, {OF}, v{vPub}")
    LA(f"v_lshlrev_b32 v{vQ16}, 4, v{vQd}")
    LA(f"v_add_u32 v{vQ16}, {OF}, v{vQ16}")
    vP3a = V("p3a")
    LA("s_lshl_b32 s8, s7, 5")
    LA("s_lshl_b32 s10, s4, 2")
    LA("s_add_u32 s8, s8, s10")
    LA("s_add_u32 s8, s8, s9")
    LA("s_lshl_b32 s8, s8, 9")
    LA("s_lshl_b32 s10, s3, 6")
    LA("s_add_u32 s8, s8, s10")
    LA(f"v_add_u32 v{vP3a}, s8, v{vPub}")
    vH3 = V("h3a", 2); vP4a = V("p4a")
    LA("s_lshl_b32 s8, s7, 14")
    LA("s_add_u32 s8, s8, s10")
    LA(f"v_lshl_add_u32 v{vP4a}, v{vR}, 8, v{vPub}")
    LA(f"v_lshl_add_u32 v{vH3}, v{vR}, 9, v{vPub}")
    LA(f"v_add_u32 v{vH3}, s8, v{vH3}")
    LA(f"v_add_u32 v{vH3 + 1}, 8192, v{vH3}")
    vHFw = V("hfw"); vHFa = V("hfa"); vHFb = V("hfb")
    LA("s_lshr_b32 s8, s3, 1")
    LA("s_lshl_b32 s8, s8, 6")
    LA("s_and_b32 s10, s3, 1")
    LA("s_lshl_b32 s10, s10, 3")
    LA("s_add_u32 s8, s8, s10")
    LA(f"v_lshlrev_b32 v{vHFa}, 4, v{vQd}")
    LA(f"v_add_u32 v{vHFa}, {HF}, v{vHFa}")
    LA(f"v_add_u32 v{vHFw}, s8, v{vHFa}")
    LA(f"v_and_b32 v{t0}, 1, v{vR}")
    LA(f"v_lshl_add_u32 v{vHFb}, v{t0}, 7, v{vHFa}")
    vH4 = V("h4a", 2)
    LA("s_lshr_b32 s8, s7, 1")
    LA(f"s_mul_i32 s8, s8, {8 * BS}")
    LA("s_and_b32 s10, s7, 1")
    LA("s_lshl_b32 s10, s10, 7")
    LA("s_lshl_b32 s11, s3, 4")
    LA("s_add_u32 s10, s10, s11")
    LA(f"v_and_b32 v{t0}, 7, v{vLane}")
    LA(f"v_mul_u32_u24 v{t0}, {BS}, v{t0}")
    LA(f"v_add_u32 v{vH4}, s8, v{t0}")
    LA(f"v_bfe_u32 v{t1}, v{vLane}, 3, 2")
    LA(f"v_lshl_add_u32 v{t1}, v{t1}, 8, v{vH4}")
    LA(f"v_lshrrev_b32 v{t0}, 5, v{vLane}")
    LA(f"v_lshl_add_u32 v{t1}, v{t0}, 6, v{t1}")
    LA(f"v_add_u32 v{vH4 + 1}, s10, v{t1}")
    vHHw = V("hhw"); vHHr = V("hhr")
    LA(f"v_lshlrev_b32 v{vHHw}, 3, v{t0}")
    LA(f"v_lshl_add_u32 v{vHHw}, v{vCC}, 1, v{vHHw}")
    LA(f"s_add_u32 s11, s11, {HH}")
    LA(f"v_add_u32 v{vHHw}, s11, v{vHHw}")
    LA(f"v_lshlrev_b32 v{vHHr}, 4, v{vQd}")
    LA(f"v_add_u32 v{vHHr}, {HH}, v{vHHr}")
    vP5a = V("p5a")
    LA("s_mul_i32 s8, s9, 56")
    LA("s_lshl_b32 s10, s4, 3")
    LA("s_add_u32 s8, s8, s10")
    LA("s_add_u32 s8, s8, s7")
    LA("s_lshl_b32 s8, s8, 9")
    LA("s_lshl_b32 s10, s3, 7")
    LA("s_add_u32 s8, s8, s10")
    LA(f"v_lshlrev_b32 v{vP5a}, 4, v{vQd}")
    LA(f"v_add_u32 v{vP5a}, s8, v{vP5a}")
    LA(f"v_and_b32 v{t0}, 1, v{vR}")
    LA(f"v_lshl_add_u32 v{vP5a}, v{t0}, 6, v{vP5a}")
    LA(f"v_cmp_gt_u32 s[10:11], 2, v{vR}")
    LA("s_mov_b64 s[0:1], s[10:11]")

    vTW2 = V("tw2", 2)
    LA(f"v_add_u32 v{vTW2}, {W2L}, v{vTR256}")
    LA(f"v_add_u32 v{vTW2 + 1}, {W2L}, v{vTR256 + 1}")
    vXF = V("xf", 4)
    LA("s_waitcnt vmcnt(4)")
    LA(f"v_lshlrev_b32 v{vXF}, 16, v{vXR}")
    LA(f"v_and_b32 v{vXF + 1}, 0xffff0000, v{vXR}")
    LA(f"v_lshlrev_b32 v{vXF + 2}, 16, v{vXR + 1}")
    LA(f"v_and_b32 v{vXF + 3}, 0xffff0000, v{vXR + 1}")

    def h1_ok(s):
        for i in range(8):
            A(f"v_add_f32_dpp v{vG + i}, v{vRing + 8 * s + i}, v{vRing + 8 * s + i} row_ror:4 {DPPM}")

    def h1_fill():
        for s_ in later:
            A(s_)
    if o["hint1"]:
        k.hint_ring("hr1", vL4, 1024, [vRing + 16 + i for i in range(o["NH"])], "s_mov_b32 exec_hi, 0", filler=h1_fill)
        k.poll([f"global_load_dwordx4 {vr(vRing, 4)}, v{vH1}, s[44:45] offset:{B_P1} sc1",
                f"global_load_dwordx4 {vr(vRing + 4, 4)}, v{vH1}, s[44:45] offset:{B_P1 + 16} sc1"],
               [vRing, vRing + 4], vAcc, True, hook=lambda: k.lds_signal(F_G1))
        h1_ok(0)
    else:
        h1_fill()
        if o["GAP0"]:
            A(f"s_sleep {o['GAP0']}")
        k.ring_poll("h1", NP, h1_issue, lambda s: [vRing + 8 * s, vRing + 8 * s + 4], 2, vAcc, True, o["GAP"], h1_ok, pace=o['PACE'])
    h2_loads = [f"global_load_dwordx4 {vr(vG, 4)}, v{vH2}, s[44:45] offset:{B_P2} sc1",
                f"global_load_dwordx4 {vr(vG + 4, 4)}, v{vH2}, s[44:45] offset:{B_P2 + 64} sc1",
                f"global_load_dwordx4 {vr(vG + 8, 4)}, v{vH2 + 1}, s[44:45] offset:{B_P2} sc1",
                f"global_load_dwordx4 {vr(vG + 12, 4)}, v{vH2 + 1}, s[44:45] offset:{B_P2 + 64} sc1"]
    if o["ptc"]:
        A(f"global_load_dword v{vJunk}, v{vH2}, s[44:45] offset:{B_P2} sc1")
        A(f"global_load_dword v{vJunk}, v{vH2 + 1}, s[44:45] offset:{B_P2} sc1")
        A(f"global_load_dword v{vJunk}, v{vH2 + 2}, s[44:45] offset:{B_ML} sc1")
        A(f"global_load_dword v{vJunk}, v{vH2 + 3}, s[44:45] offset:{B_ML} sc1")
        A(f"global_load_dword v{vJunk}, v{vL16}, s[14:15] sc1")
    if o["ptp"]:
        skp = k.newlabel("skp")
        A("s_cmp_eq_u32 s3, 1")
        A(f"s_cbranch_scc1 {skp}")
        A("s_cmp_eq_u32 s3, 0")
        A("s_cselect_b32 exec_lo, 0xffff0000, -1")
        A(f"global_store_dwordx4 v{vWL}, {vr(vZ, 4)}, s[42:43]")
        A("s_mov_b64 exec, -1")
        k.label(skp)
    A.stamp(3)
    k.allreduce16("v_add_f32", list(range(vG, vG + 8)), steps=(8,))
    for i in range(4):
        A(f"v_cvt_pk_bf16_f32 v{vX + i}, v{vG + 2 * i}, v{vG + 2 * i + 1}")
    A(f"v_add_u32 v{t0}, {QF}, v{vWL}")
    A(f"ds_write_b128 v{t0}, {vr(vX, 4)}")
    k.lds_signal(F_Q)
    vKF = V("kfrag", 32)
    k.lds_wait(F_K, 1, t4)
    for kt in range(2):
        for s in range(4):
            A(f"ds_read_b128 {vr(vKF + 16 * kt + 4 * s, 4)}, v{vKa + s} offset:{KL + kt * 4096}")
    A.stamp(1, 2)
    k.lds_wait(F_Q, 4, t4, [f"ds_read_b128 {vr(vB + 4 * s, 4)}, v{vL16Q} offset:{s * 1024}" for s in range(4)])
    for s in range(4):
        for kt in range(2):
            A(f"v_mfma_f32_16x16x32_bf16 {vr(vD + 4 * kt, 4)}, {vr(vKF + 16 * kt + 4 * s, 4)}, {vr(vB + 4 * s, 4)}, {'0' if s == 0 else vr(vD + 4 * kt, 4)}")
    A.stamp(2, 2)
    A(f"s_mov_b32 s8, {SCALE:#x}")
    for i in range(4):
        k.round_bf16_pair(vF + 2 * i, vF + 2 * i + 1, vD + 2 * i, vD + 2 * i + 1, t0)
    for i in range(8):
        A(f"v_mul_f32 v{vF + i}, s8, v{vF + i}")
    for i in range(4):
        k.round_bf16_pair(vF + 2 * i, vF + 2 * i + 1, vF + 2 * i, vF + 2 * i + 1, t0)
    A(f"v_max3_f32 v{t0}, v{vF}, v{vF + 1}, v{vF + 2}")
    A(f"v_max3_f32 v{t1}, v{vF + 3}, v{vF + 4}, v{vF + 5}")
    A(f"v_max3_f32 v{t0}, v{t0}, v{vF + 6}, v{vF + 7}")
    A(f"v_max_f32 v{t0}, v{t0}, v{t1}")
    if o['wl']:
        A(f"v_mov_b32 v{t1}, v{t0}")
        A(f"v_permlane16_swap_b32 v{t0}, v{t1}")
        A(f"v_max_f32 v{t0}, v{t0}, v{t1}")
        A(f"v_mov_b32 v{t1}, v{t0}")
        A(f"v_permlane32_swap_b32 v{t0}, v{t1}")
        A(f"v_max_f32 v{t0}, v{t0}, v{t1}")
        A(f"s_mov_b32 s8, {LOG2E:#x}")
        A(f"v_mul_f32 v{t1}, s8, v{t0}")
        for i in range(8):
            A(f"v_fma_f32 v{vF + i}, v{vF + i}, s8, -v{t1}")
        for i in range(8):
            A(f"v_exp_f32 v{vF + i}, v{vF + i}")
        for i in range(4):
            A(f"v_cvt_pk_bf16_f32 v{vX + i}, v{vF + 2 * i}, v{vF + 2 * i + 1}")
        A(f"v_add_u32 v{t1}, {PF}, v{vWL}")
        A(f"ds_write_b128 v{t1}, {vr(vX, 4)}")
        A(f"ds_write_b32 v{vMXw}, v{t0}")
        A(f"v_add_f32 v{t2}, v{vF}, v{vF + 1}")
        A(f"v_add_f32 v{t3}, v{vF + 2}, v{vF + 3}")
        for i in range(4, 8, 2):
            A(f"v_add_f32 v{t2}, v{t2}, v{vF + i}")
            A(f"v_add_f32 v{t3}, v{t3}, v{vF + i + 1}")
        A(f"v_add_f32 v{t2}, v{t2}, v{t3}")
        A(f"ds_write_b32 v{vMXw}, v{t2} offset:{LS - MX}")
        k.lds_signal(F_P)
        A.stamp(4, 2)
        vML = V("ml", 4)
        vM = vML
        vSC = V("sc", 4)
        k.lds_wait(F_P, 4, t4,
                   [f"ds_read_b128 {vr(vB + 4 * s, 4)}, v{vL16Q} offset:{PF - QF + s * 1024}" for s in range(4)] +
                   [f"ds_read_b32 v{vSC + i}, v{vMXr} offset:{16 * i}" for i in range(4)] +
                   [f"ds_read_b128 {vr(vG + 4 * i, 4)}, v{vMXr} offset:{LS - MX + 16 * i}" for i in range(4)])
        A.stamp(5, 2)
        A(f"v_max3_f32 v{vM}, v{vSC}, v{vSC + 1}, v{vSC + 2}")
        A(f"v_max_f32 v{vM}, v{vM}, v{vSC + 3}")
        for i in range(4):
            A(f"v_sub_f32 v{vSC + i}, v{vSC + i}, v{vM}")
        for i in range(4):
            A(f"v_mul_f32 v{vSC + i}, s8, v{vSC + i}")
        for i in range(4):
            A(f"v_exp_f32 v{vSC + i}, v{vSC + i}")
        skipml = k.newlabel("skipml")
        A("s_cmp_lg_u32 s3, 0")
        A(f"s_cbranch_scc1 {skipml}")
        for i in range(4):
            A(f"v_add_f32 v{vG + 4 * i}, v{vG + 4 * i}, v{vG + 4 * i + 1}")
            A(f"v_add_f32 v{vG + 4 * i + 2}, v{vG + 4 * i + 2}, v{vG + 4 * i + 3}")
        for i in range(4):
            A(f"v_add_f32 v{vG + 4 * i}, v{vG + 4 * i}, v{vG + 4 * i + 2}")
        A(f"v_mul_f32 v{vML + 1}, v{vSC}, v{vG}")
        for i in range(1, 4):
            A(f"v_fmac_f32 v{vML + 1}, v{vSC + i}, v{vG + 4 * i}")
        A(f"v_mov_b32 v{vML + 2}, 0")
        A(f"v_mov_b32 v{vML + 3}, 0")
        k.tag4(vML)
        A("s_mov_b64 exec, 15")
        A(f"global_store_dwordx4 v{vL16}, {vr(vML, 4)}, s[42:43] offset:{B_ML}")
        A("s_mov_b64 exec, -1")
        k.label(skipml)
        ml_loads = [f"global_load_dwordx4 {vr(vG + 16, 4)}, v{vH2 + 2}, s[44:45] offset:{B_ML} sc1",
                    f"global_load_dwordx4 {vr(vG + 20, 4)}, v{vH2 + 3}, s[44:45] offset:{B_ML} sc1"]
        if o["mlpre"] and o["mlsep"]:
            for l_ in ml_loads:
                A(l_)
        A.stamp(4)
        k.lds_wait(F_V, 1, t4)
        A.stamp(5)
        for ks in range(4):
            for t in range(2):
                for hf in range(2):
                    A(f"ds_read_b64_tr_b16 {vr(vKF + 8 * ks + 4 * t + 2 * hf, 2)}, v{vTR256 + t} offset:{VL + ks * 8192 + hf * 4096}")
        vO = vW
        for ks in range(4):
            A(f"s_waitcnt lgkmcnt({12 - 4 * ks})")
            A(f"v_mfma_f32_16x16x32_bf16 {vr(vO + 4 * ks, 4)}, {vr(vKF + 8 * ks, 4)}, {vr(vB + 4 * ks, 4)}, 0")
            A(f"v_mfma_f32_16x16x32_bf16 {vr(vG + 4 * ks, 4)}, {vr(vKF + 8 * ks + 4, 4)}, {vr(vB + 4 * ks, 4)}, 0")
        for ks in range(4):
            for i in range(4):
                A(f"v_cndmask_b32 v{vO + 4 * ks + i}, v{vO + 4 * ks + i}, v{vG + 4 * ks + i}, s[72:73]")
            for i in range(4):
                if ks == 0:
                    A(f"v_mul_f32 v{vD + i}, v{vSC}, v{vO + i}")
                else:
                    A(f"v_fmac_f32 v{vD + i}, v{vSC + ks}, v{vO + 4 * ks + i}")
    else:
        A(f"ds_write_b32 v{vMXw}, v{t0}")
        k.lds_signal(F_M)
        A(f"s_mov_b32 s8, {LOG2E:#x}")
        for i in range(8):
            A(f"v_mul_f32 v{vF + i}, s8, v{vF + i}")
        k.lds_wait(F_M, 4, t4, [f"ds_read_b128 {vr(vG + 4 * i, 4)}, v{vMXr} offset:{16 * i}" for i in range(4)])
        A.stamp(4, 2)
        vML = V("ml", 4)
        vM = vML
        A(f"v_max3_f32 v{vM}, v{vG}, v{vG + 1}, v{vG + 2}")
        A(f"v_max3_f32 v{t1}, v{vG + 3}, v{vG + 4}, v{vG + 5}")
        A(f"v_max3_f32 v{t2}, v{vG + 6}, v{vG + 7}, v{vG + 8}")
        A(f"v_max3_f32 v{t3}, v{vG + 9}, v{vG + 10}, v{vG + 11}")
        A(f"v_max3_f32 v{vM}, v{vM}, v{vG + 12}, v{vG + 13}")
        A(f"v_max3_f32 v{t1}, v{t1}, v{vG + 14}, v{vG + 15}")
        A(f"v_max3_f32 v{vM}, v{vM}, v{t1}, v{t2}")
        A(f"v_max_f32 v{vM}, v{vM}, v{t3}")
        A(f"v_mul_f32 v{t1}, s8, v{vM}")
        for i in range(8):
            A(f"v_sub_f32 v{vF + i}, v{vF + i}, v{t1}")
        for i in range(8):
            A(f"v_exp_f32 v{vF + i}, v{vF + i}")
        for i in range(4):
            A(f"v_cvt_pk_bf16_f32 v{vX + i}, v{vF + 2 * i}, v{vF + 2 * i + 1}")
        A(f"v_add_u32 v{t1}, {PF}, v{vWL}")
        A(f"ds_write_b128 v{t1}, {vr(vX, 4)}")
        A(f"v_add_f32 v{t0}, v{vF}, v{vF + 1}")
        for i in range(2, 8):
            A(f"v_add_f32 v{t0}, v{t0}, v{vF + i}")
        A(f"ds_write_b32 v{vMXw}, v{t0} offset:{LS - MX}")
        k.lds_signal(F_P)
        k.lds_wait(F_P, 4, t4,
                   [f"ds_read_b128 {vr(vB + 4 * s, 4)}, v{vL16Q} offset:{PF - QF + s * 1024}" for s in range(4)] +
                   [f"ds_read_b128 {vr(vG + 4 * i, 4)}, v{vMXr} offset:{LS - MX + 16 * i}" for i in range(4)])
        A.stamp(5, 2)
        skipml = k.newlabel("skipml")
        A("s_cmp_lg_u32 s3, 0")
        A(f"s_cbranch_scc1 {skipml}")
        A(f"v_add_f32 v{vML + 1}, v{vG}, v{vG + 1}")
        for i in range(2, 16):
            A(f"v_add_f32 v{vML + 1}, v{vML + 1}, v{vG + i}")
        A(f"v_mov_b32 v{vML + 2}, 0")
        A(f"v_mov_b32 v{vML + 3}, 0")
        k.tag4(vML)
        A("s_mov_b64 exec, 15")
        A(f"global_store_dwordx4 v{vL16}, {vr(vML, 4)}, s[42:43] offset:{B_ML}")
        A("s_mov_b64 exec, -1")
        k.label(skipml)
        ml_loads = [f"global_load_dwordx4 {vr(vG + 16, 4)}, v{vH2 + 2}, s[44:45] offset:{B_ML} sc1",
                f"global_load_dwordx4 {vr(vG + 20, 4)}, v{vH2 + 3}, s[44:45] offset:{B_ML} sc1"]
        if o["mlpre"] and o["mlsep"]:
            for l_ in ml_loads:
                A(l_)
        A.stamp(4)
        k.lds_wait(F_V, 1, t4)
        A.stamp(5)
        for ks in range(4):
            for t in range(2):
                for hf in range(2):
                    A(f"ds_read_b64_tr_b16 {vr(vKF + 8 * ks + 4 * t + 2 * hf, 2)}, v{vTR256 + t} offset:{VL + ks * 8192 + hf * 4096}")
        for ks in range(4):
            A(f"s_waitcnt lgkmcnt({12 - 4 * ks})")
            for t in range(2):
                A(f"v_mfma_f32_16x16x32_bf16 {vr(vD + 4 * t, 4)}, {vr(vKF + 8 * ks + 4 * t, 4)}, {vr(vB + 4 * ks, 4)}, {'0' if ks == 0 else vr(vD + 4 * t, 4)}")
        for i in range(4):
            A(f"v_cndmask_b32 v{vD + i}, v{vD + i}, v{vD + 4 + i}, s[72:73]")
    k.tag4(vD)
    A("s_mov_b64 exec, s[70:71]")
    A(f"global_store_dwordx4 v{vP2a}, {vr(vD, 4)}, s[42:43] offset:{B_P2}")
    A("s_mov_b64 exec, 1")
    A(f"global_store_byte v{vHs2}, v{vHB}, s[14:15]")
    A("s_mov_b64 exec, -1")
    A.stamp(6)
    m1, l1, m2, l2 = vG + 16, vG + 17, vG + 20, vG + 21

    def ml_weights():
        A(f"v_and_b32 v{m1}, 0xffffff00, v{m1}")
        A(f"v_and_b32 v{m2}, 0xffffff00, v{m2}")
        A(f"v_max_f32 v{t0}, v{m1}, v{m2}")
        k.allreduce16("v_max_f32", [t0])
        A(f"s_mov_b32 s8, {LOG2E:#x}")
        A(f"v_sub_f32 v{m1}, v{m1}, v{t0}")
        A(f"v_sub_f32 v{m2}, v{m2}, v{t0}")
        A(f"v_mul_f32 v{m1}, s8, v{m1}")
        A(f"v_mul_f32 v{m2}, s8, v{m2}")
        A(f"v_exp_f32 v{m1}, v{m1}")
        A(f"v_exp_f32 v{m2}, v{m2}")
        A(f"v_mul_f32 v{t1}, v{m1}, v{l1}")
        A(f"v_fmac_f32 v{t1}, v{m2}, v{l2}")
        k.allreduce16("v_add_f32", [t1])
        A(f"v_rcp_f32 v{t1}, v{t1}")
        A(f"v_mul_f32 v{m1}, v{t1}, v{m1}")
        A(f"v_mul_f32 v{m2}, v{t1}, v{m2}")
    if o["mlsep"]:
        k.poll(ml_loads, [vG + 16, vG + 20], vAcc, True, preissued=bool(o["mlpre"]), first_wait=2 if o["mlpre"] else 0)
        A.stamp(1, 1)
        ml_weights()
    if o["hint2"]:
        if o["NH2"]:
            k.hint_ring("hr2", vHr2, 0, [vRing + 16 + i for i in range(o["NH2"])], "s_mov_b64 exec, 0xff", gap=1)
        else:
            k.hint_wait(vHr2, 0, t4)
    A.stamp(2, 1)

    def hook3():
        k.lds_signal(F_G2)
        k.lds_wait(F_WO, 1, t4)
        for ks in range(4):
            for hf in range(2):
                A(f"ds_read_b64_tr_b16 {vr(vW + 4 * ks + 2 * hf, 2)}, v{vTR128} offset:{WOL - WQL + ks * 4096 + hf * 2048}")
    if o["mlsep"]:
        k.poll(h2_loads, [vG, vG + 4, vG + 8, vG + 12], vAcc, True, hook=hook3)
    else:
        k.poll(ml_loads + h2_loads, [vG + 16, vG + 20, vG, vG + 4, vG + 8, vG + 12], vAcc, True, hook=hook3)
        ml_weights()
    A.stamp(7)
    for i in range(8):
        A(f"v_mul_f32 v{vG + i}, v{m1}, v{vG + i}")
    for i in range(8):
        A(f"v_fmac_f32 v{vG + i}, v{m2}, v{vG + 8 + i}")
    k.allreduce16("v_add_f32", list(range(vG, vG + 8)))
    for i in range(4):
        A(f"v_cvt_pk_bf16_f32 v{vX + i}, v{vG + 2 * i}, v{vG + 2 * i + 1}")
    A("s_mov_b64 exec, s[68:69]")
    A(f"ds_write_b128 v{vOFw}, {vr(vX, 4)}")
    k.lds_signal(F_O)
    k.lds_wait(F_O, 4, t4, [f"ds_read_b128 {vr(vB + 4 * ks, 4)}, v{vQ16} offset:{ks * 64}" for ks in range(4)])
    for ks in range(4):
        A(f"v_mfma_f32_16x16x32_bf16 {vr(vD, 4)}, {vr(vW + 4 * ks, 4)}, {vr(vB + 4 * ks, 4)}, {'0' if ks == 0 else vr(vD, 4)}")
    k.tag4(vD)
    A("s_mov_b64 exec, s[68:69]")
    A(f"global_store_dwordx4 v{vP3a}, {vr(vD, 4)}, s[52:53] sc1")
    A("s_mov_b64 exec, -1")
    A.stamp(8)
    A("s_cmp_eq_u32 s4, 7")
    A("s_cbranch_scc1 L_final")

    vW13 = vKF
    vW2 = vKF + 16

    def hook4():
        k.lds_wait(F_W13, 1, t4)
        for mat, base in enumerate((W1L, W3L)):
            for ks in range(2):
                for hf in range(2):
                    A(f"ds_read_b64_tr_b16 {vr(vW13 + 8 * mat + 4 * ks + 2 * hf, 2)}, v{vTR128} offset:{base - WQL + ks * 4096 + hf * 2048}")
        k.lds_wait(F_W2, 1, t4)
        for u in range(2):
            for hf in range(2):
                A(f"ds_read_b64_tr_b16 {vr(vW2 + 4 * u + 2 * hf, 2)}, v{vTW2 + u} offset:{hf * 4096}")
    if o["ptc"]:
        A(f"global_load_dword v{vJunk}, v{vH4}, s[44:45] offset:{B_ST} sc1")
        A(f"global_load_dword v{vJunk}, v{vH4 + 1}, s[44:45] offset:{B_P4} sc1")
    if o["ptp"]:
        skp = k.newlabel("skp")
        A("s_cmp_ge_u32 s3, 2")
        A(f"s_cbranch_scc1 {skp}")
        A("s_cmp_eq_u32 s3, 0")
        A("s_cselect_b32 exec_lo, 0xff000000, -1")
        A(f"global_store_dwordx4 v{vWL}, {vr(vZ, 4)}, s[42:43]")
        A("s_mov_b64 exec, -1")
        k.label(skp)

    def h3_issue(s):
        A(f"global_load_dwordx4 {vr(vRing + 8 * s, 4)}, v{vH3}, s[52:53] sc1")
        A(f"global_load_dwordx4 {vr(vRing + 8 * s + 4, 4)}, v{vH3 + 1}, s[52:53] sc1")

    def h3_ok(s):
        for i in range(4):
            A(f"v_add_f32 v{vG + i}, v{vRing + 8 * s + i}, v{vRing + 8 * s + 4 + i}")
    if o["L3"]:
        A(f"s_sleep {o['L3']}")
    k.ring_poll("h3", o["N3"], h3_issue, lambda s: [vRing + 8 * s, vRing + 8 * s + 4], 2, vAcc, False, o["G3"], h3_ok, hook=hook4, pace=o["P3S"])
    A.stamp(9)
    k.allreduce16("v_add_f32", list(range(vG, vG + 4)))
    for i in range(2):
        k.round_bf16_pair(vG + 2 * i, vG + 2 * i + 1, vG + 2 * i, vG + 2 * i + 1, t0 + i)
    for i in range(4):
        A(f"v_add_f32 v{vG + i}, v{vG + i}, v{vXF + i}")
    for i in range(2):
        A(f"v_cvt_pk_bf16_f32 v{vX + i}, v{vG + 2 * i}, v{vG + 2 * i + 1}")
    A("s_mov_b64 exec, s[68:69]")
    A(f"ds_write_b64 v{vHFw}, {vr(vX, 2)}")
    k.lds_signal(F_H)
    k.lds_wait(F_H, 4, t4,
               [f"ds_read_b128 {vr(vB + 4 * ks, 4)}, v{vHFb} offset:{ks * 64}" for ks in range(2)] +
               [f"ds_read_b128 {vr(vB + 8 + 4 * ks, 4)}, v{vHFa} offset:{ks * 64}" for ks in range(2)])
    vS = vML
    for ks in range(2):
        A(f"v_mfma_f32_16x16x32_bf16 {vr(vS, 4)}, {vr(vB + 8 + 4 * ks, 4)}, {vr(vB + 4 * ks, 4)}, {'0' if ks == 0 else vr(vS, 4)}")
        A(f"v_mfma_f32_16x16x32_bf16 {vr(vD, 4)}, {vr(vW13 + 4 * ks, 4)}, {vr(vB + 4 * ks, 4)}, {'0' if ks == 0 else vr(vD, 4)}")
        A(f"v_mfma_f32_16x16x32_bf16 {vr(vD + 4, 4)}, {vr(vW13 + 8 + 4 * ks, 4)}, {vr(vB + 4 * ks, 4)}, {'0' if ks == 0 else vr(vD + 4, 4)}")
    skipst = k.newlabel("skipst")
    A("s_cmp_lg_u32 s3, 0")
    A(f"s_cbranch_scc1 {skipst}")
    A("s_nop 3")
    A(f"v_mov_b32_dpp v{vS + 1}, v{vS} row_shl:1 {DPPM}")
    k.tag4(vS)
    A("s_mov_b64 exec, 1")
    A(f"global_store_dwordx4 v{vL16}, {vr(vS, 4)}, s[42:43] offset:{B_ST}")
    A("s_mov_b64 exec, -1")
    k.label(skipst)
    A("s_nop 5")
    for i in range(4):
        A(f"v_cndmask_b32 v{vD + i}, v{vD + i}, v{vD + 4 + i}, s[76:77]")
    k.tag4(vD)
    A("s_mov_b64 exec, s[74:75]")
    A(f"global_store_dwordx4 v{vP4a}, {vr(vD, 4)}, s[42:43] offset:{B_P4}")
    A("s_mov_b64 exec, 1")
    A(f"global_store_byte v{vHs4}, v{vHB}, s[14:15] offset:512")
    A("s_mov_b64 exec, -1")
    A.stamp(10)
    for i in range(4):
        A(f"v_mov_b32 v{vZ + i}, 0")
    k.tag4(vZ)
    A("s_lshl_b32 s8, s3, 4")
    A(f"v_mov_b32 v{t7}, s8")
    if o["hint4"]:
        k.hint_wait(vHr4, 512, t4)
    A.stamp(4, 1)
    k.poll([f"global_load_dwordx4 {vr(vG + 4, 4)}, v{vH4}, s[44:45] offset:{B_ST} sc1",
            f"global_load_dwordx4 {vr(vG, 4)}, v{vH4 + 1}, s[44:45] offset:{B_P4} sc1"],
           [vG + 4, vG], vAcc, True)
    A.stamp(11)
    sq, sm = vG + 4, vG + 5
    for md in ("quad_perm:[1,0,3,2]", "quad_perm:[2,3,0,1]", "row_half_mirror"):
        for r_ in (sm, sq):
            A(f"v_add_f32_dpp v{r_}, v{r_}, v{r_} {md} {DPPM}")
    k.ln_scalars(sm, sq)
    A(f"v_sub_f32 v{sm}, 0, v{sm}")
    A(f"v_cndmask_b32 v{sm}, v{sm}, 1.0, s[70:71]")
    for i in range(4):
        A(f"v_mul_f32 v{vG + i}, v{sm}, v{vG + i}")
    A(f"v_cndmask_b32 v{t0}, v{vG + 1}, v{vG}, s[66:67]")
    A(f"v_cndmask_b32 v{t1}, v{vG + 3}, v{vG + 2}, s[66:67]")
    A(f"v_cndmask_b32 v{t2}, v{vG}, v{vG + 1}, s[66:67]")
    A(f"v_cndmask_b32 v{t3}, v{vG + 2}, v{vG + 3}, s[66:67]")
    A(f"v_add_f32_dpp v{t2}, v{t0}, v{t2} quad_perm:[1,0,3,2] {DPPM}")
    A(f"v_add_f32_dpp v{t3}, v{t1}, v{t3} quad_perm:[1,0,3,2] {DPPM}")
    A(f"v_cndmask_b32 v{t0}, v{t3}, v{t2}, s[76:77]")
    A(f"v_cndmask_b32 v{t1}, v{t2}, v{t3}, s[76:77]")
    A(f"v_add_f32_dpp v{t1}, v{t0}, v{t1} quad_perm:[2,3,0,1] {DPPM}")
    A(f"v_add_f32_dpp v{t1}, v{t1}, v{t1} row_ror:4 {DPPM}")
    A(f"v_add_f32_dpp v{t1}, v{t1}, v{t1} row_ror:8 {DPPM}")
    A(f"v_mul_f32 v{t1}, v{sq}, v{t1}")
    k.round_bf16(t1, t1)
    A(f"v_mov_b32 v{t0}, v{t1}")
    A(f"v_permlane16_swap_b32 v{t1}, v{t0}")
    A(f"s_mov_b32 s8, {LOG2E | 0x80000000:#x}")
    A(f"v_mul_f32 v{t2}, s8, v{t1}")
    A(f"v_exp_f32 v{t2}, v{t2}")
    A(f"v_add_f32 v{t2}, 1.0, v{t2}")
    A(f"v_rcp_f32 v{t2}, v{t2}")
    A(f"v_mul_f32 v{t2}, v{t2}, v{t1}")
    k.round_bf16(t2, t2)
    A(f"v_mul_f32 v{t2}, v{t2}, v{t0}")
    A(f"v_cvt_pk_bf16_f32 v{t2}, v{t2}, v{t2}")
    A("s_mov_b32 exec_lo, 15")
    A("s_mov_b32 exec_hi, 15")
    A(f"ds_write_b16 v{vHHw}, v{t2}")
    k.lds_signal(F_HH)
    k.lds_wait(F_HH, 4, t4, [f"ds_read_b128 {vr(vB, 4)}, v{vHHr}"])
    for u in range(2):
        A(f"v_mfma_f32_16x16x32_bf16 {vr(vD + 4 * u, 4)}, {vr(vW2 + 4 * u, 4)}, {vr(vB, 4)}, 0")
    A("s_mov_b64 exec, 1")
    A(f"global_store_dwordx4 v{t7}, {vr(vZ, 4)}, s[42:43] offset:{B_ACK}")
    A("s_mov_b64 exec, s[0:1]")
    for i in range(4):
        A(f"v_cndmask_b32 v{vD + i}, v{vD + i}, v{vD + 4 + i}, s[66:67]")
    k.tag4(vD)
    A(f"global_store_dwordx4 v{vP5a}, {vr(vD, 4)}, s[54:55] sc1")
    A("s_mov_b64 exec, -1")
    A.stamp(5, 1)
    A("s_cmp_lg_u32 s3, 0")
    A("s_cbranch_scc1 L_stamp_end")
    A(f"s_mul_i32 s8, s9, {2 * BS}")
    A(f"v_lshrrev_b32 v{t0}, 3, v{vLane}")
    A(f"v_and_b32 v{t0}, 3, v{t0}")
    A(f"v_lshlrev_b32 v{t0}, 3, v{t0}")
    A(f"v_bfe_u32 v{t1}, v{vLane}, 2, 1")
    A(f"v_add_u32 v{t0}, v{t0}, v{t1}")
    A(f"v_mul_u32_u24 v{t0}, {BS}, v{t0}")
    A(f"v_and_b32 v{t1}, 3, v{vLane}")
    A(f"v_lshl_add_u32 v{t0}, v{t1}, 4, v{t0}")
    A(f"v_add_u32 v{t0}, s8, v{t0}")
    A("s_mov_b32 exec_hi, 0")
    A("s_mov_b32 s61, 0")
    k.label("L_ack")
    A(f"global_load_dwordx4 {vr(vG, 4)}, v{t0}, s[40:41] offset:{B_ACK} sc1")
    A("s_waitcnt vmcnt(0)")
    k.check(vAcc, [vG])
    A(f"v_cmp_ne_u32 vcc, 0, v{vAcc}")
    A("s_cbranch_vccz L_stamp_end0")
    A("s_sleep 2")
    A("s_add_u32 s61, s61, 1")
    A(f"s_cmp_lt_u32 s61, {POLL_LIMIT}")
    A("s_cbranch_scc1 L_ack")
    A("s_call_b64 s[64:65], L_panic")
    A("s_branch L_stamp_end0")

    k.label("L_final")
    A("s_lshr_b32 s8, s5, 2")
    A("s_lshl_b32 s8, s8, 14")
    A("s_and_b32 s10, s5, 3")
    A("s_lshl_b32 s10, s10, 7")
    A("s_add_u32 s8, s8, s10")
    A("s_lshl_b32 s10, s3, 4")
    A("s_add_u32 s8, s8, s10")
    A(f"v_lshlrev_b32 v{t1}, 9, v{vLane}")
    A(f"v_add_u32 v{t1}, s8, v{t1}")
    for i in range(8):
        A(f"v_mov_b32 v{vG + i}, 0")
    if o["L7"]:
        A(f"s_sleep {o['L7']}")
    A("s_mov_b32 exec_hi, 0")
    k.poll([f"global_load_dwordx4 {vr(vG, 4)}, v{t1}, s[52:53] sc1"], [vG], vAcc, False)
    A("s_mov_b64 exec, -1")
    A.stamp(9)
    k.reduce64_to_lane63(list(range(vG, vG + 4)))
    for i in range(2):
        k.round_bf16_pair(vG + 2 * i, vG + 2 * i + 1, vG + 2 * i, vG + 2 * i + 1, t0)
    for i in range(4):
        A(f"v_add_f32 v{vF + i}, v{vG + i}, v{vXF + i}")
    for i in range(2):
        k.round_bf16_pair(vF + 2 * i, vF + 2 * i + 1, vF + 2 * i, vF + 2 * i + 1, t0)
    A("s_mul_i32 s8, s9, 28672")
    A("s_lshl_b32 s10, s7, 6")
    A("s_add_u32 s8, s8, s10")
    A("s_lshl_b32 s10, s3, 4")
    A("s_add_u32 s8, s8, s10")
    A(f"v_lshlrev_b32 v{t1}, 9, v{vLane}")
    A(f"v_add_u32 v{t1}, s8, v{t1}")
    A("s_lshl_b32 s8, s5, 5")
    A("s_lshl_b32 s10, s3, 3")
    A("s_add_u32 s8, s8, s10")
    A(f"v_mov_b32 v{t2}, s8")
    A("s_mov_b32 exec_hi, 0x00ffffff")
    def h5_issue(s):
        A(f"global_load_dwordx4 {vr(vRing + 4 * s, 4)}, v{t1}, s[54:55] sc1")

    def h5_ok(s):
        for i in range(4):
            A(f"v_mov_b32 v{vG + 4 + i}, v{vRing + 4 * s + i}")
    if o["L5"]:
        A(f"s_sleep {o['L5']}")
    k.ring_poll("h5", o["N3"], h5_issue, lambda s: [vRing + 4 * s], 1, vAcc, False, o["G3"], h5_ok, pace=o["P5S"])
    A("s_mov_b64 exec, -1")
    A.stamp(11)
    k.reduce64_to_lane63(list(range(vG + 4, vG + 8)))
    for i in range(2):
        k.round_bf16_pair(vG + 4 + 2 * i, vG + 5 + 2 * i, vG + 4 + 2 * i, vG + 5 + 2 * i, t0 + i)
    for i in range(4):
        A(f"v_add_f32 v{vF + i}, v{vG + 4 + i}, v{vF + i}")
    for i in range(2):
        A(f"v_cvt_pk_bf16_f32 v{vX + i}, v{vF + 2 * i}, v{vF + 2 * i + 1}")
    A("s_mov_b32 exec_lo, 0")
    A("s_mov_b32 exec_hi, 0x80000000")
    A(f"global_store_dwordx2 v{t2}, {vr(vX, 2)}, s[34:35]")
    A("s_or_b32 s8, s5, s3")
    A("s_cmp_lg_u32 s8, 0")
    A("s_cbranch_scc1 L_stamp_end0")
    A(f"v_mov_b32 v{t0}, 0")
    A(f"v_mov_b32 v{t1}, s13")
    A(f"global_store_dword v{t0}, v{t1}, s[38:39]")
    k.label("L_stamp_end0")
    A("s_mov_b64 exec, -1")
    k.label("L_stamp_end")
    if dbgtime:
        A("s_cmp_lg_u32 s4, 7")
        A("s_cbranch_scc1 L_end")
        A("s_and_b32 s8, s5, 3")
        A("s_or_b32 s8, s8, s3")
        A("s_cmp_lg_u32 s8, 0")
        A("s_cbranch_scc1 L_end")
        A("s_memrealtime s[98:99]")
        A("s_waitcnt lgkmcnt(0)")
        A("s_not_b32 s96, s96")
        A(f"v_mov_b32 v{t0}, 0")
        A(f"v_mov_b32 v{t1}, s96")
        A(f"v_mov_b32 v{t2}, s98")
        A("s_mov_b64 exec, 1")
        A(f"global_atomic_umax v{t0}, v{t1}, s[36:37]")
        A(f"global_atomic_umax v{t0}, v{t2}, s[36:37] offset:4")
    if stamps:
        A("s_memrealtime s[76:77]")
        A("s_waitcnt lgkmcnt(0)")
        A("s_lshl_b32 s8, s2, 3")
        A("s_add_u32 s8, s8, s3")
        A("s_lshl_b32 s8, s8, 6")
        A(f"s_add_u32 s8, s8, {WS_STAMP}")
        A(f"v_mov_b32 v{t0}, s8")
        for i in range(12):
            A(f"v_mov_b32 v{vG + i}, {'s%d' % (78 + 2 * i) if i in stamps else 0}")
        A(f"v_mov_b32 v{vG + 12}, s76")
        A("s_mov_b64 exec, 1")
        for q in range(4):
            A(f"global_store_dwordx4 v{t0}, {vr(vG + 4 * q, 4)}, s[38:39] offset:{q * 16}")
        A("s_mov_b64 exec, 0xffff")
        A(f"s_add_u32 s8, s8, {0x40000}")
        A(f"v_add_u32 v{t0}, s8, v{vL4}")
        A(f"global_store_dword v{t0}, v{k.vCnt}, s[38:39]")
    A("s_endpgm")

    k.label("L_loader")
    a0, a1, a2, a3, b0, b1, cwq, cwo, cw13, d0, d1 = [vG + i for i in range(11)]
    A(f"v_and_b32 v{t0}, 7, v{vLane}")
    A(f"v_lshlrev_b32 v{t1}, 1, v{vQd}")
    A(f"v_xor_b32 v{t0}, v{t0}, v{t1}")
    A(f"v_lshlrev_b32 v{t0}, 4, v{t0}")
    A(f"v_bfe_u32 v{t2}, v{vLane}, 3, 2")
    A(f"v_lshrrev_b32 v{t3}, 5, v{vLane}")
    A(f"v_lshl_add_u32 v{t2}, v{t3}, 3, v{t2}")
    A(f"v_lshl_add_u32 v{cwq}, v{t2}, 13, v{t0}")
    A("s_lshr_b32 s7, s5, 3")
    A("s_and_b32 s8, s5, 7")
    A("s_lshl_b32 s9, s7, 20")
    A("s_lshl_b32 s10, s4, 10")
    A("s_add_u32 s9, s9, s10")
    A("s_lshl_b32 s10, s8, 7")
    A("s_add_u32 s9, s9, s10")
    A("s_add_u32 s52, s22, s9"); A("s_addc_u32 s53, s23, 0")

    pre_rest = []
    P = pre_rest.append
    P(f"v_lshrrev_b32 v{t1}, 3, v{vLane}")
    P(f"v_lshl_add_u32 v{cwo}, v{t1}, 10, v{t0}")
    P(f"v_mul_u32_u24 v{cw13}, 3584, v{t1}")
    P(f"v_add_u32 v{cw13}, v{cw13}, v{t0}")
    P(f"v_xor_b32 v{t0}, v{vR}, v{vQd}")
    P(f"v_lshlrev_b32 v{t1}, 8, v{vQd}")
    P(f"v_lshl_add_u32 v{a0}, v{t0}, 4, v{t1}")
    P(f"v_xor_b32 v{a1}, 64, v{a0}")
    P(f"v_xor_b32 v{a2}, 128, v{a0}")
    P(f"v_xor_b32 v{a3}, 192, v{a0}")
    P(f"v_lshlrev_b32 v{t0}, 1, v{vQd}")
    P(f"v_xor_b32 v{t0}, v{vR}, v{t0}")
    P(f"v_lshl_add_u32 v{b0}, v{t0}, 4, v{t1}")
    P(f"v_xor_b32 v{b1}, 128, v{b0}")
    P(f"v_lshlrev_b32 v{t1}, 10, v{vQd}")
    P(f"v_lshl_add_u32 v{d0}, v{t0}, 4, v{t1}")
    P(f"v_xor_b32 v{d1}, 128, v{d0}")
    P("s_lshl_b32 s6, s4, 24")
    P("s_lshl_b32 s9, s5, 15")
    P("s_add_u32 s6, s6, s9")
    P(f"s_add_u32 s6, s6, {61440 * 256}")
    P("s_add_u32 s40, s18, s6"); P("s_addc_u32 s41, s19, 0")
    P("s_add_u32 s42, s20, s6"); P("s_addc_u32 s43, s21, 0")
    P("s_lshl_b32 s6, s4, 2"); P("s_add_u32 s6, s6, s7")
    P("s_lshl_b32 s9, s6, 17"); P("s_lshl_b32 s10, s8, 7"); P("s_add_u32 s9, s9, s10")
    P("s_add_u32 s44, s24, s9"); P("s_addc_u32 s45, s25, 0")
    P(f"s_mul_i32 s9, s8, {64 * 3584}"); P("s_lshl_b32 s10, s6, 7"); P("s_add_u32 s9, s9, s10")
    P("s_add_u32 s46, s28, s9"); P("s_addc_u32 s47, s29, 0")
    P("s_add_u32 s48, s30, s9"); P("s_addc_u32 s49, s31, 0")
    P("s_lshl_b32 s9, s4, 18"); P("s_lshl_b32 s10, s8, 15"); P("s_add_u32 s9, s9, s10")
    P("s_lshl_b32 s10, s7, 8"); P("s_add_u32 s9, s9, s10")
    P("s_add_u32 s50, s32, s9"); P("s_addc_u32 s51, s33, 0")

    def seg_ops(name):
        ops = []
        if name == "q":
            prevk = 0
            for i in range(16):
                krow = (i >> 2) * 32 + (0, 16, 4, 20)[i & 3]
                pre = [f"s_mov_b32 m0, {WQL + i * 1024}"]
                d = (krow - prevk) * 8192
                if d > 0:
                    pre += [f"s_add_u32 s52, s52, {d}", "s_addc_u32 s53, s53, 0"]
                elif d < 0:
                    pre += [f"s_sub_u32 s52, s52, {-d}", "s_subb_u32 s53, s53, 0"]
                prevk = krow
                ops.append(pre + [f"global_load_lds_dwordx4 v{cwq}, s[52:53] nt"])
            return ops, F_WQ
        if name in "kv":
            base, sreg, regs, fl = (KL, 40, (a0, a1, a2, a3), F_K) if name == "k" else (VL, 42, (b0, b1, b0, b1), F_V)
            for i in range(32):
                pre = []
                if i % 4 == 0:
                    pre += [f"s_mov_b32 m0, {base + i * 1024}"]
                    if i:
                        pre += [f"s_add_u32 s{sreg}, s{sreg}, 4096", f"s_addc_u32 s{sreg + 1}, s{sreg + 1}, 0"]
                ops.append(pre + [f"global_load_lds_dwordx4 v{regs[i & 3]}, s[{sreg}:{sreg + 1}] offset:{(i & 3) * 1024} nt"])
            return ops, fl
        if name == "o":
            for i in range(16):
                pre = [f"s_mov_b32 m0, {WOL + i * 1024}"]
                if i:
                    pre += ["s_add_u32 s44, s44, 8192", "s_addc_u32 s45, s45, 0"]
                ops.append(pre + [f"global_load_lds_dwordx4 v{cwo}, s[44:45] nt"])
            return ops, F_WO
        if name == "a":
            for base, sreg in ((W1L, 46), (W3L, 48)):
                for i in range(8):
                    pre = [f"s_mov_b32 m0, {base + i * 1024}"]
                    if i:
                        pre += [f"s_add_u32 s{sreg}, s{sreg}, {8 * 3584}", f"s_addc_u32 s{sreg + 1}, s{sreg + 1}, 0"]
                    ops.append(pre + [f"global_load_lds_dwordx4 v{cw13}, s[{sreg}:{sreg + 1}] nt"])
            return ops, F_W13
        if name == "b":
            for i in range(8):
                pre = [f"s_mov_b32 m0, {W2L + i * 1024}"]
                if i:
                    pre += ["s_add_u32 s50, s50, 4096", "s_addc_u32 s51, s51, 0"]
                ops.append(pre + [f"global_load_lds_dwordx4 v{(d0, d1)[i & 1]}, s[50:51] nt"])
            return ops, F_W2

    def emit_loader(order, start_n=0, pend=None, n=0):
        pend = list(pend or [])

        def drain():
            for (last, f) in list(pend):
                A(f"s_waitcnt vmcnt({n - 1 - last})")
                k.lds_signal(f)
            pend.clear()
        for name, D in order:
            if name == "G":
                drain()
                k.lds_wait(F_G2, 4, t4, sleep=1)
                continue
            ops, fl = seg_ops(name)
            for op in ops:
                if o["TZ"] and n == 16 + o["TX"] and (15, F_WQ) in pend:
                    A(f"s_waitcnt vmcnt({o['TX']})")
                    k.lds_signal(F_WQ)
                    pend.remove((15, F_WQ))
                if o["TZ"] and n < 16 + o["TZ"] and n >= 16 + o["TX"]:
                    sk = k.newlabel("tz")
                    A("s_cmp_ge_u32 s11, 4")
                    A(f"s_cbranch_scc1 {sk}")
                    A(f"s_waitcnt vmcnt({o['DS'] - 1})")
                    if (15, F_WQ) in pend and n - o["DS"] >= 15:
                        k.lds_signal(F_WQ)
                        pend.remove((15, F_WQ))
                    A(f"ds_read_b32 v{t4}, v{k.vFlag} offset:{F_G1}")
                    A("s_waitcnt lgkmcnt(0)")
                    A(f"v_readfirstlane_b32 s11, v{t4}")
                    k.label(sk)
                if n >= D:
                    A(f"s_waitcnt vmcnt({D - 1})")
                    for (last, f) in list(pend):
                        if last <= n - D:
                            k.lds_signal(f)
                            pend.remove((last, f))
                for s_ in op:
                    A(s_)
                n += 1
            pend.append((n - 1, fl))
        drain()

    order = []
    for tok in o["order"].split(","):
        order.append((tok[0], int(tok[1:] or 0)))
    assert order[0][0] == "q"
    ops, fl = seg_ops("q")
    for op in ops:
        for s_ in op:
            A(s_)
    for s_ in pre_rest:
        A(s_)
    A("s_mov_b32 s11, 0")
    A("s_cmp_eq_u32 s4, 7")
    A("s_cbranch_scc1 L_loader7")
    k.in_loader = True
    emit_loader(order[1:], pend=[(15, F_WQ)], n=16)
    if stamps:
        A("s_waitcnt lgkmcnt(0)")
        A("s_lshl_b32 s8, s2, 3")
        A("s_add_u32 s8, s8, 4")
        A("s_lshl_b32 s8, s8, 6")
        A(f"s_add_u32 s8, s8, {WS_STAMP}")
        A(f"v_mov_b32 v{t0}, s8")
        for i in range(8):
            A(f"v_mov_b32 v{vG + 12 + i}, s{78 + 2 * i}")
        A("s_mov_b64 exec, 1")
        for q in range(2):
            A(f"global_store_dwordx4 v{t0}, {vr(vG + 12 + 4 * q, 4)}, s[38:39] offset:{q * 16}")
    A("s_endpgm")
    A(";;LOADER7")
    k.label("L_loader7")
    emit_loader([x for x in order[1:] if x[0] not in "abG"], pend=[(15, F_WQ)], n=16)
    k.label("L_end")
    A("s_endpgm")

    k.label("L_panic")
    A("s_mov_b64 s[100:101], exec")
    A("s_mov_b64 exec, -1")
    for i in range(4):
        A(f"global_load_dwordx4 {vr(vPT, 4)}, v{vL16}, s[42:43] offset:{i * 1024} sc1")
        A("s_waitcnt vmcnt(0)")
        A(f"global_store_dwordx4 v{vL16}, {vr(vPT, 4)}, s[48:49] offset:{i * 1024} sc1")
        A("s_waitcnt vmcnt(0)")
    A("s_xor_b32 s50, s40, s46")
    A("s_xor_b32 s51, s41, s47")
    A("s_add_u32 s62, s62, 1")
    A(f"s_cmp_ge_u32 s62, {PANIC_MAX}")
    A("s_cbranch_scc1 L_end")
    A("s_mov_b64 exec, s[100:101]")
    A("s_setpc_b64 s[64:65]")

    L = list(k.L)
    i0 = L.index("L_loader:"); i1 = L.index("    ;;LOADER7")
    ld = L[i0:i1]
    L = L[:i0] + L[i1:]
    ih = L.index("    ;;LOADER_HERE")
    L = L[:ih] + ld + L[ih + 1:]
    body = fix_hazards(L)
    body.append(f"    .fill (({NAME} + {CODE_PF_BYTES + 256} - .) >> 2) * ((({NAME} + {CODE_PF_BYTES + 256} - .) >> 63) + 1), 4, 0xbf810000")

    nv = (ra.next + 7) // 8 * 8
    tail = []
    tail.append('.section .rodata,"a"')
    tail.append(".p2align 6")
    tail.append(f".amdhsa_kernel {NAME}")
    tail.append(f"  .amdhsa_next_free_vgpr {nv}")
    tail.append("  .amdhsa_next_free_sgpr 102")
    tail.append(f"  .amdhsa_accum_offset {nv}")
    tail.append("  .amdhsa_group_segment_fixed_size 0")
    tail.append("  .amdhsa_kernarg_size 96")
    tail.append("  .amdhsa_user_sgpr_count 2")
    tail.append("  .amdhsa_user_sgpr_kernarg_segment_ptr 1")
    tail.append("  .amdhsa_system_sgpr_workgroup_id_x 1")
    tail.append(".end_amdhsa_kernel")
    return "\n".join(hdr + body + tail) + "\n"


if __name__ == "__main__":
    import argparse
    ap = argparse.ArgumentParser()
    ap.add_argument("-o", default="sequential_preLN__sliding_block_cached__glu_gated_swiglu__decode.s")
    ap.add_argument("--stamps", default="")
    ap.add_argument("--dbgtime", action="store_true")
    ap.add_argument("--opt", action="append", default=[])
    a = ap.parse_args()
    st = [int(x) for x in a.stamps.split(",")] if a.stamps else None
    opts = {}
    for kv in a.opt:
        kk, vv = kv.split("=")
        opts[kk] = int(vv) if vv.lstrip("-").isdigit() else vv
    open(a.o, "w").write(gen(st, a.dbgtime, **opts))
```

```python
import sys, os
sys.path.insert(0, os.path.dirname(os.path.abspath(__file__)))
from asmlib import fix_hazards, RegAlloc

NAME = "sequential_preLN__sliding_block_cached__glu_gated_swiglu__decode_kernel"

KL = 0
VL = 32768
WQL = 65536
WOL = 81920
W1L = 98304
W3L = 106496
W2L = 114688
XN = 122880
QF = 126976
PF = 131072
MX = 135168
LS = 136192
OF = 137216
HF = 137472
ONES = 137600
FLAGS = 137728
HH = 137984
LDS_BYTES = 138240
F_WQ, F_Q, F_M, F_P, F_O, F_H, F_K, F_V, F_WO, F_W13, F_W2, F_G2, F_HH, F_G1 = [4 * i for i in range(14)]

WS_STAMP = 0x10000
BS = 4224
WS_A = 0x100000
WS_B = 0x300000
WS_P3 = 0x500000
WS_P5 = 0x520000
WS_HINT = 0x540000
B_P1 = 0
B_ML = 256
B_ST = 384
B_ACK = 512
B_P4 = 1024
B_P2 = 2048

LOG2E = 0x3FB8AA3B
SCALE = 0x3DB504F3
EPS = 0x3727C5AC
INV512 = 0x3B000000

POLL_LIMIT = 512
HINT_LIMIT = 400
PANIC_MAX = 4000
LDS_SPIN_MAX = 1 << 24
CODE_PF_BYTES = 17408


def vr(b, n):
    return f"v[{b}:{b + n - 1}]" if n > 1 else f"v{b}"


def sr(b, n=2):
    return f"s[{b}:{b + n - 1}]"


DPPM = "row_mask:0xf bank_mask:0xf"


class K:
    def __init__(self, stamps, opts):
        self.L = []
        self.stamps = stamps
        self.o = opts
        self.uid = 0
        self.ncnt = 0

    def __call__(self, s):
        self.L.append("    " + s)

    def label(self, s):
        self.L.append(s + ":")

    def newlabel(self, p):
        self.uid += 1
        return f"L_{p}_{self.uid}"

    def stamp(self, idx, alt=0):
        if self.o.get("alt", 0) != alt and idx in (1, 2, 4, 5):
            return
        if self.stamps and idx in self.stamps:
            self(f"s_memrealtime {sr(78 + 2 * idx)}")

    def count(self):
        if self.stamps:
            self(f"v_writelane_b32 v{self.vCnt}, s61, {self.ncnt}")
            self.ncnt += 1

    def lds_wait(self, off, target, vtmp, extra_reads=(), sleep=None):
        lp = self.newlabel("lw")
        ok = self.newlabel("lwok")
        if sleep is None:
            sleep = self.o["lsleep"]
        ff = self.o["flagfirst"] and len(extra_reads) > 2
        if not ff:
            self(f"ds_read_b32 v{vtmp}, v{self.vFlag} offset:{off}")
            for r in extra_reads:
                self(r)
            self("s_waitcnt lgkmcnt(0)")
            self(f"v_cmp_le_u32 vcc, {target}, v{vtmp}")
            self(f"s_cbranch_vccnz {ok}")
        self(f"s_mov_b32 s63, {LDS_SPIN_MAX}")
        self.label(lp)
        if sleep and not ff:
            self(f"s_sleep {sleep}")
        self(f"ds_read_b32 v{vtmp}, v{self.vFlag} offset:{off}")
        self("s_sub_u32 s63, s63, 1")
        self("s_cbranch_scc1 L_end")
        self("s_waitcnt lgkmcnt(0)")
        self(f"v_cmp_le_u32 vcc, {target}, v{vtmp}")
        self(f"s_cbranch_vccz {lp}")
        if extra_reads:
            for r in extra_reads:
                self(r)
            self("s_waitcnt lgkmcnt(0)")
        self.label(ok)

    def lds_signal(self, off):
        if self.stamps and getattr(self, "in_loader", False):
            idx = {F_WQ: 1, F_K: 2, F_V: 3, F_WO: 4, F_W13: 5, F_W2: 6}[off]
            self(f"s_memrealtime {sr(78 + 2 * idx)}")
        self("s_mov_b64 exec, 1")
        self(f"ds_add_u32 v{self.vFlag}, v{self.vOne} offset:{off}")
        self("s_mov_b64 exec, -1")

    def tag4(self, b):
        for i in range(4):
            self(f"v_perm_b32 v{b + i}, v{b + i}, s56, v{self.vSel + i}")

    def check(self, acc, grans):
        first = True
        for b in grans:
            for i in range(4):
                self(f"v_msad_u8 v{acc}, v{b + i}, s{57 + i}, {'0' if first else 'v%d' % acc}")
                first = False

    def retry_tail(self, lp, toggle):
        nx = self.newlabel("pollnx")
        self("s_add_u32 s61, s61, 1")
        self(f"s_and_b32 s6, s61, {POLL_LIMIT - 1}")
        self(f"s_cbranch_scc1 {nx}")
        self("s_call_b64 s[64:65], L_panic")
        self.label(nx)
        if toggle:
            self("s_xor_b32 s44, s44, s50")
            self("s_xor_b32 s45, s45, s51")
        self(f"s_branch {lp}")

    def poll(self, loads, grans, acc, toggle, hook=None, preissued=False, first_wait=0):
        wt = self.newlabel("pollw")
        lp = self.newlabel("poll")
        ok = self.newlabel("pollok")
        self("s_mov_b32 s61, 0")
        if not preissued:
            for l in loads:
                self(l)
        if hook:
            hook()
        if first_wait:
            self(f"s_waitcnt vmcnt({first_wait})")
            self(f"s_branch {wt}2")
        self.label(wt)
        self("s_waitcnt vmcnt(0)")
        if first_wait:
            self.label(wt + "2")
        self.check(acc, grans)
        self(f"v_cmp_ne_u32 vcc, 0, v{acc}")
        self(f"s_cbranch_vccz {ok}")
        nx = self.newlabel("pollnx")
        self("s_add_u32 s61, s61, 1")
        self(f"s_and_b32 s6, s61, {POLL_LIMIT - 1}")
        self(f"s_cbranch_scc1 {nx}")
        self("s_call_b64 s[64:65], L_panic")
        self.label(nx)
        if toggle:
            self("s_xor_b32 s44, s44, s50")
            self("s_xor_b32 s45, s45, s51")
        if self.o.get("psleep", 0):
            self(f"s_sleep {self.o['psleep']}")
        for l in loads:
            self(l)
        self(f"s_branch {wt}")
        self.label(ok)
        self.count()

    def ring_poll(self, name, nsets, issue, grans, nld, acc, toggle, gap, on_ok, hook=None, filler=None, pace=0):
        issue(0)
        if filler:
            filler()
        for s_ in range(1, nsets):
            if gap and not (s_ == 1 and filler):
                self(f"s_sleep {gap}")
            issue(s_)
        if hook:
            hook()
        self("s_mov_b32 s61, 0")
        self.label(f"L_{name}")
        for s_ in range(nsets):
            self(f"s_waitcnt vmcnt({nld * (nsets - 1)})")
            self.check(acc, grans(s_))
            self(f"v_cmp_ne_u32 vcc, 0, v{acc}")
            self(f"s_cbranch_vccz L_{name}ok{s_}")
            if pace:
                self(f"s_sleep {pace}")
            issue(s_)
        self("s_add_u32 s61, s61, 1")
        self(f"s_and_b32 s6, s61, {POLL_LIMIT // 4 - 1}")
        self(f"s_cbranch_scc1 L_{name}nx")
        self("s_call_b64 s[64:65], L_panic")
        self.label(f"L_{name}nx")
        if toggle:
            self("s_xor_b32 s44, s44, s50")
            self("s_xor_b32 s45, s45, s51")
        self(f"s_branch L_{name}")
        for s_ in range(nsets):
            self.label(f"L_{name}ok{s_}")
            on_ok(s_)
            if s_ < nsets - 1:
                self(f"s_branch L_{name}done")
        self.label(f"L_{name}done")
        self.count()
        self("s_nop 1")

    def hint_ring(self, name, vaddr, off, vregs, nlanes_mask, filler=None, gap=None):
        n = len(vregs)
        self(nlanes_mask)
        self(f"global_load_dword v{vregs[0]}, v{vaddr}, s[14:15] offset:{off} sc1")
        if filler:
            self("s_mov_b64 exec, -1")
            filler()
            self(nlanes_mask)
        for i in range(1, n):
            self(f"s_sleep {self.o['HGAP'] if gap is None else gap}")
            self(f"global_load_dword v{vregs[i]}, v{vaddr}, s[14:15] offset:{off} sc1")
        self(f"s_mov_b32 s61, {HINT_LIMIT // n}")
        self.label(f"L_{name}")
        for i in range(n):
            self(f"s_waitcnt vmcnt({n - 1})")
            self(f"v_cmp_ne_u32 vcc, s12, v{vregs[i]}")
            self(f"s_cbranch_vccz L_{name}ok")
            self(f"global_load_dword v{vregs[i]}, v{vaddr}, s[14:15] offset:{off} sc1")
        self("s_sub_u32 s61, s61, 1")
        self(f"s_cbranch_scc0 L_{name}")
        self.label(f"L_{name}ok")
        self.count()
        self("s_mov_b64 exec, -1")

    def hint_wait(self, vaddr, off, vtmp):
        lp = self.newlabel("hint")
        ok = self.newlabel("hintok")
        self(f"s_mov_b32 s61, {HINT_LIMIT}")
        self("s_mov_b64 exec, 0xff")
        self.label(lp)
        self(f"global_load_dword v{vtmp}, v{vaddr}, s[14:15] offset:{off} sc1")
        self("s_waitcnt vmcnt(0)")
        self(f"v_cmp_ne_u32 vcc, s12, v{vtmp}")
        self(f"s_cbranch_vccz {ok}")
        if self.o.get("hsleep", 0):
            self(f"s_sleep {self.o['hsleep']}")
        self("s_sub_u32 s61, s61, 1")
        self(f"s_cbranch_scc0 {lp}")
        self.label(ok)
        self.count()
        self("s_mov_b64 exec, -1")

    def allreduce16(self, op, regs, steps=(1, 2, 4, 8)):
        for st in steps:
            for r in regs:
                self(f"{op}_dpp v{r}, v{r}, v{r} row_ror:{st} {DPPM}")

    def reduce64_to_lane63(self, regs):
        self.allreduce16("v_add_f32", regs)
        for r in regs:
            self(f"v_add_f32_dpp v{r}, v{r}, v{r} row_bcast:15 row_mask:0xa bank_mask:0xf")
        for r in regs:
            self(f"v_add_f32_dpp v{r}, v{r}, v{r} row_bcast:31 row_mask:0xc bank_mask:0xf")

    def round_bf16(self, dst, src):
        self(f"v_cvt_pk_bf16_f32 v{dst}, v{src}, v{src}")
        self(f"v_and_b32 v{dst}, 0xffff0000, v{dst}")

    def round_bf16_pair(self, d0, d1, s0, s1, tmp):
        self(f"v_cvt_pk_bf16_f32 v{tmp}, v{s0}, v{s1}")
        self(f"v_lshlrev_b32 v{d0}, 16, v{tmp}")
        self(f"v_and_b32 v{d1}, 0xffff0000, v{tmp}")

    def ln_scalars(self, sm, sq):
        self(f"s_mov_b32 s8, {INV512:#x}")
        self(f"v_mul_f32 v{sm}, s8, v{sm}")
        self(f"v_mul_f32 v{sq}, s8, v{sq}")
        self(f"v_fma_f32 v{sq}, -v{sm}, v{sm}, v{sq}")
        self(f"v_max_f32 v{sq}, 0, v{sq}")
        self.round_bf16(sq, sq)
        self(f"v_add_f32 v{sq}, {EPS:#x}, v{sq}")
        self.round_bf16(sq, sq)
        self(f"v_sqrt_f32 v{sq}, v{sq}")
        self.round_bf16(sm, sm)
        self.round_bf16(sq, sq)
        self(f"v_rcp_f32 v{sq}, v{sq}")


def gen(stamps=None, dbgtime=False, **opts):
    o = dict(NP=6, GAP=7, pf=1, order="q0,k16,v32,o16,a16,b16", ptc=0, ptp=0, ptx=0, ptf='nt', pff='', lsleep=0, PACE=8, pgt=1, flagfirst=1, GAP0=4, wl=1, TZ=0, DS=8, TX=8, mlsep=1, NH2=0, L3=0, P3S=0, L5=0, L7=0, P5S=0, hint1=1, NH=6, HGAP=4, mlpre=1, pxf='', xf='', wsoff=0, hint2=1, hint4=1, N3=5, G3=4)
    o.update(opts)
    k = K(stamps, o)
    A = k
    ra = RegAlloc(1, 256)
    V = ra.alloc
    NP = o["NP"]

    hdr = []
    hdr.append("; 256 workgroups (one per CU) x 5 waves: 4 compute waves + 1 LDS-DMA loader wave.")
    hdr.append(f"; @launch grid=(256,1,1) block=(320,1,1) lds={LDS_BYTES}")
    hdr.append('.amdgcn_target "amdgcn-amd-amdhsa--gfx950"')
    hdr.append(".text")
    hdr.append(f".globl {NAME}")
    hdr.append(".p2align 8")
    hdr.append(f".type {NAME},@function")
    hdr.append(f"{NAME}:")

    vLane = V("lane"); vR = V("r"); vQd = V("qd"); vL16 = V("l16")
    k.vFlag = V("flag"); k.vOne = V("one")
    t0 = V("t0"); t1 = V("t1"); t2 = V("t2"); t3 = V("t3"); t4 = V("t4"); t5 = V("t5"); t6 = V("t6"); t7 = V("t7")
    vJunk = V("junk")
    k.vCnt = V("cnt")
    vPT = V("panic", 4)

    A.stamp(0)
    if dbgtime:
        A("s_memrealtime s[96:97]")
    A("s_cmp_ge_u32 s2, 256")
    A("s_cbranch_scc1 L_end")
    A("s_load_dwordx16 s[16:31], s[0:1], 0")
    A("s_load_dwordx8 s[32:39], s[0:1], 64")
    if o["pf"]:
        A("s_getpc_b64 s[14:15]")
        A(f"v_lshlrev_b32 v{t0}, 7, v0")
        A(f"v_min_u32 v{t0}, {CODE_PF_BYTES - 128}, v{t0}")
        A(f"global_load_dword v{vJunk}, v{t0}, s[14:15] {o['pff']}")
    A(f"v_lshrrev_b32 v{t0}, 6, v0")
    A(f"v_and_b32 v{vLane}, 63, v0")
    A(f"v_readfirstlane_b32 s3, v{t0}")
    A("s_and_b32 s4, s2, 7")
    A("s_lshr_b32 s5, s2, 3")
    A(f"v_and_b32 v{vR}, 15, v{vLane}")
    A(f"v_lshrrev_b32 v{vQd}, 4, v{vLane}")
    A(f"v_lshlrev_b32 v{vL16}, 4, v{vLane}")
    A(f"v_mov_b32 v{k.vFlag}, {FLAGS}")
    A(f"v_mov_b32 v{k.vOne}, 1")
    A(f"v_lshlrev_b32 v{t0}, 2, v{vLane}")
    A(f"v_add_u32 v{t0}, {ONES}, v{t0}")
    A(f"v_mov_b32 v{t1}, 0")
    A(f"v_mov_b32 v{t2}, 0x3f803f80")
    A(f"ds_write_b32 v{t0}, v{t1} offset:{FLAGS - ONES}")
    A("s_mov_b32 exec_hi, 0")
    A(f"ds_write_b32 v{t0}, v{t2}")
    A("s_mov_b64 exec, -1")
    vX = V("x", 4)
    vXR = V("xr", 2)
    vZ = V("zero4", 4)
    k.vSel = V("sel", 4)
    A("s_waitcnt lgkmcnt(0)")
    if o["wsoff"]:
        A(f"s_add_u32 s38, s38, {o['wsoff'] << 20}")
        A("s_addc_u32 s39, s39, 0")
    A(f"global_load_dwordx4 {vr(vX, 4)}, v{vL16}, s[16:17] {o['xf']}")
    A("s_load_dword s56, s[38:39], 0")
    A("s_barrier")
    A("s_cmp_lg_u32 s3, 4")
    A("s_cbranch_scc1 L_compute")
    A(";;LOADER_HERE")
    k.label("L_compute")
    A("s_lshr_b32 s9, s5, 3")
    A("s_and_b32 s7, s5, 7")
    A("s_lshl_b32 s8, s7, 7")
    A("s_lshl_b32 s10, s3, 5")
    A("s_add_u32 s8, s8, s10")
    A(f"v_lshlrev_b32 v{t0}, 3, v{vQd}")
    A(f"v_add_u32 v{t0}, s8, v{t0}")
    A("s_lshl_b32 s8, s5, 5")
    A("s_lshl_b32 s10, s3, 3")
    A("s_add_u32 s8, s8, s10")
    A(f"v_mov_b32 v{t1}, s8")
    A("s_cmp_eq_u32 s4, 7")
    A("s_cselect_b64 s[10:11], -1, 0")
    A(f"v_cndmask_b32 v{t0}, v{t0}, v{t1}, s[10:11]")
    A(f"global_load_dwordx2 {vr(vXR, 2)}, v{t0}, s[16:17]")
    A(f"s_mul_i32 s8, s4, {32 * BS}")
    A(f"s_add_u32 s8, s8, {WS_A}")
    A("s_add_u32 s40, s38, s8")
    A("s_addc_u32 s41, s39, 0")
    A(f"s_mul_i32 s8, s5, {BS}")
    A("s_add_u32 s42, s40, s8")
    A("s_addc_u32 s43, s41, 0")
    for i in range(4):
        A(f"v_mov_b32 v{vZ + i}, 0")
    vWL = V("wl16")
    A("s_lshl_b32 s8, s3, 10")
    A(f"v_add_u32 v{vWL}, s8, v{vL16}")
    A(f"global_load_dword v{vJunk}, v{vWL}, s[42:43] {o['ptf']}")
    A(f"global_store_dwordx4 v{vWL}, {vr(vZ, 4)}, s[42:43]")
    A("s_lshl_b32 s8, s4, 11")
    A(f"s_add_u32 s8, s8, {WS_HINT}")
    A("s_add_u32 s14, s38, s8")
    A("s_addc_u32 s15, s39, 0")
    vL4 = V("l4")
    A(f"v_lshlrev_b32 v{vL4}, 2, v{vLane}")
    A(f"v_lshlrev_b32 v{t0}, 5, v{vLane}")
    A(f"global_load_dword v{vJunk}, v{t0}, s[14:15] {o['ptf']}")
    A("s_mov_b32 s44, s40")
    A("s_mov_b32 s45, s41")
    A(f"s_add_u32 s46, s40, {WS_B - WS_A}")
    A("s_addc_u32 s47, s41, 0")
    A(f"s_add_u32 s48, s42, {WS_B - WS_A}")
    A("s_addc_u32 s49, s43, 0")
    A("s_mov_b32 s50, 0")
    A("s_mov_b32 s51, 0")
    A(f"s_add_u32 s52, s38, {WS_P3}")
    A("s_addc_u32 s53, s39, 0")
    A(f"s_add_u32 s54, s38, {WS_P5}")
    A("s_addc_u32 s55, s39, 0")
    A("s_mov_b32 s62, 0")
    if o["ptx"]:
        A("s_lshl_b32 s8, s7, 5")
        A("s_lshl_b32 s10, s4, 2")
        A("s_add_u32 s8, s8, s10")
        A("s_add_u32 s8, s8, s9")
        A("s_mul_i32 s10, s9, 56")
        A("s_lshl_b32 s11, s4, 3")
        A("s_add_u32 s10, s10, s11")
        A("s_add_u32 s10, s10, s7")
        A(f"s_add_u32 s10, s10, {(WS_P5 - WS_P3) // 512}")
        A("s_cmp_eq_u32 s4, 7")
        A("s_cselect_b32 s10, s8, s10")
        A(f"v_mov_b32 v{t0}, s8")
        A(f"v_writelane_b32 v{t0}, s10, 1")
        A(f"v_lshlrev_b32 v{t0}, 9, v{t0}")
        A("s_lshl_b32 s8, s3, 7")
        A(f"v_add_u32 v{t0}, s8, v{t0}")
        A("s_mov_b64 exec, 3")
        A(f"global_load_dword v{vJunk}, v{t0}, s[52:53] {o['pxf']}")
        if o["pgt"] == 1:
            A(f"global_load_dword v{vJunk}, v{vZ}, s[34:35] nt")
        A("s_mov_b64 exec, -1")
    for i in range(4):
        A(f"v_mov_b32 v{k.vSel + i}, {0x07060500 + i:#x}")
    vRR = V("rr"); vCC = V("cc")
    A(f"v_lshrrev_b32 v{vRR}, 2, v{vR}")
    A(f"v_and_b32 v{vCC}, 3, v{vLane}")
    A(f"v_cmp_eq_u32 s[68:69], 0, v{vR}")
    A(f"v_cmp_gt_u32 s[70:71], 8, v{vR}")
    A(f"v_cmp_eq_u32 s[72:73], 1, v{vRR}")
    A(f"v_cmp_gt_u32 s[74:75], 4, v{vR}")
    A(f"v_and_b32 v{t0}, 2, v{vR}")
    A(f"v_cmp_ne_u32 s[76:77], 0, v{t0}")
    A(f"v_and_b32 v{t0}, 1, v{vR}")
    A(f"v_cmp_ne_u32 s[66:67], 0, v{t0}")
    vTR128 = V("tr128")
    A(f"v_lshl_add_u32 v{t0}, v{vQd}, 2, v{vRR}")
    A(f"v_lshlrev_b32 v{vTR128}, 7, v{t0}")
    A(f"v_bfe_u32 v{t1}, v{t0}, 1, 2")
    A(f"v_lshlrev_b32 v{t1}, 1, v{t1}")
    A(f"v_lshrrev_b32 v{t2}, 1, v{vCC}")
    A("s_lshl_b32 s8, s3, 1")
    A(f"v_add_u32 v{t2}, s8, v{t2}")
    A(f"v_xor_b32 v{t2}, v{t2}, v{t1}")
    A(f"v_lshl_add_u32 v{vTR128}, v{t2}, 4, v{vTR128}")
    A(f"v_and_b32 v{t2}, 1, v{vCC}")
    A(f"v_lshl_add_u32 v{vTR128}, v{t2}, 3, v{vTR128}")
    A(f"v_add_u32 v{vTR128}, {WQL}, v{vTR128}")
    vTR256 = V("tr256", 2)
    A(f"v_lshlrev_b32 v{vTR256}, 8, v{t0}")
    A(f"v_and_b32 v{t1}, 7, v{t0}")
    A(f"v_lshlrev_b32 v{t1}, 1, v{t1}")
    A(f"v_lshrrev_b32 v{t3}, 1, v{vCC}")
    A("s_lshl_b32 s8, s3, 2")
    A(f"v_add_u32 v{t3}, s8, v{t3}")
    A(f"v_xor_b32 v{t3}, v{t3}, v{t1}")
    A(f"v_lshl_add_u32 v{vTR256}, v{t3}, 4, v{vTR256}")
    A(f"v_lshl_add_u32 v{vTR256}, v{t2}, 3, v{vTR256}")
    A(f"v_xor_b32 v{vTR256 + 1}, 32, v{vTR256}")
    vPub = V("pubaddr")
    A("s_lshl_b32 s8, s3, 6")
    A(f"v_lshlrev_b32 v{vPub}, 4, v{vQd}")
    A(f"v_add_u32 v{vPub}, s8, v{vPub}")
    vH1 = V("h1a")
    A(f"v_lshlrev_b32 v{t0}, 3, v{vRR}")
    A(f"v_and_b32 v{t1}, 3, v{vR}")
    A(f"v_lshl_add_u32 v{t0}, v{t1}, 1, v{t0}")
    A("s_lshr_b32 s8, s3, 1")
    A(f"v_add_u32 v{t0}, s8, v{t0}")
    A(f"v_mul_u32_u24 v{t0}, {BS}, v{t0}")
    A("s_and_b32 s8, s3, 1")
    A("s_lshl_b32 s8, s8, 7")
    A(f"v_lshl_add_u32 v{vH1}, v{vQd}, 5, v{t0}")
    A(f"v_add_u32 v{vH1}, s8, v{vH1}")
    vXNr = V("xnr")
    A("s_lshl_b32 s8, s3, 10")
    A("s_lshl_b32 s10, s9, 8")
    A("s_add_u32 s8, s8, s10")
    A(f"s_add_u32 s8, s8, {XN}")
    A(f"v_lshlrev_b32 v{vXNr}, 4, v{vQd}")
    A(f"v_add_u32 v{vXNr}, s8, v{vXNr}")
    A(f"v_add_u32 v{t7}, {XN}, v{vWL}")

    vF = V("f", 8)
    A(f"s_waitcnt vmcnt({(5 + (o['pgt'] == 1)) if o['ptx'] else 4})")
    for i in range(4):
        A(f"v_lshlrev_b32 v{vF + 2 * i}, 16, v{vX + i}")
        A(f"v_and_b32 v{vF + 2 * i + 1}, 0xffff0000, v{vX + i}")
    A(f"v_add_f32 v{t0}, v{vF}, v{vF + 1}")
    A(f"v_mul_f32 v{t1}, v{vF}, v{vF}")
    A(f"v_fmac_f32 v{t1}, v{vF + 1}, v{vF + 1}")
    for i in range(2, 8):
        A(f"v_add_f32 v{t0}, v{t0}, v{vF + i}")
        A(f"v_fmac_f32 v{t1}, v{vF + i}, v{vF + i}")
    k.reduce64_to_lane63([t0, t1])
    A(f"v_readlane_b32 s8, v{t0}, 63")
    A(f"v_readlane_b32 s10, v{t1}, 63")
    A(f"v_mov_b32 v{t0}, s8")
    A(f"v_mov_b32 v{t1}, s10")
    k.ln_scalars(t0, t1)
    for i in range(8):
        A(f"v_sub_f32 v{vF + i}, v{vF + i}, v{t0}")
    for i in range(4):
        k.round_bf16_pair(vF + 2 * i, vF + 2 * i + 1, vF + 2 * i, vF + 2 * i + 1, t3)
    for i in range(8):
        A(f"v_mul_f32 v{vF + i}, v{vF + i}, v{t1}")
    for i in range(4):
        A(f"v_cvt_pk_bf16_f32 v{vX + i}, v{vF + 2 * i}, v{vF + 2 * i + 1}")
    A(f"ds_write_b128 v{t7}, {vr(vX, 4)}")
    vB = V("bfrag", 16)
    for ks in range(4):
        A(f"ds_read_b128 {vr(vB + 4 * ks, 4)}, v{vXNr} offset:{ks * 64}")
    A("s_waitcnt lgkmcnt(0)")
    A("s_add_u32 s13, s56, 1")
    A("s_and_b32 s13, s13, 0x0fffffff")
    for i in range(4):
        A(f"s_bfe_u32 s8, s13, {(7 << 16) | (7 * i):#x}")
        A(f"s_or_b32 s{57 + i}, s8, 0x80")
    A("s_lshl_b32 s8, s58, 8")
    A("s_or_b32 s56, s57, s8")
    A("s_lshl_b32 s8, s59, 16")
    A("s_or_b32 s56, s56, s8")
    A("s_lshl_b32 s8, s60, 24")
    A("s_or_b32 s56, s56, s8")
    A("s_mul_i32 s12, s57, 0x01010101")
    vHs1 = V("hs1")
    A("s_lshl_b32 s8, s5, 2")
    A("s_add_u32 s8, s8, s3")
    A(f"v_mov_b32 v{vHs1}, s8")
    vHB = V("hintbyte")
    A(f"v_mov_b32 v{vHB}, s57")
    A.stamp(1)
    vW = V("wfrag", 16)
    k.lds_wait(F_WQ, 1, t0)
    for ks in range(4):
        for hf in range(2):
            A(f"ds_read_b64_tr_b16 {vr(vW + 4 * ks + 2 * hf, 2)}, v{vTR128} offset:{ks * 4096 + hf * 2048}")
    vD = V("d", 8)
    for ks in range(4):
        A(f"s_waitcnt lgkmcnt({6 - 2 * ks})")
        A(f"v_mfma_f32_16x16x32_bf16 {vr(vD, 4)}, {vr(vW + 4 * ks, 4)}, {vr(vB + 4 * ks, 4)}, {'0' if ks == 0 else vr(vD, 4)}")
    k.tag4(vD)
    A("s_mov_b64 exec, s[68:69]")
    A(f"global_store_dwordx4 v{vPub}, {vr(vD, 4)}, s[42:43] offset:{B_P1}")
    A("s_mov_b64 exec, 1")
    A(f"global_store_byte v{vHs1}, v{vHB}, s[14:15] offset:1024")
    A("s_mov_b64 exec, -1")
    A.stamp(2)
    vG = V("g", 24)
    vAcc = V("acc")
    vRing = V("ring", max(24, 8 * NP))

    def h1_issue(s):
        A(f"global_load_dwordx4 {vr(vRing + 8 * s, 4)}, v{vH1}, s[44:45] offset:{B_P1} sc1")
        A(f"global_load_dwordx4 {vr(vRing + 8 * s + 4, 4)}, v{vH1}, s[44:45] offset:{B_P1 + 16} sc1")

    later = []
    LA = later.append
    vL16Q = V("l16q")
    LA(f"v_add_u32 v{vL16Q}, {QF}, v{vL16}")
    vKa = V("ka", 4)
    LA("s_lshl_b32 s8, s3, 13")
    LA(f"v_lshlrev_b32 v{vKa}, 8, v{vR}")
    LA(f"v_add_u32 v{vKa}, s8, v{vKa}")
    LA(f"v_xor_b32 v{t1}, v{vQd}, v{vR}")
    LA(f"v_lshl_add_u32 v{vKa}, v{t1}, 4, v{vKa}")
    LA(f"v_xor_b32 v{vKa + 1}, 64, v{vKa}")
    LA(f"v_xor_b32 v{vKa + 2}, 128, v{vKa}")
    LA(f"v_xor_b32 v{vKa + 3}, 192, v{vKa}")
    vMXw = V("mxw"); vMXr = V("mxr")
    LA(f"v_lshlrev_b32 v{vMXr}, 6, v{vR}")
    LA(f"v_add_u32 v{vMXr}, {MX}, v{vMXr}")
    LA("s_lshl_b32 s8, s3, 4")
    LA(f"v_lshl_add_u32 v{vMXw}, v{vQd}, 2, v{vMXr}")
    LA(f"v_add_u32 v{vMXw}, s8, v{vMXw}")
    vMX2w = V("mx2w"); vMX2r = V("mx2r")
    LA(f"v_lshlrev_b32 v{vMX2r}, 4, v{vR}")
    LA(f"v_add_u32 v{vMX2r}, {MX}, v{vMX2r}")
    LA("s_lshl_b32 s8, s3, 2")
    LA(f"v_add_u32 v{vMX2w}, s8, v{vMX2r}")
    vP2a = V("p2a")
    LA(f"v_and_b32 v{t0}, 3, v{vR}")
    LA(f"v_lshlrev_b32 v{vP2a}, 9, v{t0}")
    LA(f"v_lshl_add_u32 v{vP2a}, v{vRR}, 6, v{vP2a}")
    LA(f"v_lshl_add_u32 v{vP2a}, v{vQd}, 4, v{vP2a}")
    LA("s_lshl_b32 s8, s3, 7")
    LA(f"v_add_u32 v{vP2a}, s8, v{vP2a}")
    vH2 = V("h2a", 4)
    LA("s_lshl_b32 s10, s9, 9")
    LA("s_add_u32 s10, s10, s8")
    LA(f"v_mul_u32_u24 v{t0}, {BS}, v{vR}")
    LA(f"v_lshl_add_u32 v{vH2}, v{vQd}, 4, v{t0}")
    LA(f"v_add_u32 v{vH2}, s10, v{vH2}")
    LA(f"v_add_u32 v{vH2 + 1}, {16 * BS}, v{vH2}")
    LA("s_lshl_b32 s10, s9, 4")
    LA(f"v_add_u32 v{vH2 + 2}, s10, v{t0}")
    LA(f"v_add_u32 v{vH2 + 3}, {16 * BS}, v{vH2 + 2}")
    vHs2 = V("hs2"); vHr2 = V("hr2"); vHs4 = V("hs4"); vHr4 = V("hr4")
    LA("s_lshl_b32 s8, s3, 7")
    LA(f"v_add_u32 v{vHr2}, s8, v{vL4}")
    LA("s_add_u32 s8, s8, s5")
    LA(f"v_mov_b32 v{vHs2}, s8")
    LA("s_lshl_b32 s8, s9, 7")
    LA("s_lshl_b32 s10, s7, 2")
    LA("s_add_u32 s8, s8, s10")
    LA("s_add_u32 s8, s8, s3")
    LA(f"v_mov_b32 v{vHs4}, s8")
    LA("s_lshr_b32 s8, s7, 1")
    LA("s_lshl_b32 s8, s8, 7")
    LA(f"v_add_u32 v{vHr4}, s8, v{vL4}")
    vOFw = V("ofw"); vQ16 = V("q16")
    LA(f"v_add_u32 v{vOFw}, {OF}, v{vPub}")
    LA(f"v_lshlrev_b32 v{vQ16}, 4, v{vQd}")
    LA(f"v_add_u32 v{vQ16}, {OF}, v{vQ16}")
    vP3a = V("p3a")
    LA("s_lshl_b32 s8, s7, 5")
    LA("s_lshl_b32 s10, s4, 2")
    LA("s_add_u32 s8, s8, s10")
    LA("s_add_u32 s8, s8, s9")
    LA("s_lshl_b32 s8, s8, 9")
    LA("s_lshl_b32 s10, s3, 6")
    LA("s_add_u32 s8, s8, s10")
    LA(f"v_add_u32 v{vP3a}, s8, v{vPub}")
    vH3 = V("h3a", 2); vP4a = V("p4a")
    LA("s_lshl_b32 s8, s7, 14")
    LA("s_add_u32 s8, s8, s10")
    LA(f"v_lshl_add_u32 v{vP4a}, v{vR}, 8, v{vPub}")
    LA(f"v_lshl_add_u32 v{vH3}, v{vR}, 9, v{vPub}")
    LA(f"v_add_u32 v{vH3}, s8, v{vH3}")
    LA(f"v_add_u32 v{vH3 + 1}, 8192, v{vH3}")
    vHFw = V("hfw"); vHFa = V("hfa"); vHFb = V("hfb")
    LA("s_lshr_b32 s8, s3, 1")
    LA("s_lshl_b32 s8, s8, 6")
    LA("s_and_b32 s10, s3, 1")
    LA("s_lshl_b32 s10, s10, 3")
    LA("s_add_u32 s8, s8, s10")
    LA(f"v_lshlrev_b32 v{vHFa}, 4, v{vQd}")
    LA(f"v_add_u32 v{vHFa}, {HF}, v{vHFa}")
    LA(f"v_add_u32 v{vHFw}, s8, v{vHFa}")
    LA(f"v_and_b32 v{t0}, 1, v{vR}")
    LA(f"v_lshl_add_u32 v{vHFb}, v{t0}, 7, v{vHFa}")
    vH4 = V("h4a", 2)
    LA("s_lshr_b32 s8, s7, 1")
    LA(f"s_mul_i32 s8, s8, {8 * BS}")
    LA("s_and_b32 s10, s7, 1")
    LA("s_lshl_b32 s10, s10, 7")
    LA("s_lshl_b32 s11, s3, 4")
    LA("s_add_u32 s10, s10, s11")
    LA(f"v_and_b32 v{t0}, 7, v{vLane}")
    LA(f"v_mul_u32_u24 v{t0}, {BS}, v{t0}")
    LA(f"v_add_u32 v{vH4}, s8, v{t0}")
    LA(f"v_bfe_u32 v{t1}, v{vLane}, 3, 2")
    LA(f"v_lshl_add_u32 v{t1}, v{t1}, 8, v{vH4}")
    LA(f"v_lshrrev_b32 v{t0}, 5, v{vLane}")
    LA(f"v_lshl_add_u32 v{t1}, v{t0}, 6, v{t1}")
    LA(f"v_add_u32 v{vH4 + 1}, s10, v{t1}")
    vHHw = V("hhw"); vHHr = V("hhr")
    LA(f"v_lshlrev_b32 v{vHHw}, 3, v{t0}")
    LA(f"v_lshl_add_u32 v{vHHw}, v{vCC}, 1, v{vHHw}")
    LA(f"s_add_u32 s11, s11, {HH}")
    LA(f"v_add_u32 v{vHHw}, s11, v{vHHw}")
    LA(f"v_lshlrev_b32 v{vHHr}, 4, v{vQd}")
    LA(f"v_add_u32 v{vHHr}, {HH}, v{vHHr}")
    vP5a = V("p5a")
    LA("s_mul_i32 s8, s9, 56")
    LA("s_lshl_b32 s10, s4, 3")
    LA("s_add_u32 s8, s8, s10")
    LA("s_add_u32 s8, s8, s7")
    LA("s_lshl_b32 s8, s8, 9")
    LA("s_lshl_b32 s10, s3, 7")
    LA("s_add_u32 s8, s8, s10")
    LA(f"v_lshlrev_b32 v{vP5a}, 4, v{vQd}")
    LA(f"v_add_u32 v{vP5a}, s8, v{vP5a}")
    LA(f"v_and_b32 v{t0}, 1, v{vR}")
    LA(f"v_lshl_add_u32 v{vP5a}, v{t0}, 6, v{vP5a}")
    LA(f"v_cmp_gt_u32 s[10:11], 2, v{vR}")
    LA("s_mov_b64 s[0:1], s[10:11]")

    vTW2 = V("tw2", 2)
    LA(f"v_add_u32 v{vTW2}, {W2L}, v{vTR256}")
    LA(f"v_add_u32 v{vTW2 + 1}, {W2L}, v{vTR256 + 1}")
    vXF = V("xf", 4)
    LA("s_waitcnt vmcnt(4)")
    LA(f"v_lshlrev_b32 v{vXF}, 16, v{vXR}")
    LA(f"v_and_b32 v{vXF + 1}, 0xffff0000, v{vXR}")
    LA(f"v_lshlrev_b32 v{vXF + 2}, 16, v{vXR + 1}")
    LA(f"v_and_b32 v{vXF + 3}, 0xffff0000, v{vXR + 1}")

    def h1_ok(s):
        for i in range(8):
            A(f"v_add_f32_dpp v{vG + i}, v{vRing + 8 * s + i}, v{vRing + 8 * s + i} row_ror:4 {DPPM}")

    def h1_fill():
        for s_ in later:
            A(s_)
    if o["hint1"]:
        k.hint_ring("hr1", vL4, 1024, [vRing + 16 + i for i in range(o["NH"])], "s_mov_b32 exec_hi, 0", filler=h1_fill)
        k.poll([f"global_load_dwordx4 {vr(vRing, 4)}, v{vH1}, s[44:45] offset:{B_P1} sc1",
                f"global_load_dwordx4 {vr(vRing + 4, 4)}, v{vH1}, s[44:45] offset:{B_P1 + 16} sc1"],
               [vRing, vRing + 4], vAcc, True, hook=lambda: k.lds_signal(F_G1))
        h1_ok(0)
    else:
        h1_fill()
        if o["GAP0"]:
            A(f"s_sleep {o['GAP0']}")
        k.ring_poll("h1", NP, h1_issue, lambda s: [vRing + 8 * s, vRing + 8 * s + 4], 2, vAcc, True, o["GAP"], h1_ok, pace=o['PACE'])
    h2_loads = [f"global_load_dwordx4 {vr(vG, 4)}, v{vH2}, s[44:45] offset:{B_P2} sc1",
                f"global_load_dwordx4 {vr(vG + 4, 4)}, v{vH2}, s[44:45] offset:{B_P2 + 64} sc1",
                f"global_load_dwordx4 {vr(vG + 8, 4)}, v{vH2 + 1}, s[44:45] offset:{B_P2} sc1",
                f"global_load_dwordx4 {vr(vG + 12, 4)}, v{vH2 + 1}, s[44:45] offset:{B_P2 + 64} sc1"]
    if o["ptc"]:
        A(f"global_load_dword v{vJunk}, v{vH2}, s[44:45] offset:{B_P2} sc1")
        A(f"global_load_dword v{vJunk}, v{vH2 + 1}, s[44:45] offset:{B_P2} sc1")
        A(f"global_load_dword v{vJunk}, v{vH2 + 2}, s[44:45] offset:{B_ML} sc1")
        A(f"global_load_dword v{vJunk}, v{vH2 + 3}, s[44:45] offset:{B_ML} sc1")
        A(f"global_load_dword v{vJunk}, v{vL16}, s[14:15] sc1")
    if o["ptp"]:
        skp = k.newlabel("skp")
        A("s_cmp_eq_u32 s3, 1")
        A(f"s_cbranch_scc1 {skp}")
        A("s_cmp_eq_u32 s3, 0")
        A("s_cselect_b32 exec_lo, 0xffff0000, -1")
        A(f"global_store_dwordx4 v{vWL}, {vr(vZ, 4)}, s[42:43]")
        A("s_mov_b64 exec, -1")
        k.label(skp)
    A.stamp(3)
    k.allreduce16("v_add_f32", list(range(vG, vG + 8)), steps=(8,))
    for i in range(4):
        A(f"v_cvt_pk_bf16_f32 v{vX + i}, v{vG + 2 * i}, v{vG + 2 * i + 1}")
    A(f"v_add_u32 v{t0}, {QF}, v{vWL}")
    A(f"ds_write_b128 v{t0}, {vr(vX, 4)}")
    k.lds_signal(F_Q)
    vKF = V("kfrag", 32)
    k.lds_wait(F_K, 1, t4)
    for kt in range(2):
        for s in range(4):
            A(f"ds_read_b128 {vr(vKF + 16 * kt + 4 * s, 4)}, v{vKa + s} offset:{KL + kt * 4096}")
    A.stamp(1, 2)
    k.lds_wait(F_Q, 4, t4, [f"ds_read_b128 {vr(vB + 4 * s, 4)}, v{vL16Q} offset:{s * 1024}" for s in range(4)])
    for s in range(4):
        for kt in range(2):
            A(f"v_mfma_f32_16x16x32_bf16 {vr(vD + 4 * kt, 4)}, {vr(vKF + 16 * kt + 4 * s, 4)}, {vr(vB + 4 * s, 4)}, {'0' if s == 0 else vr(vD + 4 * kt, 4)}")
    A.stamp(2, 2)
    A(f"s_mov_b32 s8, {SCALE:#x}")
    for i in range(4):
        k.round_bf16_pair(vF + 2 * i, vF + 2 * i + 1, vD + 2 * i, vD + 2 * i + 1, t0)
    for i in range(8):
        A(f"v_mul_f32 v{vF + i}, s8, v{vF + i}")
    for i in range(4):
        k.round_bf16_pair(vF + 2 * i, vF + 2 * i + 1, vF + 2 * i, vF + 2 * i + 1, t0)
    A(f"v_max3_f32 v{t0}, v{vF}, v{vF + 1}, v{vF + 2}")
    A(f"v_max3_f32 v{t1}, v{vF + 3}, v{vF + 4}, v{vF + 5}")
    A(f"v_max3_f32 v{t0}, v{t0}, v{vF + 6}, v{vF + 7}")
    A(f"v_max_f32 v{t0}, v{t0}, v{t1}")
    if o['wl']:
        A(f"v_mov_b32 v{t1}, v{t0}")
        A(f"v_permlane16_swap_b32 v{t0}, v{t1}")
        A(f"v_max_f32 v{t0}, v{t0}, v{t1}")
        A(f"v_mov_b32 v{t1}, v{t0}")
        A(f"v_permlane32_swap_b32 v{t0}, v{t1}")
        A(f"v_max_f32 v{t0}, v{t0}, v{t1}")
        A(f"s_mov_b32 s8, {LOG2E:#x}")
        A(f"v_mul_f32 v{t1}, s8, v{t0}")
        for i in range(8):
            A(f"v_fma_f32 v{vF + i}, v{vF + i}, s8, -v{t1}")
        for i in range(8):
            A(f"v_exp_f32 v{vF + i}, v{vF + i}")
        for i in range(4):
            A(f"v_cvt_pk_bf16_f32 v{vX + i}, v{vF + 2 * i}, v{vF + 2 * i + 1}")
        A(f"v_add_u32 v{t1}, {PF}, v{vWL}")
        A(f"ds_write_b128 v{t1}, {vr(vX, 4)}")
        A(f"ds_write_b32 v{vMX2w}, v{t0}")
        A(f"v_add_f32 v{t2}, v{vF}, v{vF + 1}")
        A(f"v_add_f32 v{t3}, v{vF + 2}, v{vF + 3}")
        for i in range(4, 8, 2):
            A(f"v_add_f32 v{t2}, v{t2}, v{vF + i}")
            A(f"v_add_f32 v{t3}, v{t3}, v{vF + i + 1}")
        A(f"v_add_f32 v{t2}, v{t2}, v{t3}")
        A(f"v_mov_b32 v{t3}, v{t2}")
        A(f"v_permlane16_swap_b32 v{t2}, v{t3}")
        A(f"v_add_f32 v{t2}, v{t2}, v{t3}")
        A(f"v_mov_b32 v{t3}, v{t2}")
        A(f"v_permlane32_swap_b32 v{t2}, v{t3}")
        A(f"v_add_f32 v{t2}, v{t2}, v{t3}")
        A(f"ds_write_b32 v{vMX2w}, v{t2} offset:{LS - MX}")
        k.lds_signal(F_P)
        A.stamp(4, 2)
        vML = V("ml", 4)
        vM = vML
        vSC = V("sc", 4)
        k.lds_wait(F_P, 4, t4,
                   [f"ds_read_b128 {vr(vB + 4 * s, 4)}, v{vL16Q} offset:{PF - QF + s * 1024}" for s in range(4)] +
                   [f"ds_read_b128 {vr(vSC, 4)}, v{vMX2r}", f"ds_read_b128 {vr(vG, 4)}, v{vMX2r} offset:{LS - MX}"])
        A.stamp(5, 2)
        A(f"v_max3_f32 v{vM}, v{vSC}, v{vSC + 1}, v{vSC + 2}")
        A(f"v_max_f32 v{vM}, v{vM}, v{vSC + 3}")
        for i in range(4):
            A(f"v_sub_f32 v{vSC + i}, v{vSC + i}, v{vM}")
        for i in range(4):
            A(f"v_mul_f32 v{vSC + i}, s8, v{vSC + i}")
        for i in range(4):
            A(f"v_exp_f32 v{vSC + i}, v{vSC + i}")
        skipml = k.newlabel("skipml")
        A("s_cmp_lg_u32 s3, 0")
        A(f"s_cbranch_scc1 {skipml}")
        A(f"v_mul_f32 v{vML + 1}, v{vSC}, v{vG}")
        for i in range(1, 4):
            A(f"v_fmac_f32 v{vML + 1}, v{vSC + i}, v{vG + i}")
        A(f"v_mov_b32 v{vML + 2}, 0")
        A(f"v_mov_b32 v{vML + 3}, 0")
        k.tag4(vML)
        A("s_mov_b64 exec, 15")
        A(f"global_store_dwordx4 v{vL16}, {vr(vML, 4)}, s[42:43] offset:{B_ML}")
        A("s_mov_b64 exec, -1")
        k.label(skipml)
        ml_loads = [f"global_load_dwordx4 {vr(vG + 16, 4)}, v{vH2 + 2}, s[44:45] offset:{B_ML} sc1",
                    f"global_load_dwordx4 {vr(vG + 20, 4)}, v{vH2 + 3}, s[44:45] offset:{B_ML} sc1"]
        if o["mlpre"] and o["mlsep"]:
            for l_ in ml_loads:
                A(l_)
        A.stamp(4)
        k.lds_wait(F_V, 1, t4)
        A.stamp(5)
        for ks in range(4):
            for t in range(2):
                for hf in range(2):
                    A(f"ds_read_b64_tr_b16 {vr(vKF + 8 * ks + 4 * t + 2 * hf, 2)}, v{vTR256 + t} offset:{VL + ks * 8192 + hf * 4096}")
        vO = vW
        for ks in range(4):
            A(f"s_waitcnt lgkmcnt({12 - 4 * ks})")
            A(f"v_mfma_f32_16x16x32_bf16 {vr(vO + 4 * ks, 4)}, {vr(vKF + 8 * ks, 4)}, {vr(vB + 4 * ks, 4)}, 0")
            A(f"v_mfma_f32_16x16x32_bf16 {vr(vG + 4 * ks, 4)}, {vr(vKF + 8 * ks + 4, 4)}, {vr(vB + 4 * ks, 4)}, 0")
        for ks in range(4):
            for i in range(4):
                A(f"v_cndmask_b32 v{vO + 4 * ks + i}, v{vO + 4 * ks + i}, v{vG + 4 * ks + i}, s[72:73]")
            for i in range(4):
                if ks == 0:
                    A(f"v_mul_f32 v{vD + i}, v{vSC}, v{vO + i}")
                else:
                    A(f"v_fmac_f32 v{vD + i}, v{vSC + ks}, v{vO + 4 * ks + i}")
    else:
        A(f"ds_write_b32 v{vMXw}, v{t0}")
        k.lds_signal(F_M)
        A(f"s_mov_b32 s8, {LOG2E:#x}")
        for i in range(8):
            A(f"v_mul_f32 v{vF + i}, s8, v{vF + i}")
        k.lds_wait(F_M, 4, t4, [f"ds_read_b128 {vr(vG + 4 * i, 4)}, v{vMXr} offset:{16 * i}" for i in range(4)])
        A.stamp(4, 2)
        vML = V("ml", 4)
        vM = vML
        A(f"v_max3_f32 v{vM}, v{vG}, v{vG + 1}, v{vG + 2}")
        A(f"v_max3_f32 v{t1}, v{vG + 3}, v{vG + 4}, v{vG + 5}")
        A(f"v_max3_f32 v{t2}, v{vG + 6}, v{vG + 7}, v{vG + 8}")
        A(f"v_max3_f32 v{t3}, v{vG + 9}, v{vG + 10}, v{vG + 11}")
        A(f"v_max3_f32 v{vM}, v{vM}, v{vG + 12}, v{vG + 13}")
        A(f"v_max3_f32 v{t1}, v{t1}, v{vG + 14}, v{vG + 15}")
        A(f"v_max3_f32 v{vM}, v{vM}, v{t1}, v{t2}")
        A(f"v_max_f32 v{vM}, v{vM}, v{t3}")
        A(f"v_mul_f32 v{t1}, s8, v{vM}")
        for i in range(8):
            A(f"v_sub_f32 v{vF + i}, v{vF + i}, v{t1}")
        for i in range(8):
            A(f"v_exp_f32 v{vF + i}, v{vF + i}")
        for i in range(4):
            A(f"v_cvt_pk_bf16_f32 v{vX + i}, v{vF + 2 * i}, v{vF + 2 * i + 1}")
        A(f"v_add_u32 v{t1}, {PF}, v{vWL}")
        A(f"ds_write_b128 v{t1}, {vr(vX, 4)}")
        A(f"v_add_f32 v{t0}, v{vF}, v{vF + 1}")
        for i in range(2, 8):
            A(f"v_add_f32 v{t0}, v{t0}, v{vF + i}")
        A(f"ds_write_b32 v{vMXw}, v{t0} offset:{LS - MX}")
        k.lds_signal(F_P)
        k.lds_wait(F_P, 4, t4,
                   [f"ds_read_b128 {vr(vB + 4 * s, 4)}, v{vL16Q} offset:{PF - QF + s * 1024}" for s in range(4)] +
                   [f"ds_read_b128 {vr(vG + 4 * i, 4)}, v{vMXr} offset:{LS - MX + 16 * i}" for i in range(4)])
        A.stamp(5, 2)
        skipml = k.newlabel("skipml")
        A("s_cmp_lg_u32 s3, 0")
        A(f"s_cbranch_scc1 {skipml}")
        A(f"v_add_f32 v{vML + 1}, v{vG}, v{vG + 1}")
        for i in range(2, 16):
            A(f"v_add_f32 v{vML + 1}, v{vML + 1}, v{vG + i}")
        A(f"v_mov_b32 v{vML + 2}, 0")
        A(f"v_mov_b32 v{vML + 3}, 0")
        k.tag4(vML)
        A("s_mov_b64 exec, 15")
        A(f"global_store_dwordx4 v{vL16}, {vr(vML, 4)}, s[42:43] offset:{B_ML}")
        A("s_mov_b64 exec, -1")
        k.label(skipml)
        ml_loads = [f"global_load_dwordx4 {vr(vG + 16, 4)}, v{vH2 + 2}, s[44:45] offset:{B_ML} sc1",
                f"global_load_dwordx4 {vr(vG + 20, 4)}, v{vH2 + 3}, s[44:45] offset:{B_ML} sc1"]
        if o["mlpre"] and o["mlsep"]:
            for l_ in ml_loads:
                A(l_)
        A.stamp(4)
        k.lds_wait(F_V, 1, t4)
        A.stamp(5)
        for ks in range(4):
            for t in range(2):
                for hf in range(2):
                    A(f"ds_read_b64_tr_b16 {vr(vKF + 8 * ks + 4 * t + 2 * hf, 2)}, v{vTR256 + t} offset:{VL + ks * 8192 + hf * 4096}")
        for ks in range(4):
            A(f"s_waitcnt lgkmcnt({12 - 4 * ks})")
            for t in range(2):
                A(f"v_mfma_f32_16x16x32_bf16 {vr(vD + 4 * t, 4)}, {vr(vKF + 8 * ks + 4 * t, 4)}, {vr(vB + 4 * ks, 4)}, {'0' if ks == 0 else vr(vD + 4 * t, 4)}")
        for i in range(4):
            A(f"v_cndmask_b32 v{vD + i}, v{vD + i}, v{vD + 4 + i}, s[72:73]")
    k.tag4(vD)
    A("s_mov_b64 exec, s[70:71]")
    A(f"global_store_dwordx4 v{vP2a}, {vr(vD, 4)}, s[42:43] offset:{B_P2}")
    A("s_mov_b64 exec, 1")
    A(f"global_store_byte v{vHs2}, v{vHB}, s[14:15]")
    A("s_mov_b64 exec, -1")
    A.stamp(6)
    m1, l1, m2, l2 = vG + 16, vG + 17, vG + 20, vG + 21

    def ml_weights():
        A(f"v_and_b32 v{m1}, 0xffffff00, v{m1}")
        A(f"v_and_b32 v{m2}, 0xffffff00, v{m2}")
        A(f"v_max_f32 v{t0}, v{m1}, v{m2}")
        k.allreduce16("v_max_f32", [t0])
        A(f"s_mov_b32 s8, {LOG2E:#x}")
        A(f"v_sub_f32 v{m1}, v{m1}, v{t0}")
        A(f"v_sub_f32 v{m2}, v{m2}, v{t0}")
        A(f"v_mul_f32 v{m1}, s8, v{m1}")
        A(f"v_mul_f32 v{m2}, s8, v{m2}")
        A(f"v_exp_f32 v{m1}, v{m1}")
        A(f"v_exp_f32 v{m2}, v{m2}")
        A(f"v_mul_f32 v{t1}, v{m1}, v{l1}")
        A(f"v_fmac_f32 v{t1}, v{m2}, v{l2}")
        k.allreduce16("v_add_f32", [t1])
        A(f"v_rcp_f32 v{t1}, v{t1}")
        A(f"v_mul_f32 v{m1}, v{t1}, v{m1}")
        A(f"v_mul_f32 v{m2}, v{t1}, v{m2}")
    if o["mlsep"]:
        k.poll(ml_loads, [vG + 16, vG + 20], vAcc, True, preissued=bool(o["mlpre"]), first_wait=2 if o["mlpre"] else 0)
        A.stamp(1, 1)
        ml_weights()
    if o["hint2"]:
        if o["NH2"]:
            k.hint_ring("hr2", vHr2, 0, [vRing + 16 + i for i in range(o["NH2"])], "s_mov_b64 exec, 0xff", gap=1)
        else:
            k.hint_wait(vHr2, 0, t4)
    A.stamp(2, 1)

    def hook3():
        k.lds_signal(F_G2)
        k.lds_wait(F_WO, 1, t4)
        for ks in range(4):
            for hf in range(2):
                A(f"ds_read_b64_tr_b16 {vr(vW + 4 * ks + 2 * hf, 2)}, v{vTR128} offset:{WOL - WQL + ks * 4096 + hf * 2048}")
    if o["mlsep"]:
        k.poll(h2_loads, [vG, vG + 4, vG + 8, vG + 12], vAcc, True, hook=hook3)
    else:
        k.poll(ml_loads + h2_loads, [vG + 16, vG + 20, vG, vG + 4, vG + 8, vG + 12], vAcc, True, hook=hook3)
        ml_weights()
    A.stamp(7)
    for i in range(8):
        A(f"v_mul_f32 v{vG + i}, v{m1}, v{vG + i}")
    for i in range(8):
        A(f"v_fmac_f32 v{vG + i}, v{m2}, v{vG + 8 + i}")
    k.allreduce16("v_add_f32", list(range(vG, vG + 8)))
    for i in range(4):
        A(f"v_cvt_pk_bf16_f32 v{vX + i}, v{vG + 2 * i}, v{vG + 2 * i + 1}")
    A("s_mov_b64 exec, s[68:69]")
    A(f"ds_write_b128 v{vOFw}, {vr(vX, 4)}")
    k.lds_signal(F_O)
    k.lds_wait(F_O, 4, t4, [f"ds_read_b128 {vr(vB + 4 * ks, 4)}, v{vQ16} offset:{ks * 64}" for ks in range(4)])
    for ks in range(4):
        A(f"v_mfma_f32_16x16x32_bf16 {vr(vD, 4)}, {vr(vW + 4 * ks, 4)}, {vr(vB + 4 * ks, 4)}, {'0' if ks == 0 else vr(vD, 4)}")
    k.tag4(vD)
    A("s_mov_b64 exec, s[68:69]")
    A(f"global_store_dwordx4 v{vP3a}, {vr(vD, 4)}, s[52:53] sc1")
    A("s_mov_b64 exec, -1")
    A.stamp(8)
    A("s_cmp_eq_u32 s4, 7")
    A("s_cbranch_scc1 L_final")

    vW13 = vKF
    vW2 = vKF + 16

    def hook4():
        k.lds_wait(F_W13, 1, t4)
        for mat, base in enumerate((W1L, W3L)):
            for ks in range(2):
                for hf in range(2):
                    A(f"ds_read_b64_tr_b16 {vr(vW13 + 8 * mat + 4 * ks + 2 * hf, 2)}, v{vTR128} offset:{base - WQL + ks * 4096 + hf * 2048}")
        k.lds_wait(F_W2, 1, t4)
        for u in range(2):
            for hf in range(2):
                A(f"ds_read_b64_tr_b16 {vr(vW2 + 4 * u + 2 * hf, 2)}, v{vTW2 + u} offset:{hf * 4096}")
    if o["ptc"]:
        A(f"global_load_dword v{vJunk}, v{vH4}, s[44:45] offset:{B_ST} sc1")
        A(f"global_load_dword v{vJunk}, v{vH4 + 1}, s[44:45] offset:{B_P4} sc1")
    if o["ptp"]:
        skp = k.newlabel("skp")
        A("s_cmp_ge_u32 s3, 2")
        A(f"s_cbranch_scc1 {skp}")
        A("s_cmp_eq_u32 s3, 0")
        A("s_cselect_b32 exec_lo, 0xff000000, -1")
        A(f"global_store_dwordx4 v{vWL}, {vr(vZ, 4)}, s[42:43]")
        A("s_mov_b64 exec, -1")
        k.label(skp)

    def h3_issue(s):
        A(f"global_load_dwordx4 {vr(vRing + 8 * s, 4)}, v{vH3}, s[52:53] sc1")
        A(f"global_load_dwordx4 {vr(vRing + 8 * s + 4, 4)}, v{vH3 + 1}, s[52:53] sc1")

    def h3_ok(s):
        for i in range(4):
            A(f"v_add_f32 v{vG + i}, v{vRing + 8 * s + i}, v{vRing + 8 * s + 4 + i}")
    if o["L3"]:
        A(f"s_sleep {o['L3']}")
    k.ring_poll("h3", o["N3"], h3_issue, lambda s: [vRing + 8 * s, vRing + 8 * s + 4], 2, vAcc, False, o["G3"], h3_ok, hook=hook4, pace=o["P3S"])
    A.stamp(9)
    k.allreduce16("v_add_f32", list(range(vG, vG + 4)))
    for i in range(2):
        k.round_bf16_pair(vG + 2 * i, vG + 2 * i + 1, vG + 2 * i, vG + 2 * i + 1, t0 + i)
    for i in range(4):
        A(f"v_add_f32 v{vG + i}, v{vG + i}, v{vXF + i}")
    for i in range(2):
        A(f"v_cvt_pk_bf16_f32 v{vX + i}, v{vG + 2 * i}, v{vG + 2 * i + 1}")
    A("s_mov_b64 exec, s[68:69]")
    A(f"ds_write_b64 v{vHFw}, {vr(vX, 2)}")
    k.lds_signal(F_H)
    k.lds_wait(F_H, 4, t4,
               [f"ds_read_b128 {vr(vB + 4 * ks, 4)}, v{vHFb} offset:{ks * 64}" for ks in range(2)] +
               [f"ds_read_b128 {vr(vB + 8 + 4 * ks, 4)}, v{vHFa} offset:{ks * 64}" for ks in range(2)])
    vS = vML
    for ks in range(2):
        A(f"v_mfma_f32_16x16x32_bf16 {vr(vS, 4)}, {vr(vB + 8 + 4 * ks, 4)}, {vr(vB + 4 * ks, 4)}, {'0' if ks == 0 else vr(vS, 4)}")
        A(f"v_mfma_f32_16x16x32_bf16 {vr(vD, 4)}, {vr(vW13 + 4 * ks, 4)}, {vr(vB + 4 * ks, 4)}, {'0' if ks == 0 else vr(vD, 4)}")
        A(f"v_mfma_f32_16x16x32_bf16 {vr(vD + 4, 4)}, {vr(vW13 + 8 + 4 * ks, 4)}, {vr(vB + 4 * ks, 4)}, {'0' if ks == 0 else vr(vD + 4, 4)}")
    skipst = k.newlabel("skipst")
    A("s_cmp_lg_u32 s3, 0")
    A(f"s_cbranch_scc1 {skipst}")
    A("s_nop 3")
    A(f"v_mov_b32_dpp v{vS + 1}, v{vS} row_shl:1 {DPPM}")
    k.tag4(vS)
    A("s_mov_b64 exec, 1")
    A(f"global_store_dwordx4 v{vL16}, {vr(vS, 4)}, s[42:43] offset:{B_ST}")
    A("s_mov_b64 exec, -1")
    k.label(skipst)
    A("s_nop 5")
    for i in range(4):
        A(f"v_cndmask_b32 v{vD + i}, v{vD + i}, v{vD + 4 + i}, s[76:77]")
    k.tag4(vD)
    A("s_mov_b64 exec, s[74:75]")
    A(f"global_store_dwordx4 v{vP4a}, {vr(vD, 4)}, s[42:43] offset:{B_P4}")
    A("s_mov_b64 exec, 1")
    A(f"global_store_byte v{vHs4}, v{vHB}, s[14:15] offset:512")
    A("s_mov_b64 exec, -1")
    A.stamp(10)
    for i in range(4):
        A(f"v_mov_b32 v{vZ + i}, 0")
    k.tag4(vZ)
    A("s_lshl_b32 s8, s3, 4")
    A(f"v_mov_b32 v{t7}, s8")
    if o["hint4"]:
        k.hint_wait(vHr4, 512, t4)
    A.stamp(4, 1)
    k.poll([f"global_load_dwordx4 {vr(vG + 4, 4)}, v{vH4}, s[44:45] offset:{B_ST} sc1",
            f"global_load_dwordx4 {vr(vG, 4)}, v{vH4 + 1}, s[44:45] offset:{B_P4} sc1"],
           [vG + 4, vG], vAcc, True)
    A.stamp(11)
    sq, sm = vG + 4, vG + 5
    for md in ("quad_perm:[1,0,3,2]", "quad_perm:[2,3,0,1]", "row_half_mirror"):
        for r_ in (sm, sq):
            A(f"v_add_f32_dpp v{r_}, v{r_}, v{r_} {md} {DPPM}")
    k.ln_scalars(sm, sq)
    A(f"v_sub_f32 v{sm}, 0, v{sm}")
    A(f"v_cndmask_b32 v{sm}, v{sm}, 1.0, s[70:71]")
    for i in range(4):
        A(f"v_mul_f32 v{vG + i}, v{sm}, v{vG + i}")
    A(f"v_cndmask_b32 v{t0}, v{vG + 1}, v{vG}, s[66:67]")
    A(f"v_cndmask_b32 v{t1}, v{vG + 3}, v{vG + 2}, s[66:67]")
    A(f"v_cndmask_b32 v{t2}, v{vG}, v{vG + 1}, s[66:67]")
    A(f"v_cndmask_b32 v{t3}, v{vG + 2}, v{vG + 3}, s[66:67]")
    A(f"v_add_f32_dpp v{t2}, v{t0}, v{t2} quad_perm:[1,0,3,2] {DPPM}")
    A(f"v_add_f32_dpp v{t3}, v{t1}, v{t3} quad_perm:[1,0,3,2] {DPPM}")
    A(f"v_cndmask_b32 v{t0}, v{t3}, v{t2}, s[76:77]")
    A(f"v_cndmask_b32 v{t1}, v{t2}, v{t3}, s[76:77]")
    A(f"v_add_f32_dpp v{t1}, v{t0}, v{t1} quad_perm:[2,3,0,1] {DPPM}")
    A(f"v_add_f32_dpp v{t1}, v{t1}, v{t1} row_ror:4 {DPPM}")
    A(f"v_add_f32_dpp v{t1}, v{t1}, v{t1} row_ror:8 {DPPM}")
    A(f"v_mul_f32 v{t1}, v{sq}, v{t1}")
    k.round_bf16(t1, t1)
    A(f"v_mov_b32 v{t0}, v{t1}")
    A(f"v_permlane16_swap_b32 v{t1}, v{t0}")
    A(f"s_mov_b32 s8, {LOG2E | 0x80000000:#x}")
    A(f"v_mul_f32 v{t2}, s8, v{t1}")
    A(f"v_exp_f32 v{t2}, v{t2}")
    A(f"v_add_f32 v{t2}, 1.0, v{t2}")
    A(f"v_rcp_f32 v{t2}, v{t2}")
    A(f"v_mul_f32 v{t2}, v{t2}, v{t1}")
    k.round_bf16(t2, t2)
    A(f"v_mul_f32 v{t2}, v{t2}, v{t0}")
    A(f"v_cvt_pk_bf16_f32 v{t2}, v{t2}, v{t2}")
    A("s_mov_b32 exec_lo, 15")
    A("s_mov_b32 exec_hi, 15")
    A(f"ds_write_b16 v{vHHw}, v{t2}")
    k.lds_signal(F_HH)
    k.lds_wait(F_HH, 4, t4, [f"ds_read_b128 {vr(vB, 4)}, v{vHHr}"])
    for u in range(2):
        A(f"v_mfma_f32_16x16x32_bf16 {vr(vD + 4 * u, 4)}, {vr(vW2 + 4 * u, 4)}, {vr(vB, 4)}, 0")
    A("s_mov_b64 exec, 1")
    A(f"global_store_dwordx4 v{t7}, {vr(vZ, 4)}, s[42:43] offset:{B_ACK}")
    A("s_mov_b64 exec, s[0:1]")
    for i in range(4):
        A(f"v_cndmask_b32 v{vD + i}, v{vD + i}, v{vD + 4 + i}, s[66:67]")
    k.tag4(vD)
    A(f"global_store_dwordx4 v{vP5a}, {vr(vD, 4)}, s[54:55] sc1")
    A("s_mov_b64 exec, -1")
    A.stamp(5, 1)
    A("s_cmp_lg_u32 s3, 0")
    A("s_cbranch_scc1 L_stamp_end")
    A(f"s_mul_i32 s8, s9, {2 * BS}")
    A(f"v_lshrrev_b32 v{t0}, 3, v{vLane}")
    A(f"v_and_b32 v{t0}, 3, v{t0}")
    A(f"v_lshlrev_b32 v{t0}, 3, v{t0}")
    A(f"v_bfe_u32 v{t1}, v{vLane}, 2, 1")
    A(f"v_add_u32 v{t0}, v{t0}, v{t1}")
    A(f"v_mul_u32_u24 v{t0}, {BS}, v{t0}")
    A(f"v_and_b32 v{t1}, 3, v{vLane}")
    A(f"v_lshl_add_u32 v{t0}, v{t1}, 4, v{t0}")
    A(f"v_add_u32 v{t0}, s8, v{t0}")
    A("s_mov_b32 exec_hi, 0")
    A("s_mov_b32 s61, 0")
    k.label("L_ack")
    A(f"global_load_dwordx4 {vr(vG, 4)}, v{t0}, s[40:41] offset:{B_ACK} sc1")
    A("s_waitcnt vmcnt(0)")
    k.check(vAcc, [vG])
    A(f"v_cmp_ne_u32 vcc, 0, v{vAcc}")
    A("s_cbranch_vccz L_stamp_end0")
    A("s_sleep 2")
    A("s_add_u32 s61, s61, 1")
    A(f"s_cmp_lt_u32 s61, {POLL_LIMIT}")
    A("s_cbranch_scc1 L_ack")
    A("s_call_b64 s[64:65], L_panic")
    A("s_branch L_stamp_end0")

    k.label("L_final")
    A("s_lshr_b32 s8, s5, 2")
    A("s_lshl_b32 s8, s8, 14")
    A("s_and_b32 s10, s5, 3")
    A("s_lshl_b32 s10, s10, 7")
    A("s_add_u32 s8, s8, s10")
    A("s_lshl_b32 s10, s3, 4")
    A("s_add_u32 s8, s8, s10")
    A(f"v_lshlrev_b32 v{t1}, 9, v{vLane}")
    A(f"v_add_u32 v{t1}, s8, v{t1}")
    for i in range(8):
        A(f"v_mov_b32 v{vG + i}, 0")
    if o["L7"]:
        A(f"s_sleep {o['L7']}")
    A("s_mov_b32 exec_hi, 0")
    k.poll([f"global_load_dwordx4 {vr(vG, 4)}, v{t1}, s[52:53] sc1"], [vG], vAcc, False)
    A("s_mov_b64 exec, -1")
    A.stamp(9)
    k.reduce64_to_lane63(list(range(vG, vG + 4)))
    for i in range(2):
        k.round_bf16_pair(vG + 2 * i, vG + 2 * i + 1, vG + 2 * i, vG + 2 * i + 1, t0)
    for i in range(4):
        A(f"v_add_f32 v{vF + i}, v{vG + i}, v{vXF + i}")
    for i in range(2):
        k.round_bf16_pair(vF + 2 * i, vF + 2 * i + 1, vF + 2 * i, vF + 2 * i + 1, t0)
    A("s_mul_i32 s8, s9, 28672")
    A("s_lshl_b32 s10, s7, 6")
    A("s_add_u32 s8, s8, s10")
    A("s_lshl_b32 s10, s3, 4")
    A("s_add_u32 s8, s8, s10")
    A(f"v_lshlrev_b32 v{t1}, 9, v{vLane}")
    A(f"v_add_u32 v{t1}, s8, v{t1}")
    A("s_lshl_b32 s8, s5, 5")
    A("s_lshl_b32 s10, s3, 3")
    A("s_add_u32 s8, s8, s10")
    A(f"v_mov_b32 v{t2}, s8")
    A("s_mov_b32 exec_hi, 0x00ffffff")
    def h5_issue(s):
        A(f"global_load_dwordx4 {vr(vRing + 4 * s, 4)}, v{t1}, s[54:55] sc1")

    def h5_ok(s):
        for i in range(4):
            A(f"v_mov_b32 v{vG + 4 + i}, v{vRing + 4 * s + i}")
    if o["L5"]:
        A(f"s_sleep {o['L5']}")
    k.ring_poll("h5", o["N3"], h5_issue, lambda s: [vRing + 4 * s], 1, vAcc, False, o["G3"], h5_ok, pace=o["P5S"])
    A("s_mov_b64 exec, -1")
    A.stamp(11)
    k.reduce64_to_lane63(list(range(vG + 4, vG + 8)))
    for i in range(2):
        k.round_bf16_pair(vG + 4 + 2 * i, vG + 5 + 2 * i, vG + 4 + 2 * i, vG + 5 + 2 * i, t0 + i)
    for i in range(4):
        A(f"v_add_f32 v{vF + i}, v{vG + 4 + i}, v{vF + i}")
    for i in range(2):
        A(f"v_cvt_pk_bf16_f32 v{vX + i}, v{vF + 2 * i}, v{vF + 2 * i + 1}")
    A("s_mov_b32 exec_lo, 0")
    A("s_mov_b32 exec_hi, 0x80000000")
    A(f"global_store_dwordx2 v{t2}, {vr(vX, 2)}, s[34:35]")
    A("s_or_b32 s8, s5, s3")
    A("s_cmp_lg_u32 s8, 0")
    A("s_cbranch_scc1 L_stamp_end0")
    A(f"v_mov_b32 v{t0}, 0")
    A(f"v_mov_b32 v{t1}, s13")
    A(f"global_store_dword v{t0}, v{t1}, s[38:39]")
    k.label("L_stamp_end0")
    A("s_mov_b64 exec, -1")
    k.label("L_stamp_end")
    if dbgtime:
        A("s_cmp_lg_u32 s4, 7")
        A("s_cbranch_scc1 L_end")
        A("s_and_b32 s8, s5, 3")
        A("s_or_b32 s8, s8, s3")
        A("s_cmp_lg_u32 s8, 0")
        A("s_cbranch_scc1 L_end")
        A("s_memrealtime s[98:99]")
        A("s_waitcnt lgkmcnt(0)")
        A("s_not_b32 s96, s96")
        A(f"v_mov_b32 v{t0}, 0")
        A(f"v_mov_b32 v{t1}, s96")
        A(f"v_mov_b32 v{t2}, s98")
        A("s_mov_b64 exec, 1")
        A(f"global_atomic_umax v{t0}, v{t1}, s[36:37]")
        A(f"global_atomic_umax v{t0}, v{t2}, s[36:37] offset:4")
    if stamps:
        A("s_memrealtime s[76:77]")
        A("s_waitcnt lgkmcnt(0)")
        A("s_lshl_b32 s8, s2, 3")
        A("s_add_u32 s8, s8, s3")
        A("s_lshl_b32 s8, s8, 6")
        A(f"s_add_u32 s8, s8, {WS_STAMP}")
        A(f"v_mov_b32 v{t0}, s8")
        for i in range(12):
            A(f"v_mov_b32 v{vG + i}, {'s%d' % (78 + 2 * i) if i in stamps else 0}")
        A(f"v_mov_b32 v{vG + 12}, s76")
        A("s_mov_b64 exec, 1")
        for q in range(4):
            A(f"global_store_dwordx4 v{t0}, {vr(vG + 4 * q, 4)}, s[38:39] offset:{q * 16}")
        A("s_mov_b64 exec, 0xffff")
        A(f"s_add_u32 s8, s8, {0x40000}")
        A(f"v_add_u32 v{t0}, s8, v{vL4}")
        A(f"global_store_dword v{t0}, v{k.vCnt}, s[38:39]")
    A("s_endpgm")

    k.label("L_loader")
    a0, a1, a2, a3, b0, b1, cwq, cwo, cw13, d0, d1 = [vG + i for i in range(11)]
    A(f"v_and_b32 v{t0}, 7, v{vLane}")
    A(f"v_lshlrev_b32 v{t1}, 1, v{vQd}")
    A(f"v_xor_b32 v{t0}, v{t0}, v{t1}")
    A(f"v_lshlrev_b32 v{t0}, 4, v{t0}")
    A(f"v_bfe_u32 v{t2}, v{vLane}, 3, 2")
    A(f"v_lshrrev_b32 v{t3}, 5, v{vLane}")
    A(f"v_lshl_add_u32 v{t2}, v{t3}, 3, v{t2}")
    A(f"v_lshl_add_u32 v{cwq}, v{t2}, 13, v{t0}")
    A("s_lshr_b32 s7, s5, 3")
    A("s_and_b32 s8, s5, 7")
    A("s_lshl_b32 s9, s7, 20")
    A("s_lshl_b32 s10, s4, 10")
    A("s_add_u32 s9, s9, s10")
    A("s_lshl_b32 s10, s8, 7")
    A("s_add_u32 s9, s9, s10")
    A("s_add_u32 s52, s22, s9"); A("s_addc_u32 s53, s23, 0")

    pre_rest = []
    P = pre_rest.append
    P(f"v_lshrrev_b32 v{t1}, 3, v{vLane}")
    P(f"v_lshl_add_u32 v{cwo}, v{t1}, 10, v{t0}")
    P(f"v_mul_u32_u24 v{cw13}, 3584, v{t1}")
    P(f"v_add_u32 v{cw13}, v{cw13}, v{t0}")
    P(f"v_xor_b32 v{t0}, v{vR}, v{vQd}")
    P(f"v_lshlrev_b32 v{t1}, 8, v{vQd}")
    P(f"v_lshl_add_u32 v{a0}, v{t0}, 4, v{t1}")
    P(f"v_xor_b32 v{a1}, 64, v{a0}")
    P(f"v_xor_b32 v{a2}, 128, v{a0}")
    P(f"v_xor_b32 v{a3}, 192, v{a0}")
    P(f"v_lshlrev_b32 v{t0}, 1, v{vQd}")
    P(f"v_xor_b32 v{t0}, v{vR}, v{t0}")
    P(f"v_lshl_add_u32 v{b0}, v{t0}, 4, v{t1}")
    P(f"v_xor_b32 v{b1}, 128, v{b0}")
    P(f"v_lshlrev_b32 v{t1}, 10, v{vQd}")
    P(f"v_lshl_add_u32 v{d0}, v{t0}, 4, v{t1}")
    P(f"v_xor_b32 v{d1}, 128, v{d0}")
    P("s_lshl_b32 s6, s4, 24")
    P("s_lshl_b32 s9, s5, 15")
    P("s_add_u32 s6, s6, s9")
    P(f"s_add_u32 s6, s6, {61440 * 256}")
    P("s_add_u32 s40, s18, s6"); P("s_addc_u32 s41, s19, 0")
    P("s_add_u32 s42, s20, s6"); P("s_addc_u32 s43, s21, 0")
    P("s_lshl_b32 s6, s4, 2"); P("s_add_u32 s6, s6, s7")
    P("s_lshl_b32 s9, s6, 17"); P("s_lshl_b32 s10, s8, 7"); P("s_add_u32 s9, s9, s10")
    P("s_add_u32 s44, s24, s9"); P("s_addc_u32 s45, s25, 0")
    P(f"s_mul_i32 s9, s8, {64 * 3584}"); P("s_lshl_b32 s10, s6, 7"); P("s_add_u32 s9, s9, s10")
    P("s_add_u32 s46, s28, s9"); P("s_addc_u32 s47, s29, 0")
    P("s_add_u32 s48, s30, s9"); P("s_addc_u32 s49, s31, 0")
    P("s_lshl_b32 s9, s4, 18"); P("s_lshl_b32 s10, s8, 15"); P("s_add_u32 s9, s9, s10")
    P("s_lshl_b32 s10, s7, 8"); P("s_add_u32 s9, s9, s10")
    P("s_add_u32 s50, s32, s9"); P("s_addc_u32 s51, s33, 0")

    def seg_ops(name):
        ops = []
        if name == "q":
            prevk = 0
            for i in range(16):
                krow = (i >> 2) * 32 + (0, 16, 4, 20)[i & 3]
                pre = [f"s_mov_b32 m0, {WQL + i * 1024}"]
                d = (krow - prevk) * 8192
                if d > 0:
                    pre += [f"s_add_u32 s52, s52, {d}", "s_addc_u32 s53, s53, 0"]
                elif d < 0:
                    pre += [f"s_sub_u32 s52, s52, {-d}", "s_subb_u32 s53, s53, 0"]
                prevk = krow
                ops.append(pre + [f"global_load_lds_dwordx4 v{cwq}, s[52:53] nt"])
            return ops, F_WQ
        if name in "kv":
            base, sreg, regs, fl = (KL, 40, (a0, a1, a2, a3), F_K) if name == "k" else (VL, 42, (b0, b1, b0, b1), F_V)
            for i in range(32):
                pre = []
                if i % 4 == 0:
                    pre += [f"s_mov_b32 m0, {base + i * 1024}"]
                    if i:
                        pre += [f"s_add_u32 s{sreg}, s{sreg}, 4096", f"s_addc_u32 s{sreg + 1}, s{sreg + 1}, 0"]
                ops.append(pre + [f"global_load_lds_dwordx4 v{regs[i & 3]}, s[{sreg}:{sreg + 1}] offset:{(i & 3) * 1024} nt"])
            return ops, fl
        if name == "o":
            for i in range(16):
                pre = [f"s_mov_b32 m0, {WOL + i * 1024}"]
                if i:
                    pre += ["s_add_u32 s44, s44, 8192", "s_addc_u32 s45, s45, 0"]
                ops.append(pre + [f"global_load_lds_dwordx4 v{cwo}, s[44:45] nt"])
            return ops, F_WO
        if name == "a":
            for base, sreg in ((W1L, 46), (W3L, 48)):
                for i in range(8):
                    pre = [f"s_mov_b32 m0, {base + i * 1024}"]
                    if i:
                        pre += [f"s_add_u32 s{sreg}, s{sreg}, {8 * 3584}", f"s_addc_u32 s{sreg + 1}, s{sreg + 1}, 0"]
                    ops.append(pre + [f"global_load_lds_dwordx4 v{cw13}, s[{sreg}:{sreg + 1}] nt"])
            return ops, F_W13
        if name == "b":
            for i in range(8):
                pre = [f"s_mov_b32 m0, {W2L + i * 1024}"]
                if i:
                    pre += ["s_add_u32 s50, s50, 4096", "s_addc_u32 s51, s51, 0"]
                ops.append(pre + [f"global_load_lds_dwordx4 v{(d0, d1)[i & 1]}, s[50:51] nt"])
            return ops, F_W2

    def emit_loader(order, start_n=0, pend=None, n=0):
        pend = list(pend or [])

        def drain():
            for (last, f) in list(pend):
                A(f"s_waitcnt vmcnt({n - 1 - last})")
                k.lds_signal(f)
            pend.clear()
        for name, D in order:
            if name == "G":
                drain()
                k.lds_wait(F_G2, 4, t4, sleep=1)
                continue
            ops, fl = seg_ops(name)
            for op in ops:
                if o["TZ"] and n == 16 + o["TX"] and (15, F_WQ) in pend:
                    A(f"s_waitcnt vmcnt({o['TX']})")
                    k.lds_signal(F_WQ)
                    pend.remove((15, F_WQ))
                if o["TZ"] and n < 16 + o["TZ"] and n >= 16 + o["TX"]:
                    sk = k.newlabel("tz")
                    A("s_cmp_ge_u32 s11, 4")
                    A(f"s_cbranch_scc1 {sk}")
                    A(f"s_waitcnt vmcnt({o['DS'] - 1})")
                    if (15, F_WQ) in pend and n - o["DS"] >= 15:
                        k.lds_signal(F_WQ)
                        pend.remove((15, F_WQ))
                    A(f"ds_read_b32 v{t4}, v{k.vFlag} offset:{F_G1}")
                    A("s_waitcnt lgkmcnt(0)")
                    A(f"v_readfirstlane_b32 s11, v{t4}")
                    k.label(sk)
                if n >= D:
                    A(f"s_waitcnt vmcnt({D - 1})")
                    for (last, f) in list(pend):
                        if last <= n - D:
                            k.lds_signal(f)
                            pend.remove((last, f))
                            if f == F_WQ and o["pgt"] == 2:
                                A("s_mov_b64 exec, 1")
                                A(f"global_load_dword v{vJunk}, v{t5}, s[54:55] nt")
                                A(f"global_load_dword v{vJunk}, v{t5}, s[58:59] nt")
                                A("s_mov_b64 exec, -1")
                                n += 2
                for s_ in op:
                    A(s_)
                n += 1
            pend.append((n - 1, fl))
        drain()

    order = []
    for tok in o["order"].split(","):
        order.append((tok[0], int(tok[1:] or 0)))
    assert order[0][0] == "q"
    ops, fl = seg_ops("q")
    for op in ops:
        for s_ in op:
            A(s_)
    for s_ in pre_rest:
        A(s_)
    A("s_mov_b32 s11, 0")
    npt = 0
    if o["pgt"] == 2:
        A("s_lshl_b32 s6, s4, 24")
        A("s_lshl_b32 s9, s8, 17")
        A("s_add_u32 s6, s6, s9")
        A(f"s_add_u32 s6, s6, {61440 * 256}")
        A("s_add_u32 s54, s20, s6"); A("s_addc_u32 s55, s21, 0")
        A("s_mov_b32 s58, s34"); A("s_mov_b32 s59, s35")
        A("s_cmp_eq_u32 s7, 1")
        A("s_cselect_b32 s54, s44, s54"); A("s_cselect_b32 s55, s45, s55")
        A("s_cmp_eq_u32 s4, 7")
        A("s_cbranch_scc1 L_pg7")
        A("s_cmp_eq_u32 s7, 1")
        A("s_cselect_b32 s58, s50, s54"); A("s_cselect_b32 s59, s51, s55")
        A("s_cmp_eq_u32 s7, 2")
        A("s_cselect_b32 s54, s46, s54"); A("s_cselect_b32 s55, s47, s55")
        A("s_cmp_eq_u32 s7, 3")
        A("s_cselect_b32 s54, s48, s54"); A("s_cselect_b32 s55, s49, s55")
        k.label("L_pg7")
        A(f"v_mov_b32 v{t5}, 0")
    if o["pgt"] == 1:
        A(f"v_mov_b32 v{t5}, 0")
        A(f"v_mov_b32 v{t6}, {63 * 3584}")
        A("s_mov_b64 exec, 1")
        for sreg in (40, 42, 44):
            A(f"global_load_dword v{vJunk}, v{t5}, s[{sreg}:{sreg + 1}] nt")
        A("s_cmp_eq_u32 s4, 7")
        A("s_cselect_b32 s46, s40, s46"); A("s_cselect_b32 s47, s41, s47")
        A("s_cselect_b32 s48, s40, s48"); A("s_cselect_b32 s49, s41, s49")
        A("s_cselect_b32 s50, s40, s50"); A("s_cselect_b32 s51, s41, s51")
        for sreg in (46, 48, 50):
            A(f"global_load_dword v{vJunk}, v{t5}, s[{sreg}:{sreg + 1}] nt")
        A("s_mov_b64 exec, -1")
        npt = 6
    A("s_cmp_eq_u32 s4, 7")
    A("s_cbranch_scc1 L_loader7")
    k.in_loader = True
    emit_loader(order[1:], pend=[(15, F_WQ)], n=16 + npt)
    if stamps:
        A("s_waitcnt lgkmcnt(0)")
        A("s_lshl_b32 s8, s2, 3")
        A("s_add_u32 s8, s8, 4")
        A("s_lshl_b32 s8, s8, 6")
        A(f"s_add_u32 s8, s8, {WS_STAMP}")
        A(f"v_mov_b32 v{t0}, s8")
        for i in range(8):
            A(f"v_mov_b32 v{vG + 12 + i}, s{78 + 2 * i}")
        A("s_mov_b64 exec, 1")
        for q in range(2):
            A(f"global_store_dwordx4 v{t0}, {vr(vG + 12 + 4 * q, 4)}, s[38:39] offset:{q * 16}")
    A("s_endpgm")
    A(";;LOADER7")
    k.label("L_loader7")
    emit_loader([x for x in order[1:] if x[0] not in "abG"], pend=[(15, F_WQ)], n=16 + npt)
    k.label("L_end")
    A("s_endpgm")

    k.label("L_panic")
    A("s_mov_b64 s[100:101], exec")
    A("s_mov_b64 exec, -1")
    for i in range(4):
        A(f"global_load_dwordx4 {vr(vPT, 4)}, v{vL16}, s[42:43] offset:{i * 1024} sc1")
        A("s_waitcnt vmcnt(0)")
        A(f"global_store_dwordx4 v{vL16}, {vr(vPT, 4)}, s[48:49] offset:{i * 1024} sc1")
        A("s_waitcnt vmcnt(0)")
    A("s_xor_b32 s50, s40, s46")
    A("s_xor_b32 s51, s41, s47")
    A("s_add_u32 s62, s62, 1")
    A(f"s_cmp_ge_u32 s62, {PANIC_MAX}")
    A("s_cbranch_scc1 L_end")
    A("s_mov_b64 exec, s[100:101]")
    A("s_setpc_b64 s[64:65]")

    L = list(k.L)
    i0 = L.index("L_loader:"); i1 = L.index("    ;;LOADER7")
    ld = L[i0:i1]
    L = L[:i0] + L[i1:]
    ih = L.index("    ;;LOADER_HERE")
    L = L[:ih] + ld + L[ih + 1:]
    body = fix_hazards(L)
    body.append(f"    .fill (({NAME} + {CODE_PF_BYTES + 256} - .) >> 2) * ((({NAME} + {CODE_PF_BYTES + 256} - .) >> 63) + 1), 4, 0xbf810000")

    nv = (ra.next + 7) // 8 * 8
    tail = []
    tail.append('.section .rodata,"a"')
    tail.append(".p2align 6")
    tail.append(f".amdhsa_kernel {NAME}")
    tail.append(f"  .amdhsa_next_free_vgpr {nv}")
    tail.append("  .amdhsa_next_free_sgpr 102")
    tail.append(f"  .amdhsa_accum_offset {nv}")
    tail.append("  .amdhsa_group_segment_fixed_size 0")
    tail.append("  .amdhsa_kernarg_size 96")
    tail.append("  .amdhsa_user_sgpr_count 2")
    tail.append("  .amdhsa_user_sgpr_kernarg_segment_ptr 1")
    tail.append("  .amdhsa_system_sgpr_workgroup_id_x 1")
    tail.append(".end_amdhsa_kernel")
    return "\n".join(hdr + body + tail) + "\n"


if __name__ == "__main__":
    import argparse
    ap = argparse.ArgumentParser()
    ap.add_argument("-o", default="sequential_preLN__sliding_block_cached__glu_gated_swiglu__decode.s")
    ap.add_argument("--stamps", default="")
    ap.add_argument("--dbgtime", action="store_true")
    ap.add_argument("--opt", action="append", default=[])
    a = ap.parse_args()
    st = [int(x) for x in a.stamps.split(",")] if a.stamps else None
    opts = {}
    for kv in a.opt:
        kk, vv = kv.split("=")
        opts[kk] = int(vv) if vv.lstrip("-").isdigit() else vv
    open(a.o, "w").write(gen(st, a.dbgtime, **opts))
```

```python
import sys, os
sys.path.insert(0, os.path.dirname(os.path.abspath(__file__)))
from asmlib import fix_hazards, RegAlloc

NAME = "sequential_preLN__sliding_block_cached__glu_gated_swiglu__decode_kernel"

KL = 0
VL = 32768
WQL = 65536
WOL = 81920
W1L = 98304
W3L = 106496
W2L = 114688
XN = 122880
QF = 126976
PF = 131072
MX = 135168
LS = 136192
OF = 137216
HF = 137472
ONES = 137600
FLAGS = 137728
HH = 137984
LDS_BYTES = 138240
F_WQ, F_Q, F_M, F_P, F_O, F_H, F_K, F_V, F_WO, F_W13, F_W2, F_G2, F_HH, F_G1 = [4 * i for i in range(14)]

WS_STAMP = 0x10000
BS = 4224
WS_A = 0x100000
WS_B = 0x300000
WS_P3 = 0x500000
WS_P5 = 0x520000
WS_HINT = 0x540000
B_P1 = 0
B_ML = 256
B_ST = 384
B_ACK = 512
B_P4 = 1024
B_P2 = 2048

LOG2E = 0x3FB8AA3B
SCALE = 0x3DB504F3
EPS = 0x3727C5AC
INV512 = 0x3B000000

POLL_LIMIT = 512
HINT_LIMIT = 400
PANIC_MAX = 4000
LDS_SPIN_MAX = 1 << 24
CODE_PF_BYTES = 17408


def vr(b, n):
    return f"v[{b}:{b + n - 1}]" if n > 1 else f"v{b}"


def sr(b, n=2):
    return f"s[{b}:{b + n - 1}]"


DPPM = "row_mask:0xf bank_mask:0xf"


class K:
    def __init__(self, stamps, opts):
        self.L = []
        self.stamps = stamps
        self.o = opts
        self.uid = 0
        self.ncnt = 0

    def __call__(self, s):
        self.L.append("    " + s)

    def label(self, s):
        self.L.append(s + ":")

    def newlabel(self, p):
        self.uid += 1
        return f"L_{p}_{self.uid}"

    def stamp(self, idx, alt=0):
        if self.o.get("alt", 0) != alt and idx in (1, 2, 4, 5):
            return
        if self.stamps and idx in self.stamps:
            self(f"s_memrealtime {sr(78 + 2 * idx)}")

    def count(self):
        if self.stamps:
            self(f"v_writelane_b32 v{self.vCnt}, s61, {self.ncnt}")
            self.ncnt += 1

    def lds_wait(self, off, target, vtmp, extra_reads=(), sleep=None):
        lp = self.newlabel("lw")
        ok = self.newlabel("lwok")
        if sleep is None:
            sleep = self.o["lsleep"]
        ff = self.o["flagfirst"] and len(extra_reads) > 2
        if not ff:
            self(f"ds_read_b32 v{vtmp}, v{self.vFlag} offset:{off}")
            for r in extra_reads:
                self(r)
            self("s_waitcnt lgkmcnt(0)")
            self(f"v_cmp_le_u32 vcc, {target}, v{vtmp}")
            self(f"s_cbranch_vccnz {ok}")
        self(f"s_mov_b32 s63, {LDS_SPIN_MAX}")
        self.label(lp)
        if sleep and not ff:
            self(f"s_sleep {sleep}")
        self(f"ds_read_b32 v{vtmp}, v{self.vFlag} offset:{off}")
        self("s_sub_u32 s63, s63, 1")
        self("s_cbranch_scc1 L_end")
        self("s_waitcnt lgkmcnt(0)")
        self(f"v_cmp_le_u32 vcc, {target}, v{vtmp}")
        self(f"s_cbranch_vccz {lp}")
        if extra_reads:
            for r in extra_reads:
                self(r)
            self("s_waitcnt lgkmcnt(0)")
        self.label(ok)

    def lds_signal(self, off):
        if self.stamps and getattr(self, "in_loader", False):
            idx = {F_WQ: 1, F_K: 2, F_V: 3, F_WO: 4, F_W13: 5, F_W2: 6}[off]
            self(f"s_memrealtime {sr(78 + 2 * idx)}")
        self("s_mov_b64 exec, 1")
        self(f"ds_add_u32 v{self.vFlag}, v{self.vOne} offset:{off}")
        self("s_mov_b64 exec, -1")

    def tag4(self, b):
        for i in range(4):
            self(f"v_perm_b32 v{b + i}, v{b + i}, s56, v{self.vSel + i}")

    def check(self, acc, grans):
        first = True
        for b in grans:
            if isinstance(b, tuple):
                self(f"v_msad_u8 v{acc}, v{b[0]}, s{57 + b[1]}, {'0' if first else 'v%d' % acc}")
                first = False
                continue
            for i in range(4):
                self(f"v_msad_u8 v{acc}, v{b + i}, s{57 + i}, {'0' if first else 'v%d' % acc}")
                first = False

    def retry_tail(self, lp, toggle):
        nx = self.newlabel("pollnx")
        self("s_add_u32 s61, s61, 1")
        self(f"s_and_b32 s6, s61, {POLL_LIMIT - 1}")
        self(f"s_cbranch_scc1 {nx}")
        self("s_call_b64 s[64:65], L_panic")
        self.label(nx)
        if toggle:
            self("s_xor_b32 s44, s44, s50")
            self("s_xor_b32 s45, s45, s51")
        self(f"s_branch {lp}")

    def poll(self, loads, grans, acc, toggle, hook=None, preissued=False, first_wait=0):
        wt = self.newlabel("pollw")
        lp = self.newlabel("poll")
        ok = self.newlabel("pollok")
        self("s_mov_b32 s61, 0")
        if not preissued:
            for l in loads:
                self(l)
        if hook:
            hook()
        if first_wait:
            self(f"s_waitcnt vmcnt({first_wait})")
            self(f"s_branch {wt}2")
        self.label(wt)
        self("s_waitcnt vmcnt(0)")
        if first_wait:
            self.label(wt + "2")
        self.check(acc, grans)
        self(f"v_cmp_ne_u32 vcc, 0, v{acc}")
        self(f"s_cbranch_vccz {ok}")
        nx = self.newlabel("pollnx")
        self("s_add_u32 s61, s61, 1")
        self(f"s_and_b32 s6, s61, {POLL_LIMIT - 1}")
        self(f"s_cbranch_scc1 {nx}")
        self("s_call_b64 s[64:65], L_panic")
        self.label(nx)
        if toggle:
            self("s_xor_b32 s44, s44, s50")
            self("s_xor_b32 s45, s45, s51")
        if self.o.get("psleep", 0):
            self(f"s_sleep {self.o['psleep']}")
        for l in loads:
            self(l)
        self(f"s_branch {wt}")
        self.label(ok)
        self.count()

    def ring_poll(self, name, nsets, issue, grans, nld, acc, toggle, gap, on_ok, hook=None, filler=None, pace=0):
        issue(0)
        if filler:
            filler()
        for s_ in range(1, nsets):
            if gap and not (s_ == 1 and filler):
                self(f"s_sleep {gap}")
            issue(s_)
        if hook:
            hook()
        self("s_mov_b32 s61, 0")
        self.label(f"L_{name}")
        for s_ in range(nsets):
            self(f"s_waitcnt vmcnt({nld * (nsets - 1)})")
            self.check(acc, grans(s_))
            self(f"v_cmp_ne_u32 vcc, 0, v{acc}")
            self(f"s_cbranch_vccz L_{name}ok{s_}")
            if pace:
                self(f"s_sleep {pace}")
            issue(s_)
        self("s_add_u32 s61, s61, 1")
        self(f"s_and_b32 s6, s61, {POLL_LIMIT // 4 - 1}")
        self(f"s_cbranch_scc1 L_{name}nx")
        self("s_call_b64 s[64:65], L_panic")
        self.label(f"L_{name}nx")
        if toggle:
            self("s_xor_b32 s44, s44, s50")
            self("s_xor_b32 s45, s45, s51")
        self(f"s_branch L_{name}")
        for s_ in range(nsets):
            self.label(f"L_{name}ok{s_}")
            on_ok(s_)
            if s_ < nsets - 1:
                self(f"s_branch L_{name}done")
        self.label(f"L_{name}done")
        self.count()
        self("s_nop 1")

    def hint_ring(self, name, vaddr, off, vregs, nlanes_mask, filler=None, gap=None):
        n = len(vregs)
        self(nlanes_mask)
        self(f"global_load_dword v{vregs[0]}, v{vaddr}, s[14:15] offset:{off} sc1")
        if filler:
            self("s_mov_b64 exec, -1")
            filler()
            self(nlanes_mask)
        for i in range(1, n):
            self(f"s_sleep {self.o['HGAP'] if gap is None else gap}")
            self(f"global_load_dword v{vregs[i]}, v{vaddr}, s[14:15] offset:{off} sc1")
        self(f"s_mov_b32 s61, {HINT_LIMIT // n}")
        self.label(f"L_{name}")
        for i in range(n):
            self(f"s_waitcnt vmcnt({n - 1})")
            self(f"v_cmp_ne_u32 vcc, s12, v{vregs[i]}")
            self(f"s_cbranch_vccz L_{name}ok")
            self(f"global_load_dword v{vregs[i]}, v{vaddr}, s[14:15] offset:{off} sc1")
        self("s_sub_u32 s61, s61, 1")
        self(f"s_cbranch_scc0 L_{name}")
        self.label(f"L_{name}ok")
        self.count()
        self("s_mov_b64 exec, -1")

    def hint_wait(self, vaddr, off, vtmp):
        lp = self.newlabel("hint")
        ok = self.newlabel("hintok")
        self(f"s_mov_b32 s61, {HINT_LIMIT}")
        self("s_mov_b64 exec, 0xff")
        self.label(lp)
        self(f"global_load_dword v{vtmp}, v{vaddr}, s[14:15] offset:{off} sc1")
        self("s_waitcnt vmcnt(0)")
        self(f"v_cmp_ne_u32 vcc, s12, v{vtmp}")
        self(f"s_cbranch_vccz {ok}")
        if self.o.get("hsleep", 0):
            self(f"s_sleep {self.o['hsleep']}")
        self("s_sub_u32 s61, s61, 1")
        self(f"s_cbranch_scc0 {lp}")
        self.label(ok)
        self.count()
        self("s_mov_b64 exec, -1")

    def allreduce16(self, op, regs, steps=(1, 2, 4, 8)):
        for st in steps:
            for r in regs:
                self(f"{op}_dpp v{r}, v{r}, v{r} row_ror:{st} {DPPM}")

    def reduce64_to_lane63(self, regs):
        self.allreduce16("v_add_f32", regs)
        for r in regs:
            self(f"v_add_f32_dpp v{r}, v{r}, v{r} row_bcast:15 row_mask:0xa bank_mask:0xf")
        for r in regs:
            self(f"v_add_f32_dpp v{r}, v{r}, v{r} row_bcast:31 row_mask:0xc bank_mask:0xf")

    def round_bf16(self, dst, src):
        self(f"v_cvt_pk_bf16_f32 v{dst}, v{src}, v{src}")
        self(f"v_and_b32 v{dst}, 0xffff0000, v{dst}")

    def round_bf16_pair(self, d0, d1, s0, s1, tmp):
        self(f"v_cvt_pk_bf16_f32 v{tmp}, v{s0}, v{s1}")
        self(f"v_lshlrev_b32 v{d0}, 16, v{tmp}")
        self(f"v_and_b32 v{d1}, 0xffff0000, v{tmp}")

    def ln_scalars(self, sm, sq):
        self(f"s_mov_b32 s8, {INV512:#x}")
        self(f"v_mul_f32 v{sm}, s8, v{sm}")
        self(f"v_mul_f32 v{sq}, s8, v{sq}")
        self(f"v_fma_f32 v{sq}, -v{sm}, v{sm}, v{sq}")
        self(f"v_max_f32 v{sq}, 0, v{sq}")
        self.round_bf16(sq, sq)
        self(f"v_add_f32 v{sq}, {EPS:#x}, v{sq}")
        self.round_bf16(sq, sq)
        self(f"v_sqrt_f32 v{sq}, v{sq}")
        self.round_bf16(sm, sm)
        self.round_bf16(sq, sq)
        self(f"v_rcp_f32 v{sq}, v{sq}")


def gen(stamps=None, dbgtime=False, **opts):
    o = dict(NP=6, GAP=7, pf=1, order="q0,k16,v32,o16,a16,b16", ptc=0, ptp=0, ptx=0, ptf='nt', pff='', lsleep=0, PACE=8, ptl=0, exp=0, pgt=1, flagfirst=1, GAP0=4, wl=1, TZ=0, DS=8, TX=8, mlsep=1, NH2=0, L3=0, P3S=0, L5=0, L7=0, P5S=0, hint1=1, NH=6, HGAP=4, mlpre=1, pxf='', xf='', wsoff=0, hint2=1, hint4=1, N3=5, G3=4)
    o.update(hint4=0, N3=1, ptx=1, pxf="nt", L3=20, L7=40, L5=20, hint1=0, mlsep=0, NH2=3, NP=2, GAP0=4, GAP=10, PACE=4,
             order="q0,k16,v32,o32,G,a40,b40", pgt=0, lam=1, vq=1)
    o.update(opts)
    k = K(stamps, o)
    A = k
    ra = RegAlloc(1, 256)
    V = ra.alloc
    NP = o["NP"]

    hdr = []
    hdr.append("; 256 workgroups (one per CU) x 5 waves: 4 compute waves + 1 LDS-DMA loader wave.")
    hdr.append(f"; @launch grid=(256,1,1) block=(320,1,1) lds={LDS_BYTES}")
    hdr.append('.amdgcn_target "amdgcn-amd-amdhsa--gfx950"')
    hdr.append(".text")
    hdr.append(f".globl {NAME}")
    hdr.append(".p2align 8")
    hdr.append(f".type {NAME},@function")
    hdr.append(f"{NAME}:")

    vLane = V("lane"); vR = V("r"); vQd = V("qd"); vL16 = V("l16")
    k.vFlag = V("flag"); k.vOne = V("one")
    t0 = V("t0"); t1 = V("t1"); t2 = V("t2"); t3 = V("t3"); t4 = V("t4"); t5 = V("t5"); t6 = V("t6"); t7 = V("t7")
    vJunk = V("junk")
    k.vCnt = V("cnt")
    vPT = V("panic", 4)

    A.stamp(0)
    if dbgtime or o["exp"]:
        A("s_memrealtime s[96:97]")
    A("s_cmp_ge_u32 s2, 256")
    A("s_cbranch_scc1 L_end")
    A("s_load_dwordx16 s[16:31], s[0:1], 0")
    A("s_load_dwordx8 s[32:39], s[0:1], 64")
    if o["pf"]:
        A("s_getpc_b64 s[14:15]")
        A(f"v_lshlrev_b32 v{t0}, 7, v0")
        A(f"v_min_u32 v{t0}, {CODE_PF_BYTES - 128}, v{t0}")
        A(f"global_load_dword v{vJunk}, v{t0}, s[14:15] {o['pff']}")
    A(f"v_lshrrev_b32 v{t0}, 6, v0")
    A(f"v_and_b32 v{vLane}, 63, v0")
    A(f"v_readfirstlane_b32 s3, v{t0}")
    A("s_and_b32 s4, s2, 7")
    A("s_lshr_b32 s5, s2, 3")
    A(f"v_and_b32 v{vR}, 15, v{vLane}")
    A(f"v_lshrrev_b32 v{vQd}, 4, v{vLane}")
    A(f"v_lshlrev_b32 v{vL16}, 4, v{vLane}")
    A(f"v_mov_b32 v{k.vFlag}, {FLAGS}")
    A(f"v_mov_b32 v{k.vOne}, 1")
    A(f"v_lshlrev_b32 v{t0}, 2, v{vLane}")
    A(f"v_add_u32 v{t0}, {ONES}, v{t0}")
    A(f"v_mov_b32 v{t1}, 0")
    A(f"v_mov_b32 v{t2}, 0x3f803f80")
    A(f"ds_write_b32 v{t0}, v{t1} offset:{FLAGS - ONES}")
    A("s_mov_b32 exec_hi, 0")
    A(f"ds_write_b32 v{t0}, v{t2}")
    A("s_mov_b64 exec, -1")
    vX = V("x", 4)
    vXR = V("xr", 2)
    vZ = V("zero4", 4)
    k.vSel = V("sel", 4)
    A("s_waitcnt lgkmcnt(0)")
    if o["wsoff"]:
        A(f"s_add_u32 s38, s38, {o['wsoff'] << 20}")
        A("s_addc_u32 s39, s39, 0")
    A(f"global_load_dwordx4 {vr(vX, 4)}, v{vL16}, s[16:17] {o['xf']}")
    A("s_load_dword s56, s[38:39], 0")
    A("s_barrier")
    A("s_cmp_lg_u32 s3, 4")
    A("s_cbranch_scc1 L_compute")
    A(";;LOADER_HERE")
    k.label("L_compute")
    A("s_lshr_b32 s9, s5, 3")
    A("s_and_b32 s7, s5, 7")
    A("s_lshl_b32 s8, s7, 7")
    A("s_lshl_b32 s10, s3, 5")
    A("s_add_u32 s8, s8, s10")
    A(f"v_lshlrev_b32 v{t0}, 3, v{vQd}")
    A(f"v_add_u32 v{t0}, s8, v{t0}")
    A("s_lshl_b32 s8, s5, 5")
    A("s_lshl_b32 s10, s3, 3")
    A("s_add_u32 s8, s8, s10")
    A(f"v_mov_b32 v{t1}, s8")
    A("s_cmp_eq_u32 s4, 7")
    A("s_cselect_b64 s[10:11], -1, 0")
    A(f"v_cndmask_b32 v{t0}, v{t0}, v{t1}, s[10:11]")
    A(f"global_load_dwordx2 {vr(vXR, 2)}, v{t0}, s[16:17]")
    A(f"s_mul_i32 s8, s4, {32 * BS}")
    A(f"s_add_u32 s8, s8, {WS_A}")
    A("s_add_u32 s40, s38, s8")
    A("s_addc_u32 s41, s39, 0")
    A(f"s_mul_i32 s8, s5, {BS}")
    A("s_add_u32 s42, s40, s8")
    A("s_addc_u32 s43, s41, 0")
    for i in range(4):
        A(f"v_mov_b32 v{vZ + i}, 0")
    vWL = V("wl16")
    A("s_lshl_b32 s8, s3, 10")
    A(f"v_add_u32 v{vWL}, s8, v{vL16}")
    A(f"global_load_dword v{vJunk}, v{vWL}, s[42:43] {o['ptf']}")
    A(f"global_store_dwordx4 v{vWL}, {vr(vZ, 4)}, s[42:43]")
    A("s_lshl_b32 s8, s4, 11")
    A(f"s_add_u32 s8, s8, {WS_HINT}")
    A("s_add_u32 s14, s38, s8")
    A("s_addc_u32 s15, s39, 0")
    vL4 = V("l4")
    A(f"v_lshlrev_b32 v{vL4}, 2, v{vLane}")
    A(f"v_lshlrev_b32 v{t0}, 5, v{vLane}")
    A(f"global_load_dword v{vJunk}, v{t0}, s[14:15] {o['ptf']}")
    A("s_mov_b32 s44, s40")
    A("s_mov_b32 s45, s41")
    A(f"s_add_u32 s46, s40, {WS_B - WS_A}")
    A("s_addc_u32 s47, s41, 0")
    A(f"s_add_u32 s48, s42, {WS_B - WS_A}")
    A("s_addc_u32 s49, s43, 0")
    A("s_mov_b32 s50, 0")
    A("s_mov_b32 s51, 0")
    A(f"s_add_u32 s52, s38, {WS_P3}")
    A("s_addc_u32 s53, s39, 0")
    A(f"s_add_u32 s54, s38, {WS_P5}")
    A("s_addc_u32 s55, s39, 0")
    A("s_mov_b32 s62, 0")
    if o["ptx"]:
        A("s_lshl_b32 s8, s7, 5")
        A("s_lshl_b32 s10, s4, 2")
        A("s_add_u32 s8, s8, s10")
        A("s_add_u32 s8, s8, s9")
        A("s_mul_i32 s10, s9, 56")
        A("s_lshl_b32 s11, s4, 3")
        A("s_add_u32 s10, s10, s11")
        A("s_add_u32 s10, s10, s7")
        A(f"s_add_u32 s10, s10, {(WS_P5 - WS_P3) // 512}")
        A("s_cmp_eq_u32 s4, 7")
        A("s_cselect_b32 s10, s8, s10")
        A(f"v_mov_b32 v{t0}, s8")
        A(f"v_writelane_b32 v{t0}, s10, 1")
        A(f"v_lshlrev_b32 v{t0}, 9, v{t0}")
        A("s_lshl_b32 s8, s3, 7")
        A(f"v_add_u32 v{t0}, s8, v{t0}")
        A("s_mov_b64 exec, 3")
        A(f"global_load_dword v{vJunk}, v{t0}, s[52:53] {o['pxf']}")
        if o["pgt"] == 1:
            A(f"global_load_dword v{vJunk}, v{vZ}, s[34:35] nt")
        A("s_mov_b64 exec, -1")
    for i in range(4):
        A(f"v_mov_b32 v{k.vSel + i}, {0x07060500 + i:#x}")
    vRR = V("rr"); vCC = V("cc")
    A(f"v_lshrrev_b32 v{vRR}, 2, v{vR}")
    A(f"v_and_b32 v{vCC}, 3, v{vLane}")
    A(f"v_cmp_eq_u32 s[68:69], 0, v{vR}")
    A(f"v_cmp_gt_u32 s[70:71], 8, v{vR}")
    A(f"v_cmp_eq_u32 s[72:73], 1, v{vRR}")
    A(f"v_cmp_gt_u32 s[74:75], 4, v{vR}")
    A(f"v_and_b32 v{t0}, 2, v{vR}")
    A(f"v_cmp_ne_u32 s[76:77], 0, v{t0}")
    A(f"v_and_b32 v{t0}, 1, v{vR}")
    A(f"v_cmp_ne_u32 s[66:67], 0, v{t0}")
    vTR128 = V("tr128")
    A(f"v_lshl_add_u32 v{t0}, v{vQd}, 2, v{vRR}")
    A(f"v_lshlrev_b32 v{vTR128}, 7, v{t0}")
    A(f"v_bfe_u32 v{t1}, v{t0}, 1, 2")
    A(f"v_lshlrev_b32 v{t1}, 1, v{t1}")
    A(f"v_lshrrev_b32 v{t2}, 1, v{vCC}")
    A("s_lshl_b32 s8, s3, 1")
    A(f"v_add_u32 v{t2}, s8, v{t2}")
    A(f"v_xor_b32 v{t2}, v{t2}, v{t1}")
    A(f"v_lshl_add_u32 v{vTR128}, v{t2}, 4, v{vTR128}")
    A(f"v_and_b32 v{t2}, 1, v{vCC}")
    A(f"v_lshl_add_u32 v{vTR128}, v{t2}, 3, v{vTR128}")
    A(f"v_add_u32 v{vTR128}, {WQL}, v{vTR128}")
    vTR256 = V("tr256", 2)
    A(f"v_lshlrev_b32 v{vTR256}, 8, v{t0}")
    A(f"v_and_b32 v{t1}, 7, v{t0}")
    A(f"v_lshlrev_b32 v{t1}, 1, v{t1}")
    A(f"v_lshrrev_b32 v{t3}, 1, v{vCC}")
    A("s_lshl_b32 s8, s3, 2")
    A(f"v_add_u32 v{t3}, s8, v{t3}")
    A(f"v_xor_b32 v{t3}, v{t3}, v{t1}")
    A(f"v_lshl_add_u32 v{vTR256}, v{t3}, 4, v{vTR256}")
    A(f"v_lshl_add_u32 v{vTR256}, v{t2}, 3, v{vTR256}")
    A(f"v_xor_b32 v{vTR256 + 1}, 32, v{vTR256}")
    vPub = V("pubaddr")
    A("s_lshl_b32 s8, s3, 6")
    A(f"v_lshlrev_b32 v{vPub}, 4, v{vQd}")
    A(f"v_add_u32 v{vPub}, s8, v{vPub}")
    vH1 = V("h1a")
    A(f"v_lshlrev_b32 v{t0}, 3, v{vRR}")
    A(f"v_and_b32 v{t1}, 3, v{vR}")
    A(f"v_lshl_add_u32 v{t0}, v{t1}, 1, v{t0}")
    A("s_lshr_b32 s8, s3, 1")
    A(f"v_add_u32 v{t0}, s8, v{t0}")
    A(f"v_mul_u32_u24 v{t0}, {BS}, v{t0}")
    A("s_and_b32 s8, s3, 1")
    A("s_lshl_b32 s8, s8, 7")
    A(f"v_lshl_add_u32 v{vH1}, v{vQd}, 5, v{t0}")
    A(f"v_add_u32 v{vH1}, s8, v{vH1}")
    vXNr = V("xnr")
    A("s_lshl_b32 s8, s3, 10")
    A("s_lshl_b32 s10, s9, 8")
    A("s_add_u32 s8, s8, s10")
    A(f"s_add_u32 s8, s8, {XN}")
    A(f"v_lshlrev_b32 v{vXNr}, 4, v{vQd}")
    A(f"v_add_u32 v{vXNr}, s8, v{vXNr}")
    A(f"v_add_u32 v{t7}, {XN}, v{vWL}")

    vF = V("f", 8)
    A(f"s_waitcnt vmcnt({(5 + (o['pgt'] == 1)) if o['ptx'] else 4})")
    for i in range(4):
        A(f"v_lshlrev_b32 v{vF + 2 * i}, 16, v{vX + i}")
        A(f"v_and_b32 v{vF + 2 * i + 1}, 0xffff0000, v{vX + i}")
    A(f"v_add_f32 v{t0}, v{vF}, v{vF + 1}")
    A(f"v_mul_f32 v{t1}, v{vF}, v{vF}")
    A(f"v_fmac_f32 v{t1}, v{vF + 1}, v{vF + 1}")
    for i in range(2, 8):
        A(f"v_add_f32 v{t0}, v{t0}, v{vF + i}")
        A(f"v_fmac_f32 v{t1}, v{vF + i}, v{vF + i}")
    k.reduce64_to_lane63([t0, t1])
    A(f"v_readlane_b32 s8, v{t0}, 63")
    A(f"v_readlane_b32 s10, v{t1}, 63")
    A(f"v_mov_b32 v{t0}, s8")
    A(f"v_mov_b32 v{t1}, s10")
    k.ln_scalars(t0, t1)
    for i in range(8):
        A(f"v_sub_f32 v{vF + i}, v{vF + i}, v{t0}")
    for i in range(4):
        k.round_bf16_pair(vF + 2 * i, vF + 2 * i + 1, vF + 2 * i, vF + 2 * i + 1, t3)
    for i in range(8):
        A(f"v_mul_f32 v{vF + i}, v{vF + i}, v{t1}")
    for i in range(4):
        A(f"v_cvt_pk_bf16_f32 v{vX + i}, v{vF + 2 * i}, v{vF + 2 * i + 1}")
    A(f"ds_write_b128 v{t7}, {vr(vX, 4)}")
    vB = V("bfrag", 16)
    for ks in range(4):
        A(f"ds_read_b128 {vr(vB + 4 * ks, 4)}, v{vXNr} offset:{ks * 64}")
    A("s_waitcnt lgkmcnt(0)")
    A("s_add_u32 s13, s56, 1")
    A("s_and_b32 s13, s13, 0x0fffffff")
    for i, sh in enumerate((0, 7, 0, 14)):
        A(f"s_bfe_u32 s8, s13, {(7 << 16) | sh:#x}")
        if i == 2:
            A("s_xor_b32 s8, s8, 0x2a")
        A(f"s_or_b32 s{57 + i}, s8, 0x80")
    A("s_lshl_b32 s8, s58, 8")
    A("s_or_b32 s56, s57, s8")
    A("s_lshl_b32 s8, s59, 16")
    A("s_or_b32 s56, s56, s8")
    A("s_lshl_b32 s8, s60, 24")
    A("s_or_b32 s56, s56, s8")
    A("s_mul_i32 s12, s57, 0x01010101")
    vHs1 = V("hs1")
    A("s_lshl_b32 s8, s5, 2")
    A("s_add_u32 s8, s8, s3")
    A(f"v_mov_b32 v{vHs1}, s8")
    vHB = V("hintbyte")
    A(f"v_mov_b32 v{vHB}, s57")
    A.stamp(1)
    vW = V("wfrag", 16)
    k.lds_wait(F_WQ, 1, t0)
    for ks in range(4):
        for hf in range(2):
            A(f"ds_read_b64_tr_b16 {vr(vW + 4 * ks + 2 * hf, 2)}, v{vTR128} offset:{ks * 4096 + hf * 2048}")
    vD = V("d", 8)
    for ks in range(4):
        A(f"s_waitcnt lgkmcnt({6 - 2 * ks})")
        A(f"v_mfma_f32_16x16x32_bf16 {vr(vD, 4)}, {vr(vW + 4 * ks, 4)}, {vr(vB + 4 * ks, 4)}, {'0' if ks == 0 else vr(vD, 4)}")
    k.tag4(vD)
    A("s_mov_b64 exec, s[68:69]")
    A(f"global_store_dwordx4 v{vPub}, {vr(vD, 4)}, s[42:43] offset:{B_P1}")
    A("s_mov_b64 exec, 1")
    A(f"global_store_byte v{vHs1}, v{vHB}, s[14:15] offset:1024")
    A("s_mov_b64 exec, -1")
    A.stamp(2)
    vG = V("g", 24)
    vAcc = V("acc")
    vRing = V("ring", max(24, 8 * NP))

    def h1_issue(s):
        A(f"global_load_dwordx4 {vr(vRing + 8 * s, 4)}, v{vH1}, s[44:45] offset:{B_P1} sc1")
        A(f"global_load_dwordx4 {vr(vRing + 8 * s + 4, 4)}, v{vH1}, s[44:45] offset:{B_P1 + 16} sc1")

    later = []
    LA = later.append
    vL16Q = V("l16q")
    LA(f"v_add_u32 v{vL16Q}, {QF}, v{vL16}")
    vKa = V("ka", 4)
    LA("s_lshl_b32 s8, s3, 13")
    LA(f"v_lshlrev_b32 v{vKa}, 8, v{vR}")
    LA(f"v_add_u32 v{vKa}, s8, v{vKa}")
    LA(f"v_xor_b32 v{t1}, v{vQd}, v{vR}")
    LA(f"v_lshl_add_u32 v{vKa}, v{t1}, 4, v{vKa}")
    LA(f"v_xor_b32 v{vKa + 1}, 64, v{vKa}")
    LA(f"v_xor_b32 v{vKa + 2}, 128, v{vKa}")
    LA(f"v_xor_b32 v{vKa + 3}, 192, v{vKa}")
    vMXw = V("mxw"); vMXr = V("mxr")
    LA(f"v_lshlrev_b32 v{vMXr}, 6, v{vR}")
    LA(f"v_add_u32 v{vMXr}, {MX}, v{vMXr}")
    LA("s_lshl_b32 s8, s3, 4")
    LA(f"v_lshl_add_u32 v{vMXw}, v{vQd}, 2, v{vMXr}")
    LA(f"v_add_u32 v{vMXw}, s8, v{vMXw}")
    vMX2w = V("mx2w"); vMX2r = V("mx2r")
    LA(f"v_lshlrev_b32 v{vMX2r}, 4, v{vR}")
    LA(f"v_add_u32 v{vMX2r}, {MX}, v{vMX2r}")
    LA("s_lshl_b32 s8, s3, 2")
    LA(f"v_add_u32 v{vMX2w}, s8, v{vMX2r}")
    vSelP = V("selp", 2)
    LA(f"v_and_b32 v{t0}, 1, v{vRR}")
    LA(f"v_lshlrev_b32 v{t0}, 1, v{t0}")
    LA(f"v_add_u32 v{vSelP}, 0x07060500, v{t0}")
    LA(f"v_add_u32 v{vSelP + 1}, 0x07060501, v{t0}")
    vP2a = V("p2a")
    LA(f"v_and_b32 v{t0}, 3, v{vR}")
    LA(f"v_lshlrev_b32 v{vP2a}, 9, v{t0}")
    LA(f"v_lshl_add_u32 v{vP2a}, v{vRR}, 6, v{vP2a}")
    LA(f"v_lshl_add_u32 v{vP2a}, v{vQd}, 4, v{vP2a}")
    LA("s_lshl_b32 s8, s3, 7")
    LA(f"v_add_u32 v{vP2a}, s8, v{vP2a}")
    vH2 = V("h2a", 4)
    LA("s_lshl_b32 s10, s9, 9")
    LA("s_add_u32 s10, s10, s8")
    LA(f"v_mul_u32_u24 v{t0}, {BS}, v{vR}")
    LA(f"v_lshl_add_u32 v{vH2}, v{vQd}, 4, v{t0}")
    LA(f"v_add_u32 v{vH2}, s10, v{vH2}")
    LA(f"v_add_u32 v{vH2 + 1}, {16 * BS}, v{vH2}")
    LA("s_lshl_b32 s10, s9, 4")
    LA(f"v_add_u32 v{vH2 + 2}, s10, v{t0}")
    LA(f"v_add_u32 v{vH2 + 3}, {16 * BS}, v{vH2 + 2}")
    vHs2 = V("hs2"); vHr2 = V("hr2"); vHs4 = V("hs4"); vHr4 = V("hr4")
    LA("s_lshl_b32 s8, s3, 7")
    LA(f"v_add_u32 v{vHr2}, s8, v{vL4}")
    LA("s_add_u32 s8, s8, s5")
    LA(f"v_mov_b32 v{vHs2}, s8")
    LA("s_lshl_b32 s8, s9, 7")
    LA("s_lshl_b32 s10, s7, 2")
    LA("s_add_u32 s8, s8, s10")
    LA("s_add_u32 s8, s8, s3")
    LA(f"v_mov_b32 v{vHs4}, s8")
    LA("s_lshr_b32 s8, s7, 1")
    LA("s_lshl_b32 s8, s8, 7")
    LA(f"v_add_u32 v{vHr4}, s8, v{vL4}")
    vOFw = V("ofw"); vQ16 = V("q16")
    LA(f"v_add_u32 v{vOFw}, {OF}, v{vPub}")
    LA(f"v_lshlrev_b32 v{vQ16}, 4, v{vQd}")
    LA(f"v_add_u32 v{vQ16}, {OF}, v{vQ16}")
    vP3a = V("p3a")
    LA("s_lshl_b32 s8, s7, 5")
    LA("s_lshl_b32 s10, s4, 2")
    LA("s_add_u32 s8, s8, s10")
    LA("s_add_u32 s8, s8, s9")
    LA("s_lshl_b32 s8, s8, 9")
    LA("s_lshl_b32 s10, s3, 6")
    LA("s_add_u32 s8, s8, s10")
    LA(f"v_add_u32 v{vP3a}, s8, v{vPub}")
    vH3 = V("h3a", 2); vP4a = V("p4a")
    LA("s_lshl_b32 s8, s7, 14")
    LA("s_add_u32 s8, s8, s10")
    LA(f"v_lshl_add_u32 v{vP4a}, v{vR}, 8, v{vPub}")
    LA(f"v_lshl_add_u32 v{vH3}, v{vR}, 9, v{vPub}")
    LA(f"v_add_u32 v{vH3}, s8, v{vH3}")
    LA(f"v_add_u32 v{vH3 + 1}, 8192, v{vH3}")
    vHFw = V("hfw"); vHFa = V("hfa"); vHFb = V("hfb")
    LA("s_lshr_b32 s8, s3, 1")
    LA("s_lshl_b32 s8, s8, 6")
    LA("s_and_b32 s10, s3, 1")
    LA("s_lshl_b32 s10, s10, 3")
    LA("s_add_u32 s8, s8, s10")
    LA(f"v_lshlrev_b32 v{vHFa}, 4, v{vQd}")
    LA(f"v_add_u32 v{vHFa}, {HF}, v{vHFa}")
    LA(f"v_add_u32 v{vHFw}, s8, v{vHFa}")
    LA(f"v_and_b32 v{t0}, 1, v{vR}")
    LA(f"v_lshl_add_u32 v{vHFb}, v{t0}, 7, v{vHFa}")
    vH4 = V("h4a", 2)
    LA("s_lshr_b32 s8, s7, 1")
    LA(f"s_mul_i32 s8, s8, {8 * BS}")
    LA("s_and_b32 s10, s7, 1")
    LA("s_lshl_b32 s10, s10, 7")
    LA("s_lshl_b32 s11, s3, 4")
    LA("s_add_u32 s10, s10, s11")
    LA(f"v_and_b32 v{t0}, 7, v{vLane}")
    LA(f"v_mul_u32_u24 v{t0}, {BS}, v{t0}")
    LA(f"v_add_u32 v{vH4}, s8, v{t0}")
    LA(f"v_bfe_u32 v{t1}, v{vLane}, 3, 2")
    LA(f"v_lshl_add_u32 v{t1}, v{t1}, 8, v{vH4}")
    LA(f"v_lshrrev_b32 v{t0}, 5, v{vLane}")
    LA(f"v_lshl_add_u32 v{t1}, v{t0}, 6, v{t1}")
    LA(f"v_add_u32 v{vH4 + 1}, s10, v{t1}")
    vHHw = V("hhw"); vHHr = V("hhr")
    LA(f"v_lshlrev_b32 v{vHHw}, 3, v{t0}")
    LA(f"v_lshl_add_u32 v{vHHw}, v{vCC}, 1, v{vHHw}")
    LA(f"s_add_u32 s11, s11, {HH}")
    LA(f"v_add_u32 v{vHHw}, s11, v{vHHw}")
    LA(f"v_lshlrev_b32 v{vHHr}, 4, v{vQd}")
    LA(f"v_add_u32 v{vHHr}, {HH}, v{vHHr}")
    vP5a = V("p5a")
    LA("s_mul_i32 s8, s9, 56")
    LA("s_lshl_b32 s10, s4, 3")
    LA("s_add_u32 s8, s8, s10")
    LA("s_add_u32 s8, s8, s7")
    LA("s_lshl_b32 s8, s8, 9")
    LA("s_lshl_b32 s10, s3, 7")
    LA("s_add_u32 s8, s8, s10")
    LA(f"v_lshlrev_b32 v{vP5a}, 4, v{vQd}")
    LA(f"v_add_u32 v{vP5a}, s8, v{vP5a}")
    LA(f"v_and_b32 v{t0}, 1, v{vR}")
    LA(f"v_lshl_add_u32 v{vP5a}, v{t0}, 6, v{vP5a}")
    LA(f"v_cmp_gt_u32 s[10:11], 2, v{vR}")
    LA("s_mov_b64 s[0:1], s[10:11]")

    vTW2 = V("tw2", 2)
    LA(f"v_add_u32 v{vTW2}, {W2L}, v{vTR256}")
    LA(f"v_add_u32 v{vTW2 + 1}, {W2L}, v{vTR256 + 1}")
    vXF = V("xf", 4)
    LA("s_waitcnt vmcnt(4)")
    LA(f"v_lshlrev_b32 v{vXF}, 16, v{vXR}")
    LA(f"v_and_b32 v{vXF + 1}, 0xffff0000, v{vXR}")
    LA(f"v_lshlrev_b32 v{vXF + 2}, 16, v{vXR + 1}")
    LA(f"v_and_b32 v{vXF + 3}, 0xffff0000, v{vXR + 1}")

    def h1_ok(s):
        for i in range(8):
            A(f"v_add_f32_dpp v{vG + i}, v{vRing + 8 * s + i}, v{vRing + 8 * s + i} row_ror:4 {DPPM}")

    def h1_fill():
        for s_ in later:
            A(s_)
    if o["hint1"]:
        k.hint_ring("hr1", vL4, 1024, [vRing + 16 + i for i in range(o["NH"])], "s_mov_b32 exec_hi, 0", filler=h1_fill)
        k.poll([f"global_load_dwordx4 {vr(vRing, 4)}, v{vH1}, s[44:45] offset:{B_P1} sc1",
                f"global_load_dwordx4 {vr(vRing + 4, 4)}, v{vH1}, s[44:45] offset:{B_P1 + 16} sc1"],
               [vRing, vRing + 4], vAcc, True, hook=lambda: k.lds_signal(F_G1))
        h1_ok(0)
    else:
        h1_fill()
        if o["GAP0"]:
            A(f"s_sleep {o['GAP0']}")
        k.ring_poll("h1", NP, h1_issue, lambda s: [vRing + 8 * s, vRing + 8 * s + 4], 2, vAcc, True, o["GAP"], h1_ok, pace=o['PACE'])
    h2_loads = [f"global_load_dwordx4 {vr(vG, 4)}, v{vH2}, s[44:45] offset:{B_P2} sc1",
                f"global_load_dwordx4 {vr(vG + 4, 4)}, v{vH2}, s[44:45] offset:{B_P2 + 64} sc1",
                f"global_load_dwordx4 {vr(vG + 8, 4)}, v{vH2 + 1}, s[44:45] offset:{B_P2} sc1",
                f"global_load_dwordx4 {vr(vG + 12, 4)}, v{vH2 + 1}, s[44:45] offset:{B_P2 + 64} sc1"]
    if o["ptl"] & 1:
        A(f"global_load_dword v{vJunk}, v{vWL}, s[42:43] {o['ptf']}")
    if o["ptc"]:
        A(f"global_load_dword v{vJunk}, v{vH2}, s[44:45] offset:{B_P2} sc1")
        A(f"global_load_dword v{vJunk}, v{vH2 + 1}, s[44:45] offset:{B_P2} sc1")
        A(f"global_load_dword v{vJunk}, v{vH2 + 2}, s[44:45] offset:{B_ML} sc1")
        A(f"global_load_dword v{vJunk}, v{vH2 + 3}, s[44:45] offset:{B_ML} sc1")
        A(f"global_load_dword v{vJunk}, v{vL16}, s[14:15] sc1")
    if o["ptp"]:
        skp = k.newlabel("skp")
        A("s_cmp_eq_u32 s3, 1")
        A(f"s_cbranch_scc1 {skp}")
        A("s_cmp_eq_u32 s3, 0")
        A("s_cselect_b32 exec_lo, 0xffff0000, -1")
        A(f"global_store_dwordx4 v{vWL}, {vr(vZ, 4)}, s[42:43]")
        A("s_mov_b64 exec, -1")
        k.label(skp)
    A.stamp(3)
    k.allreduce16("v_add_f32", list(range(vG, vG + 8)), steps=(8,))
    for i in range(4):
        A(f"v_cvt_pk_bf16_f32 v{vX + i}, v{vG + 2 * i}, v{vG + 2 * i + 1}")
    A(f"v_add_u32 v{t0}, {QF}, v{vWL}")
    A(f"ds_write_b128 v{t0}, {vr(vX, 4)}")
    k.lds_signal(F_Q)
    vKF = V("kfrag", 32)
    k.lds_wait(F_K, 1, t4)
    for kt in range(2):
        for s in range(4):
            A(f"ds_read_b128 {vr(vKF + 16 * kt + 4 * s, 4)}, v{vKa + s} offset:{KL + kt * 4096}")
    A.stamp(1, 2)
    k.lds_wait(F_Q, 4, t4, [f"ds_read_b128 {vr(vB + 4 * s, 4)}, v{vL16Q} offset:{s * 1024}" for s in range(4)])
    for s in range(4):
        for kt in range(2):
            A(f"v_mfma_f32_16x16x32_bf16 {vr(vD + 4 * kt, 4)}, {vr(vKF + 16 * kt + 4 * s, 4)}, {vr(vB + 4 * s, 4)}, {'0' if s == 0 else vr(vD + 4 * kt, 4)}")
    A.stamp(2, 2)
    A(f"s_mov_b32 s8, {SCALE:#x}")
    for i in range(4):
        k.round_bf16_pair(vF + 2 * i, vF + 2 * i + 1, vD + 2 * i, vD + 2 * i + 1, t0)
    for i in range(8):
        A(f"v_mul_f32 v{vF + i}, s8, v{vF + i}")
    for i in range(4):
        k.round_bf16_pair(vF + 2 * i, vF + 2 * i + 1, vF + 2 * i, vF + 2 * i + 1, t0)
    A(f"v_max3_f32 v{t0}, v{vF}, v{vF + 1}, v{vF + 2}")
    A(f"v_max3_f32 v{t1}, v{vF + 3}, v{vF + 4}, v{vF + 5}")
    A(f"v_max3_f32 v{t0}, v{t0}, v{vF + 6}, v{vF + 7}")
    A(f"v_max_f32 v{t0}, v{t0}, v{t1}")
    if o['wl']:
        A(f"v_mov_b32 v{t1}, v{t0}")
        A(f"v_permlane16_swap_b32 v{t0}, v{t1}")
        A(f"v_max_f32 v{t0}, v{t0}, v{t1}")
        A(f"v_mov_b32 v{t1}, v{t0}")
        A(f"v_permlane32_swap_b32 v{t0}, v{t1}")
        A(f"v_max_f32 v{t0}, v{t0}, v{t1}")
        A(f"s_mov_b32 s8, {LOG2E:#x}")
        A(f"v_mul_f32 v{t1}, s8, v{t0}")
        for i in range(8):
            A(f"v_fma_f32 v{vF + i}, v{vF + i}, s8, -v{t1}")
        for i in range(8):
            A(f"v_exp_f32 v{vF + i}, v{vF + i}")
        for i in range(4):
            A(f"v_cvt_pk_bf16_f32 v{vX + i}, v{vF + 2 * i}, v{vF + 2 * i + 1}")
        A(f"v_add_u32 v{t1}, {PF}, v{vWL}")
        A(f"ds_write_b128 v{t1}, {vr(vX, 4)}")
        A(f"ds_write_b32 v{vMX2w}, v{t0}")
        A(f"v_add_f32 v{t2}, v{vF}, v{vF + 1}")
        A(f"v_add_f32 v{t3}, v{vF + 2}, v{vF + 3}")
        for i in range(4, 8, 2):
            A(f"v_add_f32 v{t2}, v{t2}, v{vF + i}")
            A(f"v_add_f32 v{t3}, v{t3}, v{vF + i + 1}")
        A(f"v_add_f32 v{t2}, v{t2}, v{t3}")
        A(f"v_mov_b32 v{t3}, v{t2}")
        A(f"v_permlane16_swap_b32 v{t2}, v{t3}")
        A(f"v_add_f32 v{t2}, v{t2}, v{t3}")
        A(f"v_mov_b32 v{t3}, v{t2}")
        A(f"v_permlane32_swap_b32 v{t2}, v{t3}")
        A(f"v_add_f32 v{t2}, v{t2}, v{t3}")
        A(f"ds_write_b32 v{vMX2w}, v{t2} offset:{LS - MX}")
        k.lds_signal(F_P)
        A.stamp(4, 2)
        vML = V("ml", 4)
        vM = vML
        vSC = V("sc", 4)
        k.lds_wait(F_P, 4, t4,
                   [f"ds_read_b128 {vr(vB + 4 * s, 4)}, v{vL16Q} offset:{PF - QF + s * 1024}" for s in range(4)] +
                   [f"ds_read_b128 {vr(vSC, 4)}, v{vMX2r}", f"ds_read_b128 {vr(vG, 4)}, v{vMX2r} offset:{LS - MX}"])
        A.stamp(5, 2)
        A(f"v_max3_f32 v{vM}, v{vSC}, v{vSC + 1}, v{vSC + 2}")
        A(f"v_max_f32 v{vM}, v{vM}, v{vSC + 3}")
        for i in range(4):
            A(f"v_sub_f32 v{vSC + i}, v{vSC + i}, v{vM}")
        for i in range(4):
            A(f"v_mul_f32 v{vSC + i}, s8, v{vSC + i}")
        for i in range(4):
            A(f"v_exp_f32 v{vSC + i}, v{vSC + i}")
        if o["lam"]:
            A(f"v_mul_f32 v{vML + 1}, v{vSC}, v{vG}")
            for i in range(1, 4):
                A(f"v_fmac_f32 v{vML + 1}, v{vSC + i}, v{vG + i}")
            A(f"v_rcp_f32 v{vML + 2}, v{vML + 1}")
            A(f"v_log_f32 v{vML + 1}, v{vML + 1}")
            for i in range(4):
                A(f"v_mul_f32 v{vSC + i}, v{vML + 2}, v{vSC + i}")
            A(f"v_fmac_f32 v{vML + 1}, s8, v{vM}")
        else:
            skipml = k.newlabel("skipml")
            A("s_cmp_lg_u32 s3, 0")
            A(f"s_cbranch_scc1 {skipml}")
            A(f"v_mul_f32 v{vML + 1}, v{vSC}, v{vG}")
            for i in range(1, 4):
                A(f"v_fmac_f32 v{vML + 1}, v{vSC + i}, v{vG + i}")
            A(f"v_mov_b32 v{vML + 2}, 0")
            A(f"v_mov_b32 v{vML + 3}, 0")
            k.tag4(vML)
            A("s_mov_b64 exec, 15")
            A(f"global_store_dwordx4 v{vL16}, {vr(vML, 4)}, s[42:43] offset:{B_ML}")
            A("s_mov_b64 exec, -1")
            k.label(skipml)
        ml_loads = [f"global_load_dwordx4 {vr(vG + 16, 4)}, v{vH2 + 2}, s[44:45] offset:{B_ML} sc1",
                    f"global_load_dwordx4 {vr(vG + 20, 4)}, v{vH2 + 3}, s[44:45] offset:{B_ML} sc1"]
        if o["mlpre"] and o["mlsep"]:
            for l_ in ml_loads:
                A(l_)
        A.stamp(4)
        vO = vW
        if o["vq"]:
            for ks in range(4):
                k.lds_wait(F_V, ks + 1, t4)
                if ks == 3:
                    A.stamp(5)
                for t in range(2):
                    for hf in range(2):
                        A(f"ds_read_b64_tr_b16 {vr(vKF + 8 * ks + 4 * t + 2 * hf, 2)}, v{vTR256 + t} offset:{VL + ks * 8192 + hf * 4096}")
                if ks:
                    for i in range(4):
                        A(f"v_cndmask_b32 v{vO + 4 * (ks - 1) + i}, v{vO + 4 * (ks - 1) + i}, v{vG + 4 * (ks - 1) + i}, s[72:73]")
                    for i in range(4):
                        if ks == 1:
                            A(f"v_mul_f32 v{vD + i}, v{vSC}, v{vO + i}")
                        else:
                            A(f"v_fmac_f32 v{vD + i}, v{vSC + ks - 1}, v{vO + 4 * (ks - 1) + i}")
                A("s_waitcnt lgkmcnt(2)")
                A(f"v_mfma_f32_16x16x32_bf16 {vr(vO + 4 * ks, 4)}, {vr(vKF + 8 * ks, 4)}, {vr(vB + 4 * ks, 4)}, 0")
                A("s_waitcnt lgkmcnt(0)")
                A(f"v_mfma_f32_16x16x32_bf16 {vr(vG + 4 * ks, 4)}, {vr(vKF + 8 * ks + 4, 4)}, {vr(vB + 4 * ks, 4)}, 0")
        else:
            k.lds_wait(F_V, 1, t4)
            A.stamp(5)
            for ks in range(4):
                for t in range(2):
                    for hf in range(2):
                        A(f"ds_read_b64_tr_b16 {vr(vKF + 8 * ks + 4 * t + 2 * hf, 2)}, v{vTR256 + t} offset:{VL + ks * 8192 + hf * 4096}")
            for ks in range(4):
                A(f"s_waitcnt lgkmcnt({12 - 4 * ks})")
                A(f"v_mfma_f32_16x16x32_bf16 {vr(vO + 4 * ks, 4)}, {vr(vKF + 8 * ks, 4)}, {vr(vB + 4 * ks, 4)}, 0")
                A(f"v_mfma_f32_16x16x32_bf16 {vr(vG + 4 * ks, 4)}, {vr(vKF + 8 * ks + 4, 4)}, {vr(vB + 4 * ks, 4)}, 0")
        for ks in (range(3, 4) if o["vq"] else range(4)):
            for i in range(4):
                A(f"v_cndmask_b32 v{vO + 4 * ks + i}, v{vO + 4 * ks + i}, v{vG + 4 * ks + i}, s[72:73]")
            for i in range(4):
                if ks == 0:
                    A(f"v_mul_f32 v{vD + i}, v{vSC}, v{vO + i}")
                else:
                    A(f"v_fmac_f32 v{vD + i}, v{vSC + ks}, v{vO + 4 * ks + i}")
    else:
        A(f"ds_write_b32 v{vMXw}, v{t0}")
        k.lds_signal(F_M)
        A(f"s_mov_b32 s8, {LOG2E:#x}")
        for i in range(8):
            A(f"v_mul_f32 v{vF + i}, s8, v{vF + i}")
        k.lds_wait(F_M, 4, t4, [f"ds_read_b128 {vr(vG + 4 * i, 4)}, v{vMXr} offset:{16 * i}" for i in range(4)])
        A.stamp(4, 2)
        vML = V("ml", 4)
        vM = vML
        A(f"v_max3_f32 v{vM}, v{vG}, v{vG + 1}, v{vG + 2}")
        A(f"v_max3_f32 v{t1}, v{vG + 3}, v{vG + 4}, v{vG + 5}")
        A(f"v_max3_f32 v{t2}, v{vG + 6}, v{vG + 7}, v{vG + 8}")
        A(f"v_max3_f32 v{t3}, v{vG + 9}, v{vG + 10}, v{vG + 11}")
        A(f"v_max3_f32 v{vM}, v{vM}, v{vG + 12}, v{vG + 13}")
        A(f"v_max3_f32 v{t1}, v{t1}, v{vG + 14}, v{vG + 15}")
        A(f"v_max3_f32 v{vM}, v{vM}, v{t1}, v{t2}")
        A(f"v_max_f32 v{vM}, v{vM}, v{t3}")
        A(f"v_mul_f32 v{t1}, s8, v{vM}")
        for i in range(8):
            A(f"v_sub_f32 v{vF + i}, v{vF + i}, v{t1}")
        for i in range(8):
            A(f"v_exp_f32 v{vF + i}, v{vF + i}")
        for i in range(4):
            A(f"v_cvt_pk_bf16_f32 v{vX + i}, v{vF + 2 * i}, v{vF + 2 * i + 1}")
        A(f"v_add_u32 v{t1}, {PF}, v{vWL}")
        A(f"ds_write_b128 v{t1}, {vr(vX, 4)}")
        A(f"v_add_f32 v{t0}, v{vF}, v{vF + 1}")
        for i in range(2, 8):
            A(f"v_add_f32 v{t0}, v{t0}, v{vF + i}")
        A(f"ds_write_b32 v{vMXw}, v{t0} offset:{LS - MX}")
        k.lds_signal(F_P)
        k.lds_wait(F_P, 4, t4,
                   [f"ds_read_b128 {vr(vB + 4 * s, 4)}, v{vL16Q} offset:{PF - QF + s * 1024}" for s in range(4)] +
                   [f"ds_read_b128 {vr(vG + 4 * i, 4)}, v{vMXr} offset:{LS - MX + 16 * i}" for i in range(4)])
        A.stamp(5, 2)
        skipml = k.newlabel("skipml")
        A("s_cmp_lg_u32 s3, 0")
        A(f"s_cbranch_scc1 {skipml}")
        A(f"v_add_f32 v{vML + 1}, v{vG}, v{vG + 1}")
        for i in range(2, 16):
            A(f"v_add_f32 v{vML + 1}, v{vML + 1}, v{vG + i}")
        A(f"v_mov_b32 v{vML + 2}, 0")
        A(f"v_mov_b32 v{vML + 3}, 0")
        k.tag4(vML)
        A("s_mov_b64 exec, 15")
        A(f"global_store_dwordx4 v{vL16}, {vr(vML, 4)}, s[42:43] offset:{B_ML}")
        A("s_mov_b64 exec, -1")
        k.label(skipml)
        ml_loads = [f"global_load_dwordx4 {vr(vG + 16, 4)}, v{vH2 + 2}, s[44:45] offset:{B_ML} sc1",
                f"global_load_dwordx4 {vr(vG + 20, 4)}, v{vH2 + 3}, s[44:45] offset:{B_ML} sc1"]
        if o["mlpre"] and o["mlsep"]:
            for l_ in ml_loads:
                A(l_)
        A.stamp(4)
        k.lds_wait(F_V, 1, t4)
        A.stamp(5)
        for ks in range(4):
            for t in range(2):
                for hf in range(2):
                    A(f"ds_read_b64_tr_b16 {vr(vKF + 8 * ks + 4 * t + 2 * hf, 2)}, v{vTR256 + t} offset:{VL + ks * 8192 + hf * 4096}")
        for ks in range(4):
            A(f"s_waitcnt lgkmcnt({12 - 4 * ks})")
            for t in range(2):
                A(f"v_mfma_f32_16x16x32_bf16 {vr(vD + 4 * t, 4)}, {vr(vKF + 8 * ks + 4 * t, 4)}, {vr(vB + 4 * ks, 4)}, {'0' if ks == 0 else vr(vD + 4 * t, 4)}")
        for i in range(4):
            A(f"v_cndmask_b32 v{vD + i}, v{vD + i}, v{vD + 4 + i}, s[72:73]")
    if o["lam"]:
        A(f"v_perm_b32 v{vD}, v{vD}, s56, v{vSelP}")
        A(f"v_perm_b32 v{vD + 1}, v{vD + 1}, s56, v{vSelP + 1}")
        A(f"v_perm_b32 v{vD + 2}, v{vD + 2}, v{vML + 1}, v{vSelP}")
        A(f"v_perm_b32 v{vD + 3}, v{vD + 3}, v{vML + 1}, v{vSelP + 1}")
    else:
        k.tag4(vD)
    A("s_mov_b64 exec, s[70:71]")
    A(f"global_store_dwordx4 v{vP2a}, {vr(vD, 4)}, s[42:43] offset:{B_P2}")
    A("s_mov_b64 exec, 1")
    A(f"global_store_byte v{vHs2}, v{vHB}, s[14:15]")
    A("s_mov_b64 exec, -1")
    A.stamp(6)
    m1, l1, m2, l2 = vG + 16, vG + 17, vG + 20, vG + 21

    def ml_weights():
        A(f"v_and_b32 v{m1}, 0xffffff00, v{m1}")
        A(f"v_and_b32 v{m2}, 0xffffff00, v{m2}")
        A(f"v_max_f32 v{t0}, v{m1}, v{m2}")
        k.allreduce16("v_max_f32", [t0])
        A(f"s_mov_b32 s8, {LOG2E:#x}")
        A(f"v_sub_f32 v{m1}, v{m1}, v{t0}")
        A(f"v_sub_f32 v{m2}, v{m2}, v{t0}")
        A(f"v_mul_f32 v{m1}, s8, v{m1}")
        A(f"v_mul_f32 v{m2}, s8, v{m2}")
        A(f"v_exp_f32 v{m1}, v{m1}")
        A(f"v_exp_f32 v{m2}, v{m2}")
        A(f"v_mul_f32 v{t1}, v{m1}, v{l1}")
        A(f"v_fmac_f32 v{t1}, v{m2}, v{l2}")
        k.allreduce16("v_add_f32", [t1])
        A(f"v_rcp_f32 v{t1}, v{t1}")
        A(f"v_mul_f32 v{m1}, v{t1}, v{m1}")
        A(f"v_mul_f32 v{m2}, v{t1}, v{m2}")
    if o["mlsep"]:
        k.poll(ml_loads, [vG + 16, vG + 20], vAcc, True, preissued=bool(o["mlpre"]), first_wait=2 if o["mlpre"] else 0)
        A.stamp(1, 1)
        ml_weights()
    if o["hint2"]:
        if o["NH2"]:
            k.hint_ring("hr2", vHr2, 0, [vRing + 16 + i for i in range(o["NH2"])], "s_mov_b64 exec, 0xff", gap=1)
        else:
            k.hint_wait(vHr2, 0, t4)
    A.stamp(2, 1)

    def hook3():
        k.lds_signal(F_G2)
        k.lds_wait(F_WO, 1, t4)
        for ks in range(4):
            for hf in range(2):
                A(f"ds_read_b64_tr_b16 {vr(vW + 4 * ks + 2 * hf, 2)}, v{vTR128} offset:{WOL - WQL + ks * 4096 + hf * 2048}")
    if o["lam"]:
        A("s_mov_b32 s10, 0x0c0c0400")
        A("s_mov_b32 s11, 0x04000c0c")
        k.poll(h2_loads, [(vG + b_ + i_, 2 * (b_ // 4 % 2) + i_) for b_ in (0, 4, 8, 12) for i_ in range(2)], vAcc, True, hook=hook3)
        A(f"v_perm_b32 v{m1}, v{vG + 3}, v{vG + 2}, s10")
        A(f"v_perm_b32 v{l1}, v{vG + 7}, v{vG + 6}, s11")
        A(f"v_perm_b32 v{m2}, v{vG + 11}, v{vG + 10}, s10")
        A(f"v_perm_b32 v{l2}, v{vG + 15}, v{vG + 14}, s11")
        A(f"v_or_b32 v{m1}, v{m1}, v{l1}")
        A(f"v_or_b32 v{m2}, v{m2}, v{l2}")
        A(f"v_max_f32 v{t0}, v{m1}, v{m2}")
        k.allreduce16("v_max_f32", [t0])
        A(f"v_sub_f32 v{m1}, v{m1}, v{t0}")
        A(f"v_sub_f32 v{m2}, v{m2}, v{t0}")
        A(f"v_exp_f32 v{m1}, v{m1}")
        A(f"v_exp_f32 v{m2}, v{m2}")
    elif o["mlsep"]:
        k.poll(h2_loads, [vG, vG + 4, vG + 8, vG + 12], vAcc, True, hook=hook3)
    else:
        k.poll(ml_loads + h2_loads, [vG + 16, vG + 20, vG, vG + 4, vG + 8, vG + 12], vAcc, True, hook=hook3)
        ml_weights()
    A.stamp(7)
    for i in range(8):
        A(f"v_mul_f32 v{vG + i}, v{m1}, v{vG + i}")
    for i in range(8):
        A(f"v_fmac_f32 v{vG + i}, v{m2}, v{vG + 8 + i}")
    if o["lam"]:
        A(f"v_add_f32 v{t1}, v{m1}, v{m2}")
        k.allreduce16("v_add_f32", [t1] + list(range(vG, vG + 8)))
        A(f"v_rcp_f32 v{t1}, v{t1}")
        for i in range(8):
            A(f"v_mul_f32 v{vG + i}, v{t1}, v{vG + i}")
    else:
        k.allreduce16("v_add_f32", list(range(vG, vG + 8)))
    for i in range(4):
        A(f"v_cvt_pk_bf16_f32 v{vX + i}, v{vG + 2 * i}, v{vG + 2 * i + 1}")
    A("s_mov_b64 exec, s[68:69]")
    A(f"ds_write_b128 v{vOFw}, {vr(vX, 4)}")
    k.lds_signal(F_O)
    k.lds_wait(F_O, 4, t4, [f"ds_read_b128 {vr(vB + 4 * ks, 4)}, v{vQ16} offset:{ks * 64}" for ks in range(4)])
    for ks in range(4):
        A(f"v_mfma_f32_16x16x32_bf16 {vr(vD, 4)}, {vr(vW + 4 * ks, 4)}, {vr(vB + 4 * ks, 4)}, {'0' if ks == 0 else vr(vD, 4)}")
    k.tag4(vD)
    A("s_mov_b64 exec, s[68:69]")
    A(f"global_store_dwordx4 v{vP3a}, {vr(vD, 4)}, s[52:53] sc1")
    A("s_mov_b64 exec, -1")
    A.stamp(8)
    A("s_cmp_eq_u32 s4, 7")
    A("s_cbranch_scc1 L_final")

    vW13 = vKF
    vW2 = vKF + 16

    def hook4():
        k.lds_wait(F_W13, 1, t4)
        for mat, base in enumerate((W1L, W3L)):
            for ks in range(2):
                for hf in range(2):
                    A(f"ds_read_b64_tr_b16 {vr(vW13 + 8 * mat + 4 * ks + 2 * hf, 2)}, v{vTR128} offset:{base - WQL + ks * 4096 + hf * 2048}")
        k.lds_wait(F_W2, 1, t4)
        for u in range(2):
            for hf in range(2):
                A(f"ds_read_b64_tr_b16 {vr(vW2 + 4 * u + 2 * hf, 2)}, v{vTW2 + u} offset:{hf * 4096}")
    if o["ptl"] & 2:
        A(f"global_load_dword v{vJunk}, v{vWL}, s[42:43] {o['ptf']}")
    if o["ptc"]:
        A(f"global_load_dword v{vJunk}, v{vH4}, s[44:45] offset:{B_ST} sc1")
        A(f"global_load_dword v{vJunk}, v{vH4 + 1}, s[44:45] offset:{B_P4} sc1")
    if o["ptp"]:
        skp = k.newlabel("skp")
        A("s_cmp_ge_u32 s3, 2")
        A(f"s_cbranch_scc1 {skp}")
        A("s_cmp_eq_u32 s3, 0")
        A("s_cselect_b32 exec_lo, 0xff000000, -1")
        A(f"global_store_dwordx4 v{vWL}, {vr(vZ, 4)}, s[42:43]")
        A("s_mov_b64 exec, -1")
        k.label(skp)

    def h3_issue(s):
        A(f"global_load_dwordx4 {vr(vRing + 8 * s, 4)}, v{vH3}, s[52:53] sc1")
        A(f"global_load_dwordx4 {vr(vRing + 8 * s + 4, 4)}, v{vH3 + 1}, s[52:53] sc1")

    def h3_ok(s):
        for i in range(4):
            A(f"v_add_f32 v{vG + i}, v{vRing + 8 * s + i}, v{vRing + 8 * s + 4 + i}")
    if o["L3"]:
        A(f"s_sleep {o['L3']}")
    k.ring_poll("h3", o["N3"], h3_issue, lambda s: [vRing + 8 * s, vRing + 8 * s + 4], 2, vAcc, False, o["G3"], h3_ok, hook=hook4, pace=o["P3S"])
    A.stamp(9)
    k.allreduce16("v_add_f32", list(range(vG, vG + 4)))
    for i in range(2):
        k.round_bf16_pair(vG + 2 * i, vG + 2 * i + 1, vG + 2 * i, vG + 2 * i + 1, t0 + i)
    for i in range(4):
        A(f"v_add_f32 v{vG + i}, v{vG + i}, v{vXF + i}")
    for i in range(2):
        A(f"v_cvt_pk_bf16_f32 v{vX + i}, v{vG + 2 * i}, v{vG + 2 * i + 1}")
    A("s_mov_b64 exec, s[68:69]")
    A(f"ds_write_b64 v{vHFw}, {vr(vX, 2)}")
    k.lds_signal(F_H)
    k.lds_wait(F_H, 4, t4,
               [f"ds_read_b128 {vr(vB + 4 * ks, 4)}, v{vHFb} offset:{ks * 64}" for ks in range(2)] +
               [f"ds_read_b128 {vr(vB + 8 + 4 * ks, 4)}, v{vHFa} offset:{ks * 64}" for ks in range(2)])
    vS = vML
    for ks in range(2):
        A(f"v_mfma_f32_16x16x32_bf16 {vr(vS, 4)}, {vr(vB + 8 + 4 * ks, 4)}, {vr(vB + 4 * ks, 4)}, {'0' if ks == 0 else vr(vS, 4)}")
        A(f"v_mfma_f32_16x16x32_bf16 {vr(vD, 4)}, {vr(vW13 + 4 * ks, 4)}, {vr(vB + 4 * ks, 4)}, {'0' if ks == 0 else vr(vD, 4)}")
        A(f"v_mfma_f32_16x16x32_bf16 {vr(vD + 4, 4)}, {vr(vW13 + 8 + 4 * ks, 4)}, {vr(vB + 4 * ks, 4)}, {'0' if ks == 0 else vr(vD + 4, 4)}")
    skipst = k.newlabel("skipst")
    A("s_cmp_lg_u32 s3, 0")
    A(f"s_cbranch_scc1 {skipst}")
    A("s_nop 3")
    A(f"v_mov_b32_dpp v{vS + 1}, v{vS} row_shl:1 {DPPM}")
    k.tag4(vS)
    A("s_mov_b64 exec, 1")
    A(f"global_store_dwordx4 v{vL16}, {vr(vS, 4)}, s[42:43] offset:{B_ST}")
    A("s_mov_b64 exec, -1")
    k.label(skipst)
    A("s_nop 5")
    for i in range(4):
        A(f"v_cndmask_b32 v{vD + i}, v{vD + i}, v{vD + 4 + i}, s[76:77]")
    k.tag4(vD)
    A("s_mov_b64 exec, s[74:75]")
    A(f"global_store_dwordx4 v{vP4a}, {vr(vD, 4)}, s[42:43] offset:{B_P4}")
    A("s_mov_b64 exec, 1")
    A(f"global_store_byte v{vHs4}, v{vHB}, s[14:15] offset:512")
    A("s_mov_b64 exec, -1")
    A.stamp(10)
    for i in range(4):
        A(f"v_mov_b32 v{vZ + i}, 0")
    k.tag4(vZ)
    A("s_lshl_b32 s8, s3, 4")
    A(f"v_mov_b32 v{t7}, s8")
    if o["hint4"]:
        k.hint_wait(vHr4, 512, t4)
    A.stamp(4, 1)
    k.poll([f"global_load_dwordx4 {vr(vG + 4, 4)}, v{vH4}, s[44:45] offset:{B_ST} sc1",
            f"global_load_dwordx4 {vr(vG, 4)}, v{vH4 + 1}, s[44:45] offset:{B_P4} sc1"],
           [vG + 4, vG], vAcc, True)
    A.stamp(11)
    sq, sm = vG + 4, vG + 5
    for md in ("quad_perm:[1,0,3,2]", "quad_perm:[2,3,0,1]", "row_half_mirror"):
        for r_ in (sm, sq):
            A(f"v_add_f32_dpp v{r_}, v{r_}, v{r_} {md} {DPPM}")
    k.ln_scalars(sm, sq)
    A(f"v_sub_f32 v{sm}, 0, v{sm}")
    A(f"v_cndmask_b32 v{sm}, v{sm}, 1.0, s[70:71]")
    for i in range(4):
        A(f"v_mul_f32 v{vG + i}, v{sm}, v{vG + i}")
    A(f"v_cndmask_b32 v{t0}, v{vG + 1}, v{vG}, s[66:67]")
    A(f"v_cndmask_b32 v{t1}, v{vG + 3}, v{vG + 2}, s[66:67]")
    A(f"v_cndmask_b32 v{t2}, v{vG}, v{vG + 1}, s[66:67]")
    A(f"v_cndmask_b32 v{t3}, v{vG + 2}, v{vG + 3}, s[66:67]")
    A(f"v_add_f32_dpp v{t2}, v{t0}, v{t2} quad_perm:[1,0,3,2] {DPPM}")
    A(f"v_add_f32_dpp v{t3}, v{t1}, v{t3} quad_perm:[1,0,3,2] {DPPM}")
    A(f"v_cndmask_b32 v{t0}, v{t3}, v{t2}, s[76:77]")
    A(f"v_cndmask_b32 v{t1}, v{t2}, v{t3}, s[76:77]")
    A(f"v_add_f32_dpp v{t1}, v{t0}, v{t1} quad_perm:[2,3,0,1] {DPPM}")
    A(f"v_add_f32_dpp v{t1}, v{t1}, v{t1} row_ror:4 {DPPM}")
    A(f"v_add_f32_dpp v{t1}, v{t1}, v{t1} row_ror:8 {DPPM}")
    A(f"v_mul_f32 v{t1}, v{sq}, v{t1}")
    k.round_bf16(t1, t1)
    A(f"v_mov_b32 v{t0}, v{t1}")
    A(f"v_permlane16_swap_b32 v{t1}, v{t0}")
    A(f"s_mov_b32 s8, {LOG2E | 0x80000000:#x}")
    A(f"v_mul_f32 v{t2}, s8, v{t1}")
    A(f"v_exp_f32 v{t2}, v{t2}")
    A(f"v_add_f32 v{t2}, 1.0, v{t2}")
    A(f"v_rcp_f32 v{t2}, v{t2}")
    A(f"v_mul_f32 v{t2}, v{t2}, v{t1}")
    k.round_bf16(t2, t2)
    A(f"v_mul_f32 v{t2}, v{t2}, v{t0}")
    A(f"v_cvt_pk_bf16_f32 v{t2}, v{t2}, v{t2}")
    A("s_mov_b32 exec_lo, 15")
    A("s_mov_b32 exec_hi, 15")
    A(f"ds_write_b16 v{vHHw}, v{t2}")
    k.lds_signal(F_HH)
    k.lds_wait(F_HH, 4, t4, [f"ds_read_b128 {vr(vB, 4)}, v{vHHr}"])
    for u in range(2):
        A(f"v_mfma_f32_16x16x32_bf16 {vr(vD + 4 * u, 4)}, {vr(vW2 + 4 * u, 4)}, {vr(vB, 4)}, 0")
    A("s_mov_b64 exec, 1")
    A(f"global_store_dwordx4 v{t7}, {vr(vZ, 4)}, s[42:43] offset:{B_ACK}")
    A("s_mov_b64 exec, s[0:1]")
    for i in range(4):
        A(f"v_cndmask_b32 v{vD + i}, v{vD + i}, v{vD + 4 + i}, s[66:67]")
    k.tag4(vD)
    A(f"global_store_dwordx4 v{vP5a}, {vr(vD, 4)}, s[54:55] sc1")
    A("s_mov_b64 exec, -1")
    A.stamp(5, 1)
    A("s_cmp_lg_u32 s3, 0")
    A("s_cbranch_scc1 L_stamp_end")
    A(f"s_mul_i32 s8, s9, {2 * BS}")
    A(f"v_lshrrev_b32 v{t0}, 3, v{vLane}")
    A(f"v_and_b32 v{t0}, 3, v{t0}")
    A(f"v_lshlrev_b32 v{t0}, 3, v{t0}")
    A(f"v_bfe_u32 v{t1}, v{vLane}, 2, 1")
    A(f"v_add_u32 v{t0}, v{t0}, v{t1}")
    A(f"v_mul_u32_u24 v{t0}, {BS}, v{t0}")
    A(f"v_and_b32 v{t1}, 3, v{vLane}")
    A(f"v_lshl_add_u32 v{t0}, v{t1}, 4, v{t0}")
    A(f"v_add_u32 v{t0}, s8, v{t0}")
    A("s_mov_b32 exec_hi, 0")
    A("s_mov_b32 s61, 0")
    k.label("L_ack")
    A(f"global_load_dwordx4 {vr(vG, 4)}, v{t0}, s[40:41] offset:{B_ACK} sc1")
    A("s_waitcnt vmcnt(0)")
    k.check(vAcc, [vG])
    A(f"v_cmp_ne_u32 vcc, 0, v{vAcc}")
    A("s_cbranch_vccz L_stamp_end0")
    A("s_sleep 2")
    A("s_add_u32 s61, s61, 1")
    A(f"s_cmp_lt_u32 s61, {POLL_LIMIT}")
    A("s_cbranch_scc1 L_ack")
    A("s_call_b64 s[64:65], L_panic")
    A("s_branch L_stamp_end0")

    k.label("L_final")
    A("s_lshr_b32 s8, s5, 2")
    A("s_lshl_b32 s8, s8, 14")
    A("s_and_b32 s10, s5, 3")
    A("s_lshl_b32 s10, s10, 7")
    A("s_add_u32 s8, s8, s10")
    A("s_lshl_b32 s10, s3, 4")
    A("s_add_u32 s8, s8, s10")
    A(f"v_lshlrev_b32 v{t1}, 9, v{vLane}")
    A(f"v_add_u32 v{t1}, s8, v{t1}")
    for i in range(8):
        A(f"v_mov_b32 v{vG + i}, 0")
    if o["L7"]:
        A(f"s_sleep {o['L7']}")
    A("s_mov_b32 exec_hi, 0")
    k.poll([f"global_load_dwordx4 {vr(vG, 4)}, v{t1}, s[52:53] sc1"], [vG], vAcc, False)
    A("s_mov_b64 exec, -1")
    A.stamp(9)
    k.reduce64_to_lane63(list(range(vG, vG + 4)))
    for i in range(2):
        k.round_bf16_pair(vG + 2 * i, vG + 2 * i + 1, vG + 2 * i, vG + 2 * i + 1, t0)
    for i in range(4):
        A(f"v_add_f32 v{vF + i}, v{vG + i}, v{vXF + i}")
    for i in range(2):
        k.round_bf16_pair(vF + 2 * i, vF + 2 * i + 1, vF + 2 * i, vF + 2 * i + 1, t0)
    A("s_mul_i32 s8, s9, 28672")
    A("s_lshl_b32 s10, s7, 6")
    A("s_add_u32 s8, s8, s10")
    A("s_lshl_b32 s10, s3, 4")
    A("s_add_u32 s8, s8, s10")
    A(f"v_lshlrev_b32 v{t1}, 9, v{vLane}")
    A(f"v_add_u32 v{t1}, s8, v{t1}")
    A("s_lshl_b32 s8, s5, 5")
    A("s_lshl_b32 s10, s3, 3")
    A("s_add_u32 s8, s8, s10")
    A(f"v_mov_b32 v{t2}, s8")
    A("s_mov_b32 exec_hi, 0x00ffffff")
    def h5_issue(s):
        A(f"global_load_dwordx4 {vr(vRing + 4 * s, 4)}, v{t1}, s[54:55] sc1")

    def h5_ok(s):
        for i in range(4):
            A(f"v_mov_b32 v{vG + 4 + i}, v{vRing + 4 * s + i}")
    if o["L5"]:
        A(f"s_sleep {o['L5']}")
    k.ring_poll("h5", o["N3"], h5_issue, lambda s: [vRing + 4 * s], 1, vAcc, False, o["G3"], h5_ok, pace=o["P5S"])
    A("s_mov_b64 exec, -1")
    A.stamp(11)
    k.reduce64_to_lane63(list(range(vG + 4, vG + 8)))
    for i in range(2):
        k.round_bf16_pair(vG + 4 + 2 * i, vG + 5 + 2 * i, vG + 4 + 2 * i, vG + 5 + 2 * i, t0 + i)
    for i in range(4):
        A(f"v_add_f32 v{vF + i}, v{vG + 4 + i}, v{vF + i}")
    for i in range(2):
        A(f"v_cvt_pk_bf16_f32 v{vX + i}, v{vF + 2 * i}, v{vF + 2 * i + 1}")
    A("s_mov_b32 exec_lo, 0")
    A("s_mov_b32 exec_hi, 0x80000000")
    A(f"global_store_dwordx2 v{t2}, {vr(vX, 2)}, s[34:35]")
    A("s_or_b32 s8, s5, s3")
    A("s_cmp_lg_u32 s8, 0")
    A("s_cbranch_scc1 L_stamp_end0")
    A(f"v_mov_b32 v{t0}, 0")
    A(f"v_mov_b32 v{t1}, s13")
    A(f"global_store_dword v{t0}, v{t1}, s[38:39]")
    k.label("L_stamp_end0")
    A("s_mov_b64 exec, -1")
    k.label("L_stamp_end")
    if o["exp"]:
        A("s_cmp_lg_u32 s2, 7")
        A("s_cbranch_scc1 L_end")
        A("s_cmp_lg_u32 s3, 0")
        A("s_cbranch_scc1 L_end")
        if o["exp"] == 1:
            A("s_memrealtime s[98:99]")
            A("s_waitcnt lgkmcnt(0)")
            A("s_sub_u32 s8, s98, s96")
            A("s_mul_i32 s8, s8, 10")
            k.label("L_exp")
            A("s_memrealtime s[10:11]")
            A("s_waitcnt lgkmcnt(0)")
            A("s_sub_u32 s10, s10, s98")
            A("s_cmp_lt_u32 s10, s8")
            A("s_cbranch_scc1 L_exp")
        else:
            A("s_memtime s[98:99]")
            k.label("L_exp")
            A("s_memtime s[10:11]")
            A("s_waitcnt lgkmcnt(0)")
            A("s_sub_u32 s10, s10, s98")
            A("s_cmp_lt_u32 s10, 240000")
            A("s_cbranch_scc1 L_exp")
    if dbgtime:
        A("s_cmp_lg_u32 s4, 7")
        A("s_cbranch_scc1 L_end")
        A("s_and_b32 s8, s5, 3")
        A("s_or_b32 s8, s8, s3")
        A("s_cmp_lg_u32 s8, 0")
        A("s_cbranch_scc1 L_end")
        A("s_memrealtime s[98:99]")
        A("s_waitcnt lgkmcnt(0)")
        A("s_not_b32 s96, s96")
        A(f"v_mov_b32 v{t0}, 0")
        A(f"v_mov_b32 v{t1}, s96")
        A(f"v_mov_b32 v{t2}, s98")
        A("s_mov_b64 exec, 1")
        A(f"global_atomic_umax v{t0}, v{t1}, s[36:37]")
        A(f"global_atomic_umax v{t0}, v{t2}, s[36:37] offset:4")
    if stamps:
        A("s_memrealtime s[76:77]")
        A("s_waitcnt lgkmcnt(0)")
        A("s_lshl_b32 s8, s2, 3")
        A("s_add_u32 s8, s8, s3")
        A("s_lshl_b32 s8, s8, 6")
        A(f"s_add_u32 s8, s8, {WS_STAMP}")
        A(f"v_mov_b32 v{t0}, s8")
        for i in range(12):
            A(f"v_mov_b32 v{vG + i}, {'s%d' % (78 + 2 * i) if i in stamps else 0}")
        A(f"v_mov_b32 v{vG + 12}, s76")
        A("s_mov_b64 exec, 1")
        for q in range(4):
            A(f"global_store_dwordx4 v{t0}, {vr(vG + 4 * q, 4)}, s[38:39] offset:{q * 16}")
        A("s_mov_b64 exec, 0xffff")
        A(f"s_add_u32 s8, s8, {0x40000}")
        A(f"v_add_u32 v{t0}, s8, v{vL4}")
        A(f"global_store_dword v{t0}, v{k.vCnt}, s[38:39]")
    A("s_endpgm")

    k.label("L_loader")
    a0, a1, a2, a3, b0, b1, cwq, cwo, cw13, d0, d1 = [vG + i for i in range(11)]
    A(f"v_and_b32 v{t0}, 7, v{vLane}")
    A(f"v_lshlrev_b32 v{t1}, 1, v{vQd}")
    A(f"v_xor_b32 v{t0}, v{t0}, v{t1}")
    A(f"v_lshlrev_b32 v{t0}, 4, v{t0}")
    A(f"v_bfe_u32 v{t2}, v{vLane}, 3, 2")
    A(f"v_lshrrev_b32 v{t3}, 5, v{vLane}")
    A(f"v_lshl_add_u32 v{t2}, v{t3}, 3, v{t2}")
    A(f"v_lshl_add_u32 v{cwq}, v{t2}, 13, v{t0}")
    A("s_lshr_b32 s7, s5, 3")
    A("s_and_b32 s8, s5, 7")
    A("s_lshl_b32 s9, s7, 20")
    A("s_lshl_b32 s10, s4, 10")
    A("s_add_u32 s9, s9, s10")
    A("s_lshl_b32 s10, s8, 7")
    A("s_add_u32 s9, s9, s10")
    A("s_add_u32 s52, s22, s9"); A("s_addc_u32 s53, s23, 0")

    pre_rest = []
    P = pre_rest.append
    P(f"v_lshrrev_b32 v{t1}, 3, v{vLane}")
    P(f"v_lshl_add_u32 v{cwo}, v{t1}, 10, v{t0}")
    P(f"v_mul_u32_u24 v{cw13}, 3584, v{t1}")
    P(f"v_add_u32 v{cw13}, v{cw13}, v{t0}")
    P(f"v_xor_b32 v{t0}, v{vR}, v{vQd}")
    P(f"v_lshlrev_b32 v{t1}, 8, v{vQd}")
    P(f"v_lshl_add_u32 v{a0}, v{t0}, 4, v{t1}")
    P(f"v_xor_b32 v{a1}, 64, v{a0}")
    P(f"v_xor_b32 v{a2}, 128, v{a0}")
    P(f"v_xor_b32 v{a3}, 192, v{a0}")
    P(f"v_lshlrev_b32 v{t0}, 1, v{vQd}")
    P(f"v_xor_b32 v{t0}, v{vR}, v{t0}")
    P(f"v_lshl_add_u32 v{b0}, v{t0}, 4, v{t1}")
    P(f"v_xor_b32 v{b1}, 128, v{b0}")
    P(f"v_lshlrev_b32 v{t1}, 10, v{vQd}")
    P(f"v_lshl_add_u32 v{d0}, v{t0}, 4, v{t1}")
    P(f"v_xor_b32 v{d1}, 128, v{d0}")
    P("s_lshl_b32 s6, s4, 24")
    P("s_lshl_b32 s9, s5, 15")
    P("s_add_u32 s6, s6, s9")
    P(f"s_add_u32 s6, s6, {61440 * 256}")
    P("s_add_u32 s40, s18, s6"); P("s_addc_u32 s41, s19, 0")
    P("s_add_u32 s42, s20, s6"); P("s_addc_u32 s43, s21, 0")
    P("s_lshl_b32 s6, s4, 2"); P("s_add_u32 s6, s6, s7")
    P("s_lshl_b32 s9, s6, 17"); P("s_lshl_b32 s10, s8, 7"); P("s_add_u32 s9, s9, s10")
    P("s_add_u32 s44, s24, s9"); P("s_addc_u32 s45, s25, 0")
    P(f"s_mul_i32 s9, s8, {64 * 3584}"); P("s_lshl_b32 s10, s6, 7"); P("s_add_u32 s9, s9, s10")
    P("s_add_u32 s46, s28, s9"); P("s_addc_u32 s47, s29, 0")
    P("s_add_u32 s48, s30, s9"); P("s_addc_u32 s49, s31, 0")
    P("s_lshl_b32 s9, s4, 18"); P("s_lshl_b32 s10, s8, 15"); P("s_add_u32 s9, s9, s10")
    P("s_lshl_b32 s10, s7, 8"); P("s_add_u32 s9, s9, s10")
    P("s_add_u32 s50, s32, s9"); P("s_addc_u32 s51, s33, 0")

    def seg_ops(name):
        ops = []
        if name == "q":
            prevk = 0
            for i in range(16):
                krow = (i >> 2) * 32 + (0, 16, 4, 20)[i & 3]
                pre = [f"s_mov_b32 m0, {WQL + i * 1024}"]
                d = (krow - prevk) * 8192
                if d > 0:
                    pre += [f"s_add_u32 s52, s52, {d}", "s_addc_u32 s53, s53, 0"]
                elif d < 0:
                    pre += [f"s_sub_u32 s52, s52, {-d}", "s_subb_u32 s53, s53, 0"]
                prevk = krow
                ops.append(pre + [f"global_load_lds_dwordx4 v{cwq}, s[52:53] nt"])
            return ops, F_WQ
        if name in "kv":
            base, sreg, regs, fl = (KL, 40, (a0, a1, a2, a3), F_K) if name == "k" else (VL, 42, (b0, b1, b0, b1), F_V)
            for i in range(32):
                pre = []
                if i % 4 == 0:
                    pre += [f"s_mov_b32 m0, {base + i * 1024}"]
                    if i:
                        pre += [f"s_add_u32 s{sreg}, s{sreg}, 4096", f"s_addc_u32 s{sreg + 1}, s{sreg + 1}, 0"]
                ops.append(pre + [f"global_load_lds_dwordx4 v{regs[i & 3]}, s[{sreg}:{sreg + 1}] offset:{(i & 3) * 1024} nt"])
            return ops, fl
        if name == "o":
            for i in range(16):
                pre = [f"s_mov_b32 m0, {WOL + i * 1024}"]
                if i:
                    pre += ["s_add_u32 s44, s44, 8192", "s_addc_u32 s45, s45, 0"]
                ops.append(pre + [f"global_load_lds_dwordx4 v{cwo}, s[44:45] nt"])
            return ops, F_WO
        if name == "a":
            for base, sreg in ((W1L, 46), (W3L, 48)):
                for i in range(8):
                    pre = [f"s_mov_b32 m0, {base + i * 1024}"]
                    if i:
                        pre += [f"s_add_u32 s{sreg}, s{sreg}, {8 * 3584}", f"s_addc_u32 s{sreg + 1}, s{sreg + 1}, 0"]
                    ops.append(pre + [f"global_load_lds_dwordx4 v{cw13}, s[{sreg}:{sreg + 1}] nt"])
            return ops, F_W13
        if name == "b":
            for i in range(8):
                pre = [f"s_mov_b32 m0, {W2L + i * 1024}"]
                if i:
                    pre += ["s_add_u32 s50, s50, 4096", "s_addc_u32 s51, s51, 0"]
                ops.append(pre + [f"global_load_lds_dwordx4 v{(d0, d1)[i & 1]}, s[50:51] nt"])
            return ops, F_W2

    def emit_loader(order, start_n=0, pend=None, n=0):
        pend = list(pend or [])

        def drain():
            for (last, f) in list(pend):
                A(f"s_waitcnt vmcnt({n - 1 - last})")
                k.lds_signal(f)
            pend.clear()
        for name, D in order:
            if name == "G":
                drain()
                k.lds_wait(F_G2, 4, t4, sleep=1)
                continue
            ops, fl = seg_ops(name)
            Dspec = [int(x) for x in str(D).split(":")]
            for iop, op in enumerate(ops):
                D = Dspec[0] if len(Dspec) == 1 or iop < Dspec[1] else Dspec[2]
                if o["TZ"] and n == 16 + o["TX"] and (15, F_WQ) in pend:
                    A(f"s_waitcnt vmcnt({o['TX']})")
                    k.lds_signal(F_WQ)
                    pend.remove((15, F_WQ))
                if o["TZ"] and n < 16 + o["TZ"] and n >= 16 + o["TX"]:
                    sk = k.newlabel("tz")
                    A("s_cmp_ge_u32 s11, 4")
                    A(f"s_cbranch_scc1 {sk}")
                    A(f"s_waitcnt vmcnt({o['DS'] - 1})")
                    if (15, F_WQ) in pend and n - o["DS"] >= 15:
                        k.lds_signal(F_WQ)
                        pend.remove((15, F_WQ))
                    A(f"ds_read_b32 v{t4}, v{k.vFlag} offset:{F_G1}")
                    A("s_waitcnt lgkmcnt(0)")
                    A(f"v_readfirstlane_b32 s11, v{t4}")
                    k.label(sk)
                if n >= D:
                    A(f"s_waitcnt vmcnt({D - 1})")
                    for (last, f) in list(pend):
                        if last <= n - D:
                            k.lds_signal(f)
                            pend.remove((last, f))
                            if f == F_WQ and o["pgt"] == 2:
                                A("s_mov_b64 exec, 1")
                                A(f"global_load_dword v{vJunk}, v{t5}, s[54:55] nt")
                                A(f"global_load_dword v{vJunk}, v{t5}, s[58:59] nt")
                                A("s_mov_b64 exec, -1")
                                n += 2
                for s_ in op:
                    A(s_)
                n += 1
                if name == "v" and o["vq"] and iop % 8 == 7:
                    pend.append((n - 1, fl))
            if name == "v" and o["vq"]:
                pass
            else:
                pend.append((n - 1, fl))
        drain()

    order = []
    for tok in o["order"].split(","):
        order.append((tok[0], tok[1:] or "0"))
    assert order[0][0] == "q"
    ops, fl = seg_ops("q")
    for op in ops:
        for s_ in op:
            A(s_)
    for s_ in pre_rest:
        A(s_)
    A("s_mov_b32 s11, 0")
    npt = 0
    if o["pgt"] == 2:
        A("s_lshl_b32 s6, s4, 24")
        A("s_lshl_b32 s9, s8, 17")
        A("s_add_u32 s6, s6, s9")
        A(f"s_add_u32 s6, s6, {61440 * 256}")
        A("s_add_u32 s54, s20, s6"); A("s_addc_u32 s55, s21, 0")
        A("s_mov_b32 s58, s34"); A("s_mov_b32 s59, s35")
        A("s_cmp_eq_u32 s7, 1")
        A("s_cselect_b32 s54, s44, s54"); A("s_cselect_b32 s55, s45, s55")
        A("s_cmp_eq_u32 s4, 7")
        A("s_cbranch_scc1 L_pg7")
        A("s_cmp_eq_u32 s7, 1")
        A("s_cselect_b32 s58, s50, s54"); A("s_cselect_b32 s59, s51, s55")
        A("s_cmp_eq_u32 s7, 2")
        A("s_cselect_b32 s54, s46, s54"); A("s_cselect_b32 s55, s47, s55")
        A("s_cmp_eq_u32 s7, 3")
        A("s_cselect_b32 s54, s48, s54"); A("s_cselect_b32 s55, s49, s55")
        k.label("L_pg7")
        A(f"v_mov_b32 v{t5}, 0")
    if o["pgt"] == 1:
        A(f"v_mov_b32 v{t5}, 0")
        A(f"v_mov_b32 v{t6}, {63 * 3584}")
        A("s_mov_b64 exec, 1")
        for sreg in (40, 42, 44):
            A(f"global_load_dword v{vJunk}, v{t5}, s[{sreg}:{sreg + 1}] nt")
        A("s_cmp_eq_u32 s4, 7")
        A("s_cselect_b32 s46, s40, s46"); A("s_cselect_b32 s47, s41, s47")
        A("s_cselect_b32 s48, s40, s48"); A("s_cselect_b32 s49, s41, s49")
        A("s_cselect_b32 s50, s40, s50"); A("s_cselect_b32 s51, s41, s51")
        for sreg in (46, 48, 50):
            A(f"global_load_dword v{vJunk}, v{t5}, s[{sreg}:{sreg + 1}] nt")
        A("s_mov_b64 exec, -1")
        npt = 6
    A("s_cmp_eq_u32 s4, 7")
    A("s_cbranch_scc1 L_loader7")
    k.in_loader = True
    emit_loader(order[1:], pend=[(15, F_WQ)], n=16 + npt)
    if stamps:
        A("s_waitcnt lgkmcnt(0)")
        A("s_lshl_b32 s8, s2, 3")
        A("s_add_u32 s8, s8, 4")
        A("s_lshl_b32 s8, s8, 6")
        A(f"s_add_u32 s8, s8, {WS_STAMP}")
        A(f"v_mov_b32 v{t0}, s8")
        for i in range(8):
            A(f"v_mov_b32 v{vG + 12 + i}, s{78 + 2 * i}")
        A("s_mov_b64 exec, 1")
        for q in range(2):
            A(f"global_store_dwordx4 v{t0}, {vr(vG + 12 + 4 * q, 4)}, s[38:39] offset:{q * 16}")
    A("s_endpgm")
    A(";;LOADER7")
    k.label("L_loader7")
    emit_loader([x for x in order[1:] if x[0] not in "abG"], pend=[(15, F_WQ)], n=16 + npt)
    k.label("L_end")
    A("s_endpgm")

    k.label("L_panic")
    A("s_mov_b64 s[100:101], exec")
    A("s_mov_b64 exec, -1")
    for i in range(4):
        A(f"global_load_dwordx4 {vr(vPT, 4)}, v{vL16}, s[42:43] offset:{i * 1024} sc1")
        A("s_waitcnt vmcnt(0)")
        A(f"global_store_dwordx4 v{vL16}, {vr(vPT, 4)}, s[48:49] offset:{i * 1024} sc1")
        A("s_waitcnt vmcnt(0)")
    A("s_xor_b32 s50, s40, s46")
    A("s_xor_b32 s51, s41, s47")
    A("s_add_u32 s62, s62, 1")
    A(f"s_cmp_ge_u32 s62, {PANIC_MAX}")
    A("s_cbranch_scc1 L_end")
    A("s_mov_b64 exec, s[100:101]")
    A("s_setpc_b64 s[64:65]")

    L = list(k.L)
    i0 = L.index("L_loader:"); i1 = L.index("    ;;LOADER7")
    ld = L[i0:i1]
    L = L[:i0] + L[i1:]
    ih = L.index("    ;;LOADER_HERE")
    L = L[:ih] + ld + L[ih + 1:]
    body = fix_hazards(L)
    body.append(f"    .fill (({NAME} + {CODE_PF_BYTES + 256} - .) >> 2) * ((({NAME} + {CODE_PF_BYTES + 256} - .) >> 63) + 1), 4, 0xbf810000")

    nv = (ra.next + 7) // 8 * 8
    tail = []
    tail.append('.section .rodata,"a"')
    tail.append(".p2align 6")
    tail.append(f".amdhsa_kernel {NAME}")
    tail.append(f"  .amdhsa_next_free_vgpr {nv}")
    tail.append("  .amdhsa_next_free_sgpr 102")
    tail.append(f"  .amdhsa_accum_offset {nv}")
    tail.append("  .amdhsa_group_segment_fixed_size 0")
    tail.append("  .amdhsa_kernarg_size 96")
    tail.append("  .amdhsa_user_sgpr_count 2")
    tail.append("  .amdhsa_user_sgpr_kernarg_segment_ptr 1")
    tail.append("  .amdhsa_system_sgpr_workgroup_id_x 1")
    tail.append(".end_amdhsa_kernel")
    return "\n".join(hdr + body + tail) + "\n"


if __name__ == "__main__":
    import argparse
    ap = argparse.ArgumentParser()
    ap.add_argument("-o", default="sequential_preLN__sliding_block_cached__glu_gated_swiglu__decode.s")
    ap.add_argument("--stamps", default="")
    ap.add_argument("--dbgtime", action="store_true")
    ap.add_argument("--opt", action="append", default=[])
    a = ap.parse_args()
    st = [int(x) for x in a.stamps.split(",")] if a.stamps else None
    opts = {}
    for kv in a.opt:
        kk, vv = kv.split("=")
        opts[kk] = int(vv) if vv.lstrip("-").isdigit() else vv
    open(a.o, "w").write(gen(st, a.dbgtime, **opts))
```

```python
import sys, os
sys.path.insert(0, os.path.dirname(os.path.abspath(__file__)))
from asmlib import fix_hazards, RegAlloc

NAME = "sequential_preLN__sliding_block_cached__glu_gated_swiglu__decode_kernel"

KL = 0
VL = 32768
WQL = 65536
WOL = 81920
W1L = 98304
W3L = 106496
W2L = 114688
XN = 122880
QF = 126976
PF = 131072
MX = 135168
LS = 136192
OF = 137216
HF = 137472
ONES = 137600
FLAGS = 137728
HH = 137984
LDS_BYTES = 138240
F_WQ, F_Q, F_M, F_P, F_O, F_H, F_K, F_V, F_WO, F_W13, F_W2, F_G2, F_HH, F_G1 = [4 * i for i in range(14)]

WS_STAMP = 0x10000
BS = 4224
WS_A = 0x100000
WS_B = 0x300000
WS_P3 = 0x500000
WS_P5 = 0x520000
WS_HINT = 0x540000
B_P1 = 0
B_ML = 256
B_ST = 384
B_ACK = 512
B_P4 = 1024
B_P2 = 2048

LOG2E = 0x3FB8AA3B
SCALE = 0x3DB504F3
EPS = 0x3727C5AC
INV512 = 0x3B000000

POLL_LIMIT = 512
HINT_LIMIT = 400
PANIC_MAX = 4000
LDS_SPIN_MAX = 1 << 24
CODE_PF_BYTES = 17408


def vr(b, n):
    return f"v[{b}:{b + n - 1}]" if n > 1 else f"v{b}"


def sr(b, n=2):
    return f"s[{b}:{b + n - 1}]"


DPPM = "row_mask:0xf bank_mask:0xf"


class K:
    def __init__(self, stamps, opts):
        self.L = []
        self.stamps = stamps
        self.o = opts
        self.uid = 0
        self.ncnt = 0

    def __call__(self, s):
        self.L.append("    " + s)

    def label(self, s):
        self.L.append(s + ":")

    def newlabel(self, p):
        self.uid += 1
        return f"L_{p}_{self.uid}"

    def stamp(self, idx, alt=0):
        if self.o.get("alt", 0) != alt and idx in (1, 2, 4, 5):
            return
        if self.stamps and idx in self.stamps:
            self(f"s_memrealtime {sr(78 + 2 * idx)}")

    def count(self):
        if self.stamps:
            self(f"v_writelane_b32 v{self.vCnt}, s61, {self.ncnt}")
            self.ncnt += 1

    def lds_wait(self, off, target, vtmp, extra_reads=(), sleep=None):
        lp = self.newlabel("lw")
        ok = self.newlabel("lwok")
        if sleep is None:
            sleep = self.o["lsleep"]
        ff = self.o["flagfirst"] and len(extra_reads) > 2
        if not ff:
            self(f"ds_read_b32 v{vtmp}, v{self.vFlag} offset:{off}")
            for r in extra_reads:
                self(r)
            self("s_waitcnt lgkmcnt(0)")
            self(f"v_cmp_le_u32 vcc, {target}, v{vtmp}")
            self(f"s_cbranch_vccnz {ok}")
        self(f"s_mov_b32 s63, {LDS_SPIN_MAX}")
        self.label(lp)
        if sleep and not ff:
            self(f"s_sleep {sleep}")
        self(f"ds_read_b32 v{vtmp}, v{self.vFlag} offset:{off}")
        self("s_sub_u32 s63, s63, 1")
        self("s_cbranch_scc1 L_end")
        self("s_waitcnt lgkmcnt(0)")
        self(f"v_cmp_le_u32 vcc, {target}, v{vtmp}")
        self(f"s_cbranch_vccz {lp}")
        if extra_reads:
            for r in extra_reads:
                self(r)
            self("s_waitcnt lgkmcnt(0)")
        self.label(ok)

    def sync(self, off, vtmp, reads, bar, mid=None):
        if bar:
            self("s_mov_b64 exec, -1")
            self("s_waitcnt lgkmcnt(0)")
            self("s_barrier")
            for r in reads:
                self(r)
            if mid:
                mid()
            self("s_waitcnt lgkmcnt(0)")
        else:
            self.lds_signal(off)
            self.lds_wait(off, 4, vtmp, reads)

    def lds_signal(self, off):
        if self.stamps and getattr(self, "in_loader", False):
            idx = {F_WQ: 1, F_K: 2, F_V: 3, F_WO: 4, F_W13: 5, F_W2: 6}[off]
            self(f"s_memrealtime {sr(78 + 2 * idx)}")
        self("s_mov_b64 exec, 1")
        self(f"ds_add_u32 v{self.vFlag}, v{self.vOne} offset:{off}")
        self("s_mov_b64 exec, -1")

    def tag4(self, b):
        for i in range(4):
            self(f"v_perm_b32 v{b + i}, v{b + i}, s56, v{self.vSel + i}")

    def check(self, acc, grans):
        first = True
        for b in grans:
            if isinstance(b, tuple):
                self(f"v_msad_u8 v{acc}, v{b[0]}, s{57 + b[1]}, {'0' if first else 'v%d' % acc}")
                first = False
                continue
            for i in range(4):
                self(f"v_msad_u8 v{acc}, v{b + i}, s{57 + i}, {'0' if first else 'v%d' % acc}")
                first = False

    def retry_tail(self, lp, toggle):
        nx = self.newlabel("pollnx")
        self("s_add_u32 s61, s61, 1")
        self(f"s_and_b32 s6, s61, {POLL_LIMIT - 1}")
        self(f"s_cbranch_scc1 {nx}")
        self("s_call_b64 s[64:65], L_panic")
        self.label(nx)
        if toggle:
            self("s_xor_b32 s44, s44, s50")
            self("s_xor_b32 s45, s45, s51")
        self(f"s_branch {lp}")

    def poll(self, loads, grans, acc, toggle, hook=None, preissued=False, first_wait=0, fw_cond=False):
        wt = self.newlabel("pollw")
        lp = self.newlabel("poll")
        ok = self.newlabel("pollok")
        self("s_mov_b32 s61, 0")
        if not preissued:
            for l in loads:
                self(l)
        if hook:
            hook()
        if first_wait:
            if fw_cond:
                self("s_cmp_eq_u32 s4, 7")
                self(f"s_cbranch_scc1 {wt}")
            self(f"s_waitcnt vmcnt({first_wait})")
            self(f"s_branch {wt}2")
        self.label(wt)
        self("s_waitcnt vmcnt(0)")
        if first_wait:
            self.label(wt + "2")
        self.check(acc, grans)
        self(f"v_cmp_ne_u32 vcc, 0, v{acc}")
        self(f"s_cbranch_vccz {ok}")
        nx = self.newlabel("pollnx")
        self("s_add_u32 s61, s61, 1")
        self(f"s_and_b32 s6, s61, {POLL_LIMIT - 1}")
        self(f"s_cbranch_scc1 {nx}")
        self("s_call_b64 s[64:65], L_panic")
        self.label(nx)
        if toggle:
            self("s_xor_b32 s44, s44, s50")
            self("s_xor_b32 s45, s45, s51")
        if self.o.get("psleep", 0):
            self(f"s_sleep {self.o['psleep']}")
        for l in loads:
            self(l)
        self(f"s_branch {wt}")
        self.label(ok)
        self.count()

    def ring_poll(self, name, nsets, issue, grans, nld, acc, toggle, gap, on_ok, hook=None, filler=None, pace=0):
        issue(0)
        if filler:
            filler()
        for s_ in range(1, nsets):
            if gap and not (s_ == 1 and filler):
                self(f"s_sleep {gap}")
            issue(s_)
        if hook:
            hook()
        self("s_mov_b32 s61, 0")
        self.label(f"L_{name}")
        for s_ in range(nsets):
            self(f"s_waitcnt vmcnt({nld * (nsets - 1)})")
            self.check(acc, grans(s_))
            self(f"v_cmp_ne_u32 vcc, 0, v{acc}")
            self(f"s_cbranch_vccz L_{name}ok{s_}")
            if pace:
                self(f"s_sleep {pace}")
            issue(s_)
        self("s_add_u32 s61, s61, 1")
        self(f"s_and_b32 s6, s61, {POLL_LIMIT // 4 - 1}")
        self(f"s_cbranch_scc1 L_{name}nx")
        self("s_call_b64 s[64:65], L_panic")
        self.label(f"L_{name}nx")
        if toggle:
            self("s_xor_b32 s44, s44, s50")
            self("s_xor_b32 s45, s45, s51")
        self(f"s_branch L_{name}")
        for s_ in range(nsets):
            self.label(f"L_{name}ok{s_}")
            on_ok(s_)
            if s_ < nsets - 1:
                self(f"s_branch L_{name}done")
        self.label(f"L_{name}done")
        self.count()
        self("s_nop 1")

    def hint_ring(self, name, vaddr, off, vregs, nlanes_mask, filler=None, gap=None):
        n = len(vregs)
        self(nlanes_mask)
        self(f"global_load_dword v{vregs[0]}, v{vaddr}, s[14:15] offset:{off} sc1")
        if filler:
            self("s_mov_b64 exec, -1")
            filler()
            self(nlanes_mask)
        for i in range(1, n):
            self(f"s_sleep {self.o['HGAP'] if gap is None else gap}")
            self(f"global_load_dword v{vregs[i]}, v{vaddr}, s[14:15] offset:{off} sc1")
        self(f"s_mov_b32 s61, {HINT_LIMIT // n}")
        self.label(f"L_{name}")
        for i in range(n):
            self(f"s_waitcnt vmcnt({n - 1})")
            self(f"v_cmp_ne_u32 vcc, s12, v{vregs[i]}")
            self(f"s_cbranch_vccz L_{name}ok")
            self(f"global_load_dword v{vregs[i]}, v{vaddr}, s[14:15] offset:{off} sc1")
        self("s_sub_u32 s61, s61, 1")
        self(f"s_cbranch_scc0 L_{name}")
        self.label(f"L_{name}ok")
        self.count()
        self("s_mov_b64 exec, -1")

    def hint_wait(self, vaddr, off, vtmp):
        lp = self.newlabel("hint")
        ok = self.newlabel("hintok")
        self(f"s_mov_b32 s61, {HINT_LIMIT}")
        self("s_mov_b64 exec, 0xff")
        self.label(lp)
        self(f"global_load_dword v{vtmp}, v{vaddr}, s[14:15] offset:{off} sc1")
        self("s_waitcnt vmcnt(0)")
        self(f"v_cmp_ne_u32 vcc, s12, v{vtmp}")
        self(f"s_cbranch_vccz {ok}")
        if self.o.get("hsleep", 0):
            self(f"s_sleep {self.o['hsleep']}")
        self("s_sub_u32 s61, s61, 1")
        self(f"s_cbranch_scc0 {lp}")
        self.label(ok)
        self.count()
        self("s_mov_b64 exec, -1")

    def allreduce16(self, op, regs, steps=(1, 2, 4, 8)):
        for st in steps:
            for r in regs:
                self(f"{op}_dpp v{r}, v{r}, v{r} row_ror:{st} {DPPM}")

    def reduce64_to_lane63(self, regs):
        self.allreduce16("v_add_f32", regs)
        for r in regs:
            self(f"v_add_f32_dpp v{r}, v{r}, v{r} row_bcast:15 row_mask:0xa bank_mask:0xf")
        for r in regs:
            self(f"v_add_f32_dpp v{r}, v{r}, v{r} row_bcast:31 row_mask:0xc bank_mask:0xf")

    def round_bf16(self, dst, src):
        self(f"v_cvt_pk_bf16_f32 v{dst}, v{src}, v{src}")
        self(f"v_and_b32 v{dst}, 0xffff0000, v{dst}")

    def round_bf16_pair(self, d0, d1, s0, s1, tmp):
        self(f"v_cvt_pk_bf16_f32 v{tmp}, v{s0}, v{s1}")
        self(f"v_lshlrev_b32 v{d0}, 16, v{tmp}")
        self(f"v_and_b32 v{d1}, 0xffff0000, v{tmp}")

    def ln_scalars(self, sm, sq):
        self(f"s_mov_b32 s8, {INV512:#x}")
        self(f"v_mul_f32 v{sm}, s8, v{sm}")
        self(f"v_mul_f32 v{sq}, s8, v{sq}")
        self(f"v_fma_f32 v{sq}, -v{sm}, v{sm}, v{sq}")
        self(f"v_max_f32 v{sq}, 0, v{sq}")
        self.round_bf16(sq, sq)
        self(f"v_add_f32 v{sq}, {EPS:#x}, v{sq}")
        self.round_bf16(sq, sq)
        self(f"v_sqrt_f32 v{sq}, v{sq}")
        self.round_bf16(sm, sm)
        self.round_bf16(sq, sq)
        self(f"v_rcp_f32 v{sq}, v{sq}")


def gen(stamps=None, dbgtime=False, **opts):
    o = dict(NP=6, GAP=7, pf=1, order="q0,k16,v32,o16,a16,b16", ptc=0, ptp=0, ptx=0, ptf='nt', pff='', lsleep=0, PACE=8, ptl=0, exp=0, pgt=1, flagfirst=1, GAP0=4, wl=1, TZ=0, DS=8, TX=8, mlsep=1, NH2=0, L3=0, P3S=0, L5=0, L7=0, P5S=0, hint1=1, NH=6, HGAP=4, mlpre=1, pxf='', xf='', wsoff=0, hint2=1, hint4=1, N3=5, G3=4)
    o.update(hint4=0, N3=1, ptx=1, pxf="nt", L7=40, hint1=0, mlsep=0, NH2=3, NP=2, GAP0=4, GAP=10, PACE=4,
             order="q0,k16,v32,o32,G,a40,b40", pgt=0, lam=1, vq=0, ilv=1, rot=0, earlyq=1, bar=3, ctail=0, L3=16, L5=14)
    o.update(opts)
    k = K(stamps, o)
    A = k
    ra = RegAlloc(1, 256)
    V = ra.alloc
    NP = o["NP"]

    hdr = []
    hdr.append("; 256 workgroups (one per CU) x 5 waves: 4 compute waves + 1 LDS-DMA loader wave.")
    hdr.append(f"; @launch grid=(256,1,1) block=(320,1,1) lds={LDS_BYTES}")
    hdr.append('.amdgcn_target "amdgcn-amd-amdhsa--gfx950"')
    hdr.append(".text")
    hdr.append(f".globl {NAME}")
    hdr.append(".p2align 8")
    hdr.append(f".type {NAME},@function")
    hdr.append(f"{NAME}:")

    vLane = V("lane"); vR = V("r"); vQd = V("qd"); vL16 = V("l16")
    k.vFlag = V("flag"); k.vOne = V("one")
    t0 = V("t0"); t1 = V("t1"); t2 = V("t2"); t3 = V("t3"); t4 = V("t4"); t5 = V("t5"); t6 = V("t6"); t7 = V("t7")
    vJunk = V("junk")
    k.vCnt = V("cnt")
    vPT = V("panic", 4)

    A.stamp(0)
    if dbgtime or o["exp"]:
        A("s_memrealtime s[96:97]")
    A("s_cmp_ge_u32 s2, 256")
    A("s_cbranch_scc1 L_end")
    A("s_load_dwordx16 s[16:31], s[0:1], 0")
    A("s_load_dwordx8 s[32:39], s[0:1], 64")
    if o["pf"]:
        A("s_getpc_b64 s[14:15]")
        A(f"v_lshlrev_b32 v{t0}, 7, v0")
        A(f"v_min_u32 v{t0}, {CODE_PF_BYTES - 128}, v{t0}")
        A(f"global_load_dword v{vJunk}, v{t0}, s[14:15] {o['pff']}")
    A(f"v_lshrrev_b32 v{t0}, 6, v0")
    A(f"v_and_b32 v{vLane}, 63, v0")
    A(f"v_readfirstlane_b32 s3, v{t0}")
    A("s_and_b32 s4, s2, 7")
    A("s_lshr_b32 s5, s2, 3")
    A(f"v_and_b32 v{vR}, 15, v{vLane}")
    A(f"v_lshrrev_b32 v{vQd}, 4, v{vLane}")
    A(f"v_lshlrev_b32 v{vL16}, 4, v{vLane}")
    A(f"v_mov_b32 v{k.vFlag}, {FLAGS}")
    A(f"v_mov_b32 v{k.vOne}, 1")
    A(f"v_lshlrev_b32 v{t0}, 2, v{vLane}")
    A(f"v_add_u32 v{t0}, {ONES}, v{t0}")
    A(f"v_mov_b32 v{t1}, 0")
    A(f"v_mov_b32 v{t2}, 0x3f803f80")
    A(f"ds_write_b32 v{t0}, v{t1} offset:{FLAGS - ONES}")
    A("s_mov_b32 exec_hi, 0")
    A(f"ds_write_b32 v{t0}, v{t2}")
    A("s_mov_b64 exec, -1")
    vX = V("x", 4)
    vXR = V("xr", 2)
    vZ = V("zero4", 4)
    k.vSel = V("sel", 4)
    if o["earlyq"]:
        A("s_cmp_eq_u32 s3, 4")
        A("s_cbranch_scc1 L_loader")
        A("s_waitcnt lgkmcnt(0)")
        A(f"global_load_dwordx4 {vr(vX, 4)}, v{vL16}, s[16:17] {o['xf']}")
        A("s_load_dword s56, s[38:39], 0")
        A("s_barrier")
        A("s_branch L_compute")
    else:
        A("s_waitcnt lgkmcnt(0)")
        if o["wsoff"]:
            A(f"s_add_u32 s38, s38, {o['wsoff'] << 20}")
            A("s_addc_u32 s39, s39, 0")
        A(f"global_load_dwordx4 {vr(vX, 4)}, v{vL16}, s[16:17] {o['xf']}")
        A("s_load_dword s56, s[38:39], 0")
        A("s_barrier")
        A("s_cmp_lg_u32 s3, 4")
        A("s_cbranch_scc1 L_compute")
    A(";;LOADER_HERE")
    k.label("L_compute")
    A("s_lshr_b32 s9, s5, 3")
    A("s_and_b32 s7, s5, 7")
    A("s_lshl_b32 s8, s7, 7")
    A("s_lshl_b32 s10, s3, 5")
    A("s_add_u32 s8, s8, s10")
    A(f"v_lshlrev_b32 v{t0}, 3, v{vQd}")
    A(f"v_add_u32 v{t0}, s8, v{t0}")
    A("s_lshl_b32 s8, s5, 5")
    A("s_lshl_b32 s10, s3, 3")
    A("s_add_u32 s8, s8, s10")
    A(f"v_mov_b32 v{t1}, s8")
    A("s_cmp_eq_u32 s4, 7")
    A("s_cselect_b64 s[10:11], -1, 0")
    A(f"v_cndmask_b32 v{t0}, v{t0}, v{t1}, s[10:11]")
    A(f"global_load_dwordx2 {vr(vXR, 2)}, v{t0}, s[16:17]")
    A(f"s_mul_i32 s8, s4, {32 * BS}")
    A(f"s_add_u32 s8, s8, {WS_A}")
    A("s_add_u32 s40, s38, s8")
    A("s_addc_u32 s41, s39, 0")
    A(f"s_mul_i32 s8, s5, {BS}")
    A("s_add_u32 s42, s40, s8")
    A("s_addc_u32 s43, s41, 0")
    for i in range(4):
        A(f"v_mov_b32 v{vZ + i}, 0")
    vWL = V("wl16")
    A("s_lshl_b32 s8, s3, 10")
    A(f"v_add_u32 v{vWL}, s8, v{vL16}")
    A(f"global_load_dword v{vJunk}, v{vWL}, s[42:43] {o['ptf']}")
    A(f"global_store_dwordx4 v{vWL}, {vr(vZ, 4)}, s[42:43]")
    A("s_lshl_b32 s8, s4, 11")
    A(f"s_add_u32 s8, s8, {WS_HINT}")
    A("s_add_u32 s14, s38, s8")
    A("s_addc_u32 s15, s39, 0")
    vL4 = V("l4")
    A(f"v_lshlrev_b32 v{vL4}, 2, v{vLane}")
    A(f"v_lshlrev_b32 v{t0}, 5, v{vLane}")
    A(f"global_load_dword v{vJunk}, v{t0}, s[14:15] {o['ptf']}")
    A("s_mov_b32 s44, s40")
    A("s_mov_b32 s45, s41")
    A(f"s_add_u32 s46, s40, {WS_B - WS_A}")
    A("s_addc_u32 s47, s41, 0")
    A(f"s_add_u32 s48, s42, {WS_B - WS_A}")
    A("s_addc_u32 s49, s43, 0")
    A("s_mov_b32 s50, 0")
    A("s_mov_b32 s51, 0")
    A(f"s_add_u32 s52, s38, {WS_P3}")
    A("s_addc_u32 s53, s39, 0")
    A(f"s_add_u32 s54, s38, {WS_P5}")
    A("s_addc_u32 s55, s39, 0")
    A("s_mov_b32 s62, 0")
    if o["ptx"]:
        A("s_lshl_b32 s8, s7, 5")
        A("s_lshl_b32 s10, s4, 2")
        A("s_add_u32 s8, s8, s10")
        A("s_add_u32 s8, s8, s9")
        A("s_mul_i32 s10, s9, 56")
        A("s_lshl_b32 s11, s4, 3")
        A("s_add_u32 s10, s10, s11")
        A("s_add_u32 s10, s10, s7")
        A(f"s_add_u32 s10, s10, {(WS_P5 - WS_P3) // 512}")
        A("s_cmp_eq_u32 s4, 7")
        A("s_cselect_b32 s10, s8, s10")
        A(f"v_mov_b32 v{t0}, s8")
        A(f"v_writelane_b32 v{t0}, s10, 1")
        A(f"v_lshlrev_b32 v{t0}, 9, v{t0}")
        A("s_lshl_b32 s8, s3, 7")
        A(f"v_add_u32 v{t0}, s8, v{t0}")
        A("s_mov_b64 exec, 3")
        A(f"global_load_dword v{vJunk}, v{t0}, s[52:53] {o['pxf']}")
        if o["pgt"] == 1:
            A(f"global_load_dword v{vJunk}, v{vZ}, s[34:35] nt")
        A("s_mov_b64 exec, -1")
    for i in range(4):
        A(f"v_mov_b32 v{k.vSel + i}, {0x07060500 + i:#x}")
    vRR = V("rr"); vCC = V("cc")
    A(f"v_lshrrev_b32 v{vRR}, 2, v{vR}")
    A(f"v_and_b32 v{vCC}, 3, v{vLane}")
    A(f"v_cmp_eq_u32 s[68:69], 0, v{vR}")
    A(f"v_cmp_gt_u32 s[70:71], 8, v{vR}")
    A(f"v_cmp_eq_u32 s[72:73], 1, v{vRR}")
    A(f"v_cmp_gt_u32 s[74:75], 4, v{vR}")
    A(f"v_and_b32 v{t0}, 2, v{vR}")
    A(f"v_cmp_ne_u32 s[76:77], 0, v{t0}")
    A(f"v_and_b32 v{t0}, 1, v{vR}")
    A(f"v_cmp_ne_u32 s[66:67], 0, v{t0}")
    vTR128 = V("tr128")
    A(f"v_lshl_add_u32 v{t0}, v{vQd}, 2, v{vRR}")
    A(f"v_lshlrev_b32 v{vTR128}, 7, v{t0}")
    A(f"v_bfe_u32 v{t1}, v{t0}, 1, 2")
    A(f"v_lshlrev_b32 v{t1}, 1, v{t1}")
    A(f"v_lshrrev_b32 v{t2}, 1, v{vCC}")
    A("s_lshl_b32 s8, s3, 1")
    A(f"v_add_u32 v{t2}, s8, v{t2}")
    A(f"v_xor_b32 v{t2}, v{t2}, v{t1}")
    A(f"v_lshl_add_u32 v{vTR128}, v{t2}, 4, v{vTR128}")
    A(f"v_and_b32 v{t2}, 1, v{vCC}")
    A(f"v_lshl_add_u32 v{vTR128}, v{t2}, 3, v{vTR128}")
    A(f"v_add_u32 v{vTR128}, {WQL}, v{vTR128}")
    vTR256 = V("tr256", 2)
    A(f"v_lshlrev_b32 v{vTR256}, 8, v{t0}")
    A(f"v_and_b32 v{t1}, 7, v{t0}")
    A(f"v_lshlrev_b32 v{t1}, 1, v{t1}")
    A(f"v_lshrrev_b32 v{t3}, 1, v{vCC}")
    A("s_lshl_b32 s8, s3, 2")
    A(f"v_add_u32 v{t3}, s8, v{t3}")
    A(f"v_xor_b32 v{t3}, v{t3}, v{t1}")
    A(f"v_lshl_add_u32 v{vTR256}, v{t3}, 4, v{vTR256}")
    A(f"v_lshl_add_u32 v{vTR256}, v{t2}, 3, v{vTR256}")
    A(f"v_xor_b32 v{vTR256 + 1}, 32, v{vTR256}")
    vPub = V("pubaddr")
    A("s_lshl_b32 s8, s3, 6")
    A(f"v_lshlrev_b32 v{vPub}, 4, v{vQd}")
    A(f"v_add_u32 v{vPub}, s8, v{vPub}")
    vH1 = V("h1a")
    A(f"v_lshlrev_b32 v{t0}, 3, v{vRR}")
    A(f"v_and_b32 v{t1}, 3, v{vR}")
    A(f"v_lshl_add_u32 v{t0}, v{t1}, 1, v{t0}")
    A("s_lshr_b32 s8, s3, 1")
    A(f"v_add_u32 v{t0}, s8, v{t0}")
    A(f"v_mul_u32_u24 v{t0}, {BS}, v{t0}")
    A("s_and_b32 s8, s3, 1")
    A("s_lshl_b32 s8, s8, 7")
    A(f"v_lshl_add_u32 v{vH1}, v{vQd}, 5, v{t0}")
    A(f"v_add_u32 v{vH1}, s8, v{vH1}")
    vXNr = V("xnr")
    A("s_lshl_b32 s8, s3, 10")
    A("s_lshl_b32 s10, s9, 8")
    A("s_add_u32 s8, s8, s10")
    A(f"s_add_u32 s8, s8, {XN}")
    A(f"v_lshlrev_b32 v{vXNr}, 4, v{vQd}")
    A(f"v_add_u32 v{vXNr}, s8, v{vXNr}")
    A(f"v_add_u32 v{t7}, {XN}, v{vWL}")

    vF = V("f", 8)
    A(f"s_waitcnt vmcnt({(5 + (o['pgt'] == 1)) if o['ptx'] else 4})")
    for i in range(4):
        A(f"v_lshlrev_b32 v{vF + 2 * i}, 16, v{vX + i}")
        A(f"v_and_b32 v{vF + 2 * i + 1}, 0xffff0000, v{vX + i}")
    A(f"v_add_f32 v{t0}, v{vF}, v{vF + 1}")
    A(f"v_mul_f32 v{t1}, v{vF}, v{vF}")
    A(f"v_fmac_f32 v{t1}, v{vF + 1}, v{vF + 1}")
    for i in range(2, 8):
        A(f"v_add_f32 v{t0}, v{t0}, v{vF + i}")
        A(f"v_fmac_f32 v{t1}, v{vF + i}, v{vF + i}")
    k.reduce64_to_lane63([t0, t1])
    A(f"v_readlane_b32 s8, v{t0}, 63")
    A(f"v_readlane_b32 s10, v{t1}, 63")
    A(f"v_mov_b32 v{t0}, s8")
    A(f"v_mov_b32 v{t1}, s10")
    k.ln_scalars(t0, t1)
    for i in range(8):
        A(f"v_sub_f32 v{vF + i}, v{vF + i}, v{t0}")
    for i in range(4):
        k.round_bf16_pair(vF + 2 * i, vF + 2 * i + 1, vF + 2 * i, vF + 2 * i + 1, t3)
    for i in range(8):
        A(f"v_mul_f32 v{vF + i}, v{vF + i}, v{t1}")
    for i in range(4):
        A(f"v_cvt_pk_bf16_f32 v{vX + i}, v{vF + 2 * i}, v{vF + 2 * i + 1}")
    A(f"ds_write_b128 v{t7}, {vr(vX, 4)}")
    vB = V("bfrag", 16)
    for ks in range(4):
        A(f"ds_read_b128 {vr(vB + 4 * ks, 4)}, v{vXNr} offset:{ks * 64}")
    A("s_waitcnt lgkmcnt(0)")
    A("s_add_u32 s13, s56, 1")
    A("s_and_b32 s13, s13, 0x0fffffff")
    for i, sh in enumerate((0, 7, 0, 14)):
        A(f"s_bfe_u32 s8, s13, {(7 << 16) | sh:#x}")
        if i == 2:
            A("s_xor_b32 s8, s8, 0x2a")
        A(f"s_or_b32 s{57 + i}, s8, 0x80")
    A("s_lshl_b32 s8, s58, 8")
    A("s_or_b32 s56, s57, s8")
    A("s_lshl_b32 s8, s59, 16")
    A("s_or_b32 s56, s56, s8")
    A("s_lshl_b32 s8, s60, 24")
    A("s_or_b32 s56, s56, s8")
    A("s_mul_i32 s12, s57, 0x01010101")
    vHs1 = V("hs1")
    A("s_lshl_b32 s8, s5, 2")
    A("s_add_u32 s8, s8, s3")
    A(f"v_mov_b32 v{vHs1}, s8")
    vHB = V("hintbyte")
    A(f"v_mov_b32 v{vHB}, s57")
    A.stamp(1)
    vW = V("wfrag", 16)
    k.lds_wait(F_WQ, 1, t0)
    for ks in range(4):
        for hf in range(2):
            A(f"ds_read_b64_tr_b16 {vr(vW + 4 * ks + 2 * hf, 2)}, v{vTR128} offset:{ks * 4096 + hf * 2048}")
    vD = V("d", 8)
    for ks in range(4):
        A(f"s_waitcnt lgkmcnt({6 - 2 * ks})")
        A(f"v_mfma_f32_16x16x32_bf16 {vr(vD, 4)}, {vr(vW + 4 * ks, 4)}, {vr(vB + 4 * ks, 4)}, {'0' if ks == 0 else vr(vD, 4)}")
    k.tag4(vD)
    A("s_mov_b64 exec, s[68:69]")
    A(f"global_store_dwordx4 v{vPub}, {vr(vD, 4)}, s[42:43] offset:{B_P1}")
    A("s_mov_b64 exec, 1")
    A(f"global_store_byte v{vHs1}, v{vHB}, s[14:15] offset:1024")
    A("s_mov_b64 exec, -1")
    A.stamp(2)
    vG = V("g", 24)
    vAcc = V("acc")
    vRing = V("ring", max(24, 8 * NP))

    def h1_issue(s):
        A(f"global_load_dwordx4 {vr(vRing + 8 * s, 4)}, v{vH1}, s[44:45] offset:{B_P1} sc1")
        A(f"global_load_dwordx4 {vr(vRing + 8 * s + 4, 4)}, v{vH1}, s[44:45] offset:{B_P1 + 16} sc1")

    later = []
    LA = later.append
    vL16Q = V("l16q")
    LA(f"v_add_u32 v{vL16Q}, {QF}, v{vL16}")
    vKa = V("ka", 4)
    LA("s_lshl_b32 s8, s3, 13")
    LA(f"v_lshlrev_b32 v{vKa}, 8, v{vR}")
    LA(f"v_add_u32 v{vKa}, s8, v{vKa}")
    LA(f"v_xor_b32 v{t1}, v{vQd}, v{vR}")
    LA(f"v_lshl_add_u32 v{vKa}, v{t1}, 4, v{vKa}")
    LA(f"v_xor_b32 v{vKa + 1}, 64, v{vKa}")
    LA(f"v_xor_b32 v{vKa + 2}, 128, v{vKa}")
    LA(f"v_xor_b32 v{vKa + 3}, 192, v{vKa}")
    vMXw = V("mxw"); vMXr = V("mxr")
    LA(f"v_lshlrev_b32 v{vMXr}, 6, v{vR}")
    LA(f"v_add_u32 v{vMXr}, {MX}, v{vMXr}")
    LA("s_lshl_b32 s8, s3, 4")
    LA(f"v_lshl_add_u32 v{vMXw}, v{vQd}, 2, v{vMXr}")
    LA(f"v_add_u32 v{vMXw}, s8, v{vMXw}")
    vMX2w = V("mx2w"); vMX2r = V("mx2r")
    LA(f"v_lshlrev_b32 v{vMX2r}, 4, v{vR}")
    LA(f"v_add_u32 v{vMX2r}, {MX}, v{vMX2r}")
    LA("s_lshl_b32 s8, s3, 2")
    LA(f"v_add_u32 v{vMX2w}, s8, v{vMX2r}")
    vSelP = V("selp", 2)
    LA(f"v_and_b32 v{t0}, 1, v{vRR}")
    LA(f"v_lshlrev_b32 v{t0}, 1, v{t0}")
    LA(f"v_add_u32 v{vSelP}, 0x07060500, v{t0}")
    LA(f"v_add_u32 v{vSelP + 1}, 0x07060501, v{t0}")
    vP2a = V("p2a")
    LA(f"v_and_b32 v{t0}, 3, v{vR}")
    LA(f"v_lshlrev_b32 v{vP2a}, 9, v{t0}")
    LA(f"v_lshl_add_u32 v{vP2a}, v{vRR}, 6, v{vP2a}")
    LA(f"v_lshl_add_u32 v{vP2a}, v{vQd}, 4, v{vP2a}")
    LA("s_lshl_b32 s8, s3, 7")
    LA(f"v_add_u32 v{vP2a}, s8, v{vP2a}")
    vH2 = V("h2a", 4)
    LA("s_lshl_b32 s10, s9, 9")
    LA("s_add_u32 s10, s10, s8")
    LA(f"v_mul_u32_u24 v{t0}, {BS}, v{vR}")
    LA(f"v_lshl_add_u32 v{vH2}, v{vQd}, 4, v{t0}")
    LA(f"v_add_u32 v{vH2}, s10, v{vH2}")
    LA(f"v_add_u32 v{vH2 + 1}, {16 * BS}, v{vH2}")
    LA("s_lshl_b32 s10, s9, 4")
    LA(f"v_add_u32 v{vH2 + 2}, s10, v{t0}")
    LA(f"v_add_u32 v{vH2 + 3}, {16 * BS}, v{vH2 + 2}")
    vHs2 = V("hs2"); vHr2 = V("hr2"); vHs4 = V("hs4"); vHr4 = V("hr4")
    LA("s_lshl_b32 s8, s3, 7")
    LA(f"v_add_u32 v{vHr2}, s8, v{vL4}")
    LA("s_add_u32 s8, s8, s5")
    LA(f"v_mov_b32 v{vHs2}, s8")
    LA("s_lshl_b32 s8, s9, 7")
    LA("s_lshl_b32 s10, s7, 2")
    LA("s_add_u32 s8, s8, s10")
    LA("s_add_u32 s8, s8, s3")
    LA(f"v_mov_b32 v{vHs4}, s8")
    LA("s_lshr_b32 s8, s7, 1")
    LA("s_lshl_b32 s8, s8, 7")
    LA(f"v_add_u32 v{vHr4}, s8, v{vL4}")
    vOFw = V("ofw"); vQ16 = V("q16")
    LA(f"v_add_u32 v{vOFw}, {OF}, v{vPub}")
    LA(f"v_lshlrev_b32 v{vQ16}, 4, v{vQd}")
    LA(f"v_add_u32 v{vQ16}, {OF}, v{vQ16}")
    vP3a = V("p3a")
    LA("s_lshl_b32 s8, s7, 5")
    LA("s_lshl_b32 s10, s4, 2")
    LA("s_add_u32 s8, s8, s10")
    LA("s_add_u32 s8, s8, s9")
    LA("s_lshl_b32 s8, s8, 9")
    LA("s_lshl_b32 s10, s3, 6")
    LA("s_add_u32 s8, s8, s10")
    LA(f"v_add_u32 v{vP3a}, s8, v{vPub}")
    vH3 = V("h3a", 2); vP4a = V("p4a")
    LA("s_lshl_b32 s8, s7, 14")
    LA("s_add_u32 s8, s8, s10")
    LA(f"v_lshl_add_u32 v{vP4a}, v{vR}, 8, v{vPub}")
    LA(f"v_lshl_add_u32 v{vH3}, v{vR}, 9, v{vPub}")
    LA(f"v_add_u32 v{vH3}, s8, v{vH3}")
    LA(f"v_add_u32 v{vH3 + 1}, 8192, v{vH3}")
    vHFw = V("hfw"); vHFa = V("hfa"); vHFb = V("hfb")
    LA("s_lshr_b32 s8, s3, 1")
    LA("s_lshl_b32 s8, s8, 6")
    LA("s_and_b32 s10, s3, 1")
    LA("s_lshl_b32 s10, s10, 3")
    LA("s_add_u32 s8, s8, s10")
    LA(f"v_lshlrev_b32 v{vHFa}, 4, v{vQd}")
    LA(f"v_add_u32 v{vHFa}, {HF}, v{vHFa}")
    LA(f"v_add_u32 v{vHFw}, s8, v{vHFa}")
    LA(f"v_and_b32 v{t0}, 1, v{vR}")
    LA(f"v_lshl_add_u32 v{vHFb}, v{t0}, 7, v{vHFa}")
    vH4 = V("h4a", 2)
    LA("s_lshr_b32 s8, s7, 1")
    LA(f"s_mul_i32 s8, s8, {8 * BS}")
    LA("s_and_b32 s10, s7, 1")
    LA("s_lshl_b32 s10, s10, 7")
    LA("s_lshl_b32 s11, s3, 4")
    LA("s_add_u32 s10, s10, s11")
    LA(f"v_and_b32 v{t0}, 7, v{vLane}")
    LA(f"v_mul_u32_u24 v{t0}, {BS}, v{t0}")
    LA(f"v_add_u32 v{vH4}, s8, v{t0}")
    LA(f"v_bfe_u32 v{t1}, v{vLane}, 3, 2")
    LA(f"v_lshl_add_u32 v{t1}, v{t1}, 8, v{vH4}")
    LA(f"v_lshrrev_b32 v{t0}, 5, v{vLane}")
    LA(f"v_lshl_add_u32 v{t1}, v{t0}, 6, v{t1}")
    LA(f"v_add_u32 v{vH4 + 1}, s10, v{t1}")
    vHHw = V("hhw"); vHHr = V("hhr")
    LA(f"v_lshlrev_b32 v{vHHw}, 3, v{t0}")
    LA(f"v_lshl_add_u32 v{vHHw}, v{vCC}, 1, v{vHHw}")
    LA(f"s_add_u32 s11, s11, {HH}")
    LA(f"v_add_u32 v{vHHw}, s11, v{vHHw}")
    LA(f"v_lshlrev_b32 v{vHHr}, 4, v{vQd}")
    LA(f"v_add_u32 v{vHHr}, {HH}, v{vHHr}")
    vP5a = V("p5a")
    LA("s_mul_i32 s8, s9, 56")
    LA("s_lshl_b32 s10, s4, 3")
    LA("s_add_u32 s8, s8, s10")
    LA("s_add_u32 s8, s8, s7")
    LA("s_lshl_b32 s8, s8, 9")
    LA("s_lshl_b32 s10, s3, 7")
    LA("s_add_u32 s8, s8, s10")
    LA(f"v_lshlrev_b32 v{vP5a}, 4, v{vQd}")
    LA(f"v_add_u32 v{vP5a}, s8, v{vP5a}")
    LA(f"v_and_b32 v{t0}, 1, v{vR}")
    LA(f"v_lshl_add_u32 v{vP5a}, v{t0}, 6, v{vP5a}")
    LA(f"v_cmp_gt_u32 s[10:11], 2, v{vR}")
    LA("s_mov_b64 s[0:1], s[10:11]")

    vTD = V("taildma", 3)
    if o["ctail"]:
        LA(f"v_and_b32 v{t0}, 7, v{vLane}")
        LA(f"v_lshlrev_b32 v{t1}, 1, v{vQd}")
        LA(f"v_xor_b32 v{t0}, v{t0}, v{t1}")
        LA(f"v_lshlrev_b32 v{t0}, 4, v{t0}")
        LA(f"v_lshrrev_b32 v{t2}, 3, v{vLane}")
        LA(f"v_mul_u32_u24 v{vTD}, 3584, v{t2}")
        LA(f"v_add_u32 v{vTD}, v{vTD}, v{t0}")
        LA(f"v_xor_b32 v{t0}, v{vR}, v{t1}")
        LA(f"v_lshlrev_b32 v{t2}, 10, v{vQd}")
        LA(f"v_lshl_add_u32 v{vTD + 1}, v{t0}, 4, v{t2}")
        LA(f"v_xor_b32 v{vTD + 2}, 128, v{vTD + 1}")
        LA(f"v_add_u32 v{vTD + 2}, {4096 - 1024}, v{vTD + 2}")
        LA("s_lshl_b32 s8, s7, 2")
        LA("s_add_u32 s8, s8, s3")
        LA(f"s_mul_i32 s8, s8, {16 * 3584}")
        LA("s_lshl_b32 s10, s4, 2")
        LA("s_add_u32 s10, s10, s9")
        LA("s_lshl_b32 s10, s10, 7")
        LA("s_add_u32 s8, s8, s10")
        LA("s_add_u32 s18, s28, s8"); LA("s_addc_u32 s19, s29, 0")
        LA("s_add_u32 s20, s30, s8"); LA("s_addc_u32 s21, s31, 0")
        LA(f"s_add_u32 s22, s18, {8 * 3584}"); LA("s_addc_u32 s23, s19, 0")
        LA(f"s_add_u32 s24, s20, {8 * 3584}"); LA("s_addc_u32 s25, s21, 0")
        LA("s_lshl_b32 s8, s4, 18")
        LA("s_lshl_b32 s10, s7, 15")
        LA("s_add_u32 s8, s8, s10")
        LA("s_lshl_b32 s10, s3, 13")
        LA("s_add_u32 s8, s8, s10")
        LA("s_lshl_b32 s10, s9, 8")
        LA("s_add_u32 s8, s8, s10")
        LA("s_add_u32 s26, s32, s8"); LA("s_addc_u32 s27, s33, 0")
    vTW2 = V("tw2", 2)
    LA(f"v_add_u32 v{vTW2}, {W2L}, v{vTR256}")
    LA(f"v_add_u32 v{vTW2 + 1}, {W2L}, v{vTR256 + 1}")
    vXF = V("xf", 4)
    LA("s_waitcnt vmcnt(4)")
    LA(f"v_lshlrev_b32 v{vXF}, 16, v{vXR}")
    LA(f"v_and_b32 v{vXF + 1}, 0xffff0000, v{vXR}")
    LA(f"v_lshlrev_b32 v{vXF + 2}, 16, v{vXR + 1}")
    LA(f"v_and_b32 v{vXF + 3}, 0xffff0000, v{vXR + 1}")

    def h1_ok(s):
        for i in range(8):
            A(f"v_add_f32_dpp v{vG + i}, v{vRing + 8 * s + i}, v{vRing + 8 * s + i} row_ror:4 {DPPM}")

    def h1_fill():
        for s_ in later:
            A(s_)
    if o["hint1"]:
        k.hint_ring("hr1", vL4, 1024, [vRing + 16 + i for i in range(o["NH"])], "s_mov_b32 exec_hi, 0", filler=h1_fill)
        k.poll([f"global_load_dwordx4 {vr(vRing, 4)}, v{vH1}, s[44:45] offset:{B_P1} sc1",
                f"global_load_dwordx4 {vr(vRing + 4, 4)}, v{vH1}, s[44:45] offset:{B_P1 + 16} sc1"],
               [vRing, vRing + 4], vAcc, True, hook=lambda: k.lds_signal(F_G1))
        h1_ok(0)
    else:
        h1_fill()
        if o["GAP0"]:
            A(f"s_sleep {o['GAP0']}")
        k.ring_poll("h1", NP, h1_issue, lambda s: [vRing + 8 * s, vRing + 8 * s + 4], 2, vAcc, True, o["GAP"], h1_ok, pace=o['PACE'])
    h2_loads = [f"global_load_dwordx4 {vr(vG, 4)}, v{vH2}, s[44:45] offset:{B_P2} sc1",
                f"global_load_dwordx4 {vr(vG + 4, 4)}, v{vH2}, s[44:45] offset:{B_P2 + 64} sc1",
                f"global_load_dwordx4 {vr(vG + 8, 4)}, v{vH2 + 1}, s[44:45] offset:{B_P2} sc1",
                f"global_load_dwordx4 {vr(vG + 12, 4)}, v{vH2 + 1}, s[44:45] offset:{B_P2 + 64} sc1"]
    if o["ptl"] & 1:
        A(f"global_load_dword v{vJunk}, v{vWL}, s[42:43] {o['ptf']}")
    if o["ptc"]:
        A(f"global_load_dword v{vJunk}, v{vH2}, s[44:45] offset:{B_P2} sc1")
        A(f"global_load_dword v{vJunk}, v{vH2 + 1}, s[44:45] offset:{B_P2} sc1")
        A(f"global_load_dword v{vJunk}, v{vH2 + 2}, s[44:45] offset:{B_ML} sc1")
        A(f"global_load_dword v{vJunk}, v{vH2 + 3}, s[44:45] offset:{B_ML} sc1")
        A(f"global_load_dword v{vJunk}, v{vL16}, s[14:15] sc1")
    if o["ptp"]:
        skp = k.newlabel("skp")
        A("s_cmp_eq_u32 s3, 1")
        A(f"s_cbranch_scc1 {skp}")
        A("s_cmp_eq_u32 s3, 0")
        A("s_cselect_b32 exec_lo, 0xffff0000, -1")
        A(f"global_store_dwordx4 v{vWL}, {vr(vZ, 4)}, s[42:43]")
        A("s_mov_b64 exec, -1")
        k.label(skp)
    A.stamp(3)
    k.allreduce16("v_add_f32", list(range(vG, vG + 8)), steps=(8,))
    for i in range(4):
        A(f"v_cvt_pk_bf16_f32 v{vX + i}, v{vG + 2 * i}, v{vG + 2 * i + 1}")
    A(f"v_add_u32 v{t0}, {QF}, v{vWL}")
    A(f"ds_write_b128 v{t0}, {vr(vX, 4)}")
    k.lds_signal(F_Q)
    vKF = V("kfrag", 32)
    k.lds_wait(F_K, 1, t4)
    for kt in range(2):
        for s in range(4):
            A(f"ds_read_b128 {vr(vKF + 16 * kt + 4 * s, 4)}, v{vKa + s} offset:{KL + kt * 4096}")
    A.stamp(1, 2)
    k.lds_wait(F_Q, 4, t4, [f"ds_read_b128 {vr(vB + 4 * s, 4)}, v{vL16Q} offset:{s * 1024}" for s in range(4)])
    for s in range(4):
        for kt in range(2):
            A(f"v_mfma_f32_16x16x32_bf16 {vr(vD + 4 * kt, 4)}, {vr(vKF + 16 * kt + 4 * s, 4)}, {vr(vB + 4 * s, 4)}, {'0' if s == 0 else vr(vD + 4 * kt, 4)}")
    A.stamp(2, 2)
    A(f"s_mov_b32 s8, {SCALE:#x}")
    for i in range(4):
        k.round_bf16_pair(vF + 2 * i, vF + 2 * i + 1, vD + 2 * i, vD + 2 * i + 1, t0)
    for i in range(8):
        A(f"v_mul_f32 v{vF + i}, s8, v{vF + i}")
    for i in range(4):
        k.round_bf16_pair(vF + 2 * i, vF + 2 * i + 1, vF + 2 * i, vF + 2 * i + 1, t0)
    A(f"v_max3_f32 v{t0}, v{vF}, v{vF + 1}, v{vF + 2}")
    A(f"v_max3_f32 v{t1}, v{vF + 3}, v{vF + 4}, v{vF + 5}")
    A(f"v_max3_f32 v{t0}, v{t0}, v{vF + 6}, v{vF + 7}")
    A(f"v_max_f32 v{t0}, v{t0}, v{t1}")
    if o['wl']:
        A(f"v_mov_b32 v{t1}, v{t0}")
        A(f"v_permlane16_swap_b32 v{t0}, v{t1}")
        A(f"v_max_f32 v{t0}, v{t0}, v{t1}")
        A(f"v_mov_b32 v{t1}, v{t0}")
        A(f"v_permlane32_swap_b32 v{t0}, v{t1}")
        A(f"v_max_f32 v{t0}, v{t0}, v{t1}")
        A(f"s_mov_b32 s8, {LOG2E:#x}")
        A(f"v_mul_f32 v{t1}, s8, v{t0}")
        for i in range(8):
            A(f"v_fma_f32 v{vF + i}, v{vF + i}, s8, -v{t1}")
        for i in range(8):
            A(f"v_exp_f32 v{vF + i}, v{vF + i}")
        for i in range(4):
            A(f"v_cvt_pk_bf16_f32 v{vX + i}, v{vF + 2 * i}, v{vF + 2 * i + 1}")
        A(f"v_add_u32 v{t1}, {PF}, v{vWL}")
        A(f"ds_write_b128 v{t1}, {vr(vX, 4)}")
        A(f"ds_write_b32 v{vMX2w}, v{t0}")
        A(f"v_add_f32 v{t2}, v{vF}, v{vF + 1}")
        A(f"v_add_f32 v{t3}, v{vF + 2}, v{vF + 3}")
        for i in range(4, 8, 2):
            A(f"v_add_f32 v{t2}, v{t2}, v{vF + i}")
            A(f"v_add_f32 v{t3}, v{t3}, v{vF + i + 1}")
        A(f"v_add_f32 v{t2}, v{t2}, v{t3}")
        A(f"v_mov_b32 v{t3}, v{t2}")
        A(f"v_permlane16_swap_b32 v{t2}, v{t3}")
        A(f"v_add_f32 v{t2}, v{t2}, v{t3}")
        A(f"v_mov_b32 v{t3}, v{t2}")
        A(f"v_permlane32_swap_b32 v{t2}, v{t3}")
        A(f"v_add_f32 v{t2}, v{t2}, v{t3}")
        A(f"ds_write_b32 v{vMX2w}, v{t2} offset:{LS - MX}")
        k.lds_signal(F_P)
        A.stamp(4, 2)
        vML = V("ml", 4)
        vM = vML
        vSC = V("sc", 4)
        k.lds_wait(F_P, 4, t4,
                   [f"ds_read_b128 {vr(vB + 4 * s, 4)}, v{vL16Q} offset:{PF - QF + s * 1024}" for s in range(4)] +
                   [f"ds_read_b128 {vr(vSC, 4)}, v{vMX2r}", f"ds_read_b128 {vr(vG, 4)}, v{vMX2r} offset:{LS - MX}"])
        A.stamp(5, 2)
        A(f"v_max3_f32 v{vM}, v{vSC}, v{vSC + 1}, v{vSC + 2}")
        A(f"v_max_f32 v{vM}, v{vM}, v{vSC + 3}")
        for i in range(4):
            A(f"v_sub_f32 v{vSC + i}, v{vSC + i}, v{vM}")
        for i in range(4):
            A(f"v_mul_f32 v{vSC + i}, s8, v{vSC + i}")
        for i in range(4):
            A(f"v_exp_f32 v{vSC + i}, v{vSC + i}")
        if o["lam"]:
            A(f"v_mul_f32 v{vML + 1}, v{vSC}, v{vG}")
            for i in range(1, 4):
                A(f"v_fmac_f32 v{vML + 1}, v{vSC + i}, v{vG + i}")
            A(f"v_rcp_f32 v{vML + 2}, v{vML + 1}")
            A(f"v_log_f32 v{vML + 1}, v{vML + 1}")
            for i in range(4):
                A(f"v_mul_f32 v{vSC + i}, v{vML + 2}, v{vSC + i}")
            A(f"v_fmac_f32 v{vML + 1}, s8, v{vM}")
        else:
            skipml = k.newlabel("skipml")
            A("s_cmp_lg_u32 s3, 0")
            A(f"s_cbranch_scc1 {skipml}")
            A(f"v_mul_f32 v{vML + 1}, v{vSC}, v{vG}")
            for i in range(1, 4):
                A(f"v_fmac_f32 v{vML + 1}, v{vSC + i}, v{vG + i}")
            A(f"v_mov_b32 v{vML + 2}, 0")
            A(f"v_mov_b32 v{vML + 3}, 0")
            k.tag4(vML)
            A("s_mov_b64 exec, 15")
            A(f"global_store_dwordx4 v{vL16}, {vr(vML, 4)}, s[42:43] offset:{B_ML}")
            A("s_mov_b64 exec, -1")
            k.label(skipml)
        ml_loads = [f"global_load_dwordx4 {vr(vG + 16, 4)}, v{vH2 + 2}, s[44:45] offset:{B_ML} sc1",
                    f"global_load_dwordx4 {vr(vG + 20, 4)}, v{vH2 + 3}, s[44:45] offset:{B_ML} sc1"]
        if o["mlpre"] and o["mlsep"]:
            for l_ in ml_loads:
                A(l_)
        A.stamp(4)
        vO = vW
        if o["vq"]:
            for ks in range(4):
                k.lds_wait(F_V, ks + 1, t4)
                if ks == 3:
                    A.stamp(5)
                for t in range(2):
                    for hf in range(2):
                        A(f"ds_read_b64_tr_b16 {vr(vKF + 8 * ks + 4 * t + 2 * hf, 2)}, v{vTR256 + t} offset:{VL + ks * 8192 + hf * 4096}")
                if ks:
                    for i in range(4):
                        A(f"v_cndmask_b32 v{vO + 4 * (ks - 1) + i}, v{vO + 4 * (ks - 1) + i}, v{vG + 4 * (ks - 1) + i}, s[72:73]")
                    for i in range(4):
                        if ks == 1:
                            A(f"v_mul_f32 v{vD + i}, v{vSC}, v{vO + i}")
                        else:
                            A(f"v_fmac_f32 v{vD + i}, v{vSC + ks - 1}, v{vO + 4 * (ks - 1) + i}")
                A("s_waitcnt lgkmcnt(2)")
                A(f"v_mfma_f32_16x16x32_bf16 {vr(vO + 4 * ks, 4)}, {vr(vKF + 8 * ks, 4)}, {vr(vB + 4 * ks, 4)}, 0")
                A("s_waitcnt lgkmcnt(0)")
                A(f"v_mfma_f32_16x16x32_bf16 {vr(vG + 4 * ks, 4)}, {vr(vKF + 8 * ks + 4, 4)}, {vr(vB + 4 * ks, 4)}, 0")
        else:
            k.lds_wait(F_V, 1, t4)
            A.stamp(5)
            for ks in range(4):
                for t in range(2):
                    for hf in range(2):
                        A(f"ds_read_b64_tr_b16 {vr(vKF + 8 * ks + 4 * t + 2 * hf, 2)}, v{vTR256 + t} offset:{VL + ks * 8192 + hf * 4096}")
            for ks in range(4):
                A(f"s_waitcnt lgkmcnt({12 - 4 * ks})")
                A(f"v_mfma_f32_16x16x32_bf16 {vr(vO + 4 * ks, 4)}, {vr(vKF + 8 * ks, 4)}, {vr(vB + 4 * ks, 4)}, 0")
                A(f"v_mfma_f32_16x16x32_bf16 {vr(vG + 4 * ks, 4)}, {vr(vKF + 8 * ks + 4, 4)}, {vr(vB + 4 * ks, 4)}, 0")
        for ks in (range(3, 4) if o["vq"] else range(4)):
            for i in range(4):
                A(f"v_cndmask_b32 v{vO + 4 * ks + i}, v{vO + 4 * ks + i}, v{vG + 4 * ks + i}, s[72:73]")
            for i in range(4):
                if ks == 0:
                    A(f"v_mul_f32 v{vD + i}, v{vSC}, v{vO + i}")
                else:
                    A(f"v_fmac_f32 v{vD + i}, v{vSC + ks}, v{vO + 4 * ks + i}")
    else:
        A(f"ds_write_b32 v{vMXw}, v{t0}")
        k.lds_signal(F_M)
        A(f"s_mov_b32 s8, {LOG2E:#x}")
        for i in range(8):
            A(f"v_mul_f32 v{vF + i}, s8, v{vF + i}")
        k.lds_wait(F_M, 4, t4, [f"ds_read_b128 {vr(vG + 4 * i, 4)}, v{vMXr} offset:{16 * i}" for i in range(4)])
        A.stamp(4, 2)
        vML = V("ml", 4)
        vM = vML
        A(f"v_max3_f32 v{vM}, v{vG}, v{vG + 1}, v{vG + 2}")
        A(f"v_max3_f32 v{t1}, v{vG + 3}, v{vG + 4}, v{vG + 5}")
        A(f"v_max3_f32 v{t2}, v{vG + 6}, v{vG + 7}, v{vG + 8}")
        A(f"v_max3_f32 v{t3}, v{vG + 9}, v{vG + 10}, v{vG + 11}")
        A(f"v_max3_f32 v{vM}, v{vM}, v{vG + 12}, v{vG + 13}")
        A(f"v_max3_f32 v{t1}, v{t1}, v{vG + 14}, v{vG + 15}")
        A(f"v_max3_f32 v{vM}, v{vM}, v{t1}, v{t2}")
        A(f"v_max_f32 v{vM}, v{vM}, v{t3}")
        A(f"v_mul_f32 v{t1}, s8, v{vM}")
        for i in range(8):
            A(f"v_sub_f32 v{vF + i}, v{vF + i}, v{t1}")
        for i in range(8):
            A(f"v_exp_f32 v{vF + i}, v{vF + i}")
        for i in range(4):
            A(f"v_cvt_pk_bf16_f32 v{vX + i}, v{vF + 2 * i}, v{vF + 2 * i + 1}")
        A(f"v_add_u32 v{t1}, {PF}, v{vWL}")
        A(f"ds_write_b128 v{t1}, {vr(vX, 4)}")
        A(f"v_add_f32 v{t0}, v{vF}, v{vF + 1}")
        for i in range(2, 8):
            A(f"v_add_f32 v{t0}, v{t0}, v{vF + i}")
        A(f"ds_write_b32 v{vMXw}, v{t0} offset:{LS - MX}")
        k.lds_signal(F_P)
        k.lds_wait(F_P, 4, t4,
                   [f"ds_read_b128 {vr(vB + 4 * s, 4)}, v{vL16Q} offset:{PF - QF + s * 1024}" for s in range(4)] +
                   [f"ds_read_b128 {vr(vG + 4 * i, 4)}, v{vMXr} offset:{LS - MX + 16 * i}" for i in range(4)])
        A.stamp(5, 2)
        skipml = k.newlabel("skipml")
        A("s_cmp_lg_u32 s3, 0")
        A(f"s_cbranch_scc1 {skipml}")
        A(f"v_add_f32 v{vML + 1}, v{vG}, v{vG + 1}")
        for i in range(2, 16):
            A(f"v_add_f32 v{vML + 1}, v{vML + 1}, v{vG + i}")
        A(f"v_mov_b32 v{vML + 2}, 0")
        A(f"v_mov_b32 v{vML + 3}, 0")
        k.tag4(vML)
        A("s_mov_b64 exec, 15")
        A(f"global_store_dwordx4 v{vL16}, {vr(vML, 4)}, s[42:43] offset:{B_ML}")
        A("s_mov_b64 exec, -1")
        k.label(skipml)
        ml_loads = [f"global_load_dwordx4 {vr(vG + 16, 4)}, v{vH2 + 2}, s[44:45] offset:{B_ML} sc1",
                f"global_load_dwordx4 {vr(vG + 20, 4)}, v{vH2 + 3}, s[44:45] offset:{B_ML} sc1"]
        if o["mlpre"] and o["mlsep"]:
            for l_ in ml_loads:
                A(l_)
        A.stamp(4)
        k.lds_wait(F_V, 1, t4)
        A.stamp(5)
        for ks in range(4):
            for t in range(2):
                for hf in range(2):
                    A(f"ds_read_b64_tr_b16 {vr(vKF + 8 * ks + 4 * t + 2 * hf, 2)}, v{vTR256 + t} offset:{VL + ks * 8192 + hf * 4096}")
        for ks in range(4):
            A(f"s_waitcnt lgkmcnt({12 - 4 * ks})")
            for t in range(2):
                A(f"v_mfma_f32_16x16x32_bf16 {vr(vD + 4 * t, 4)}, {vr(vKF + 8 * ks + 4 * t, 4)}, {vr(vB + 4 * ks, 4)}, {'0' if ks == 0 else vr(vD + 4 * t, 4)}")
        for i in range(4):
            A(f"v_cndmask_b32 v{vD + i}, v{vD + i}, v{vD + 4 + i}, s[72:73]")
    if o["lam"]:
        A(f"v_perm_b32 v{vD}, v{vD}, s56, v{vSelP}")
        A(f"v_perm_b32 v{vD + 1}, v{vD + 1}, s56, v{vSelP + 1}")
        A(f"v_perm_b32 v{vD + 2}, v{vD + 2}, v{vML + 1}, v{vSelP}")
        A(f"v_perm_b32 v{vD + 3}, v{vD + 3}, v{vML + 1}, v{vSelP + 1}")
    else:
        k.tag4(vD)
    A("s_mov_b64 exec, s[70:71]")
    A(f"global_store_dwordx4 v{vP2a}, {vr(vD, 4)}, s[42:43] offset:{B_P2}")
    A("s_mov_b64 exec, 1")
    A(f"global_store_byte v{vHs2}, v{vHB}, s[14:15]")
    A("s_mov_b64 exec, -1")
    A.stamp(6)
    m1, l1, m2, l2 = vG + 16, vG + 17, vG + 20, vG + 21

    def ml_weights():
        A(f"v_and_b32 v{m1}, 0xffffff00, v{m1}")
        A(f"v_and_b32 v{m2}, 0xffffff00, v{m2}")
        A(f"v_max_f32 v{t0}, v{m1}, v{m2}")
        k.allreduce16("v_max_f32", [t0])
        A(f"s_mov_b32 s8, {LOG2E:#x}")
        A(f"v_sub_f32 v{m1}, v{m1}, v{t0}")
        A(f"v_sub_f32 v{m2}, v{m2}, v{t0}")
        A(f"v_mul_f32 v{m1}, s8, v{m1}")
        A(f"v_mul_f32 v{m2}, s8, v{m2}")
        A(f"v_exp_f32 v{m1}, v{m1}")
        A(f"v_exp_f32 v{m2}, v{m2}")
        A(f"v_mul_f32 v{t1}, v{m1}, v{l1}")
        A(f"v_fmac_f32 v{t1}, v{m2}, v{l2}")
        k.allreduce16("v_add_f32", [t1])
        A(f"v_rcp_f32 v{t1}, v{t1}")
        A(f"v_mul_f32 v{m1}, v{t1}, v{m1}")
        A(f"v_mul_f32 v{m2}, v{t1}, v{m2}")
    if o["mlsep"]:
        k.poll(ml_loads, [vG + 16, vG + 20], vAcc, True, preissued=bool(o["mlpre"]), first_wait=2 if o["mlpre"] else 0)
        A.stamp(1, 1)
        ml_weights()
    if o["hint2"]:
        if o["NH2"]:
            k.hint_ring("hr2", vHr2, 0, [vRing + 16 + i for i in range(o["NH2"])], "s_mov_b64 exec, 0xff", gap=1)
        else:
            k.hint_wait(vHr2, 0, t4)
    A.stamp(2, 1)

    def tail_dma():
        A("s_lshl_b32 s8, s3, 11")
        for base, sreg in ((W1L, 18), (W1L + 1024, 22), (W3L, 20), (W3L + 1024, 24)):
            A(f"s_add_u32 m0, s8, {base}")
            A(f"global_load_lds_dwordx4 v{vTD}, s[{sreg}:{sreg + 1}] nt")
        A(f"s_add_u32 m0, s8, {W2L}")
        A(f"global_load_lds_dwordx4 v{vTD + 1}, s[26:27] nt")
        A(f"global_load_lds_dwordx4 v{vTD + 2}, s[26:27] offset:1024 nt")

    def hook3():
        if o["ctail"]:
            pass
        else:
            k.lds_signal(F_G2)
        k.lds_wait(F_WO, 1, t4)
        for ks in range(4):
            for hf in range(2):
                A(f"ds_read_b64_tr_b16 {vr(vW + 4 * ks + 2 * hf, 2)}, v{vTR128} offset:{WOL - WQL + ks * 4096 + hf * 2048}")
    if o["lam"]:
        A("s_mov_b32 s10, 0x0c0c0400")
        A("s_mov_b32 s11, 0x04000c0c")
        k.poll(h2_loads, [(vG + b_ + i_, 2 * (b_ // 4 % 2) + i_) for b_ in (0, 4, 8, 12) for i_ in range(2)], vAcc, True, hook=hook3,
               first_wait=0)
        A(f"v_perm_b32 v{m1}, v{vG + 3}, v{vG + 2}, s10")
        A(f"v_perm_b32 v{l1}, v{vG + 7}, v{vG + 6}, s11")
        A(f"v_perm_b32 v{m2}, v{vG + 11}, v{vG + 10}, s10")
        A(f"v_perm_b32 v{l2}, v{vG + 15}, v{vG + 14}, s11")
        A(f"v_or_b32 v{m1}, v{m1}, v{l1}")
        A(f"v_or_b32 v{m2}, v{m2}, v{l2}")
        A(f"v_max_f32 v{t0}, v{m1}, v{m2}")
        k.allreduce16("v_max_f32", [t0])
        A(f"v_sub_f32 v{m1}, v{m1}, v{t0}")
        A(f"v_sub_f32 v{m2}, v{m2}, v{t0}")
        A(f"v_exp_f32 v{m1}, v{m1}")
        A(f"v_exp_f32 v{m2}, v{m2}")
    elif o["mlsep"]:
        k.poll(h2_loads, [vG, vG + 4, vG + 8, vG + 12], vAcc, True, hook=hook3)
    else:
        k.poll(ml_loads + h2_loads, [vG + 16, vG + 20, vG, vG + 4, vG + 8, vG + 12], vAcc, True, hook=hook3)
        ml_weights()
    A.stamp(7)

    def tail_mid():
        skp = k.newlabel("notail")
        A("s_cmp_eq_u32 s4, 7")
        A(f"s_cbranch_scc1 {skp}")
        tail_dma()
        k.label(skp)
    for i in range(8):
        A(f"v_mul_f32 v{vG + i}, v{m1}, v{vG + i}")
    for i in range(8):
        A(f"v_fmac_f32 v{vG + i}, v{m2}, v{vG + 8 + i}")
    if o["lam"]:
        A(f"v_add_f32 v{t1}, v{m1}, v{m2}")
        k.allreduce16("v_add_f32", [t1] + list(range(vG, vG + 8)))
        A(f"v_rcp_f32 v{t1}, v{t1}")
        for i in range(8):
            A(f"v_mul_f32 v{vG + i}, v{t1}, v{vG + i}")
    else:
        k.allreduce16("v_add_f32", list(range(vG, vG + 8)))
    for i in range(4):
        A(f"v_cvt_pk_bf16_f32 v{vX + i}, v{vG + 2 * i}, v{vG + 2 * i + 1}")
    A("s_mov_b64 exec, s[68:69]")
    A(f"ds_write_b128 v{vOFw}, {vr(vX, 4)}")
    k.sync(F_O, t4, [f"ds_read_b128 {vr(vB + 4 * ks, 4)}, v{vQ16} offset:{ks * 64}" for ks in range(4)], o["ctail"], mid=tail_mid if o["ctail"] == 1 else None)
    for ks in range(4):
        A(f"v_mfma_f32_16x16x32_bf16 {vr(vD, 4)}, {vr(vW + 4 * ks, 4)}, {vr(vB + 4 * ks, 4)}, {'0' if ks == 0 else vr(vD, 4)}")
    k.tag4(vD)
    A("s_mov_b64 exec, s[68:69]")
    A(f"global_store_dwordx4 v{vP3a}, {vr(vD, 4)}, s[52:53] sc1")
    A("s_mov_b64 exec, -1")
    A.stamp(8)
    A("s_cmp_eq_u32 s4, 7")
    A("s_cbranch_scc1 L_final")

    if o["ctail"] == 2:
        tail_dma()
    vW13 = vKF
    vW2 = vKF + 16

    def hook4():
        if o["ctail"]:
            A("s_waitcnt vmcnt(0)")
            A("s_barrier")
        else:
            k.lds_wait(F_W13, 1, t4)
        for mat, base in enumerate((W1L, W3L)):
            for ks in range(2):
                for hf in range(2):
                    A(f"ds_read_b64_tr_b16 {vr(vW13 + 8 * mat + 4 * ks + 2 * hf, 2)}, v{vTR128} offset:{base - WQL + ks * 4096 + hf * 2048}")
        if not o["ctail"]:
            k.lds_wait(F_W2, 1, t4)
        for u in range(2):
            for hf in range(2):
                A(f"ds_read_b64_tr_b16 {vr(vW2 + 4 * u + 2 * hf, 2)}, v{vTW2 + u} offset:{hf * 4096}")
    if o["ptl"] & 2:
        A(f"global_load_dword v{vJunk}, v{vWL}, s[42:43] {o['ptf']}")
    if o["ptc"]:
        A(f"global_load_dword v{vJunk}, v{vH4}, s[44:45] offset:{B_ST} sc1")
        A(f"global_load_dword v{vJunk}, v{vH4 + 1}, s[44:45] offset:{B_P4} sc1")
    if o["ptp"]:
        skp = k.newlabel("skp")
        A("s_cmp_ge_u32 s3, 2")
        A(f"s_cbranch_scc1 {skp}")
        A("s_cmp_eq_u32 s3, 0")
        A("s_cselect_b32 exec_lo, 0xff000000, -1")
        A(f"global_store_dwordx4 v{vWL}, {vr(vZ, 4)}, s[42:43]")
        A("s_mov_b64 exec, -1")
        k.label(skp)

    def h3_issue(s):
        A(f"global_load_dwordx4 {vr(vRing + 8 * s, 4)}, v{vH3}, s[52:53] sc1")
        A(f"global_load_dwordx4 {vr(vRing + 8 * s + 4, 4)}, v{vH3 + 1}, s[52:53] sc1")

    def h3_ok(s):
        for i in range(4):
            A(f"v_add_f32 v{vG + i}, v{vRing + 8 * s + i}, v{vRing + 8 * s + 4 + i}")
    if o["L3"]:
        A(f"s_sleep {o['L3']}")
    if o["ctail"]:
        hook4()
    k.ring_poll("h3", o["N3"], h3_issue, lambda s: [vRing + 8 * s, vRing + 8 * s + 4], 2, vAcc, False, o["G3"], h3_ok,
                hook=None if o["ctail"] else hook4, pace=o["P3S"])
    A.stamp(9)
    k.allreduce16("v_add_f32", list(range(vG, vG + 4)))
    for i in range(2):
        k.round_bf16_pair(vG + 2 * i, vG + 2 * i + 1, vG + 2 * i, vG + 2 * i + 1, t0 + i)
    for i in range(4):
        A(f"v_add_f32 v{vG + i}, v{vG + i}, v{vXF + i}")
    for i in range(2):
        A(f"v_cvt_pk_bf16_f32 v{vX + i}, v{vG + 2 * i}, v{vG + 2 * i + 1}")
    A("s_mov_b64 exec, s[68:69]")
    A(f"ds_write_b64 v{vHFw}, {vr(vX, 2)}")
    k.sync(F_H, t4,
           [f"ds_read_b128 {vr(vB + 4 * ks, 4)}, v{vHFb} offset:{ks * 64}" for ks in range(2)] +
           [f"ds_read_b128 {vr(vB + 8 + 4 * ks, 4)}, v{vHFa} offset:{ks * 64}" for ks in range(2)], o["bar"] & 1)
    vS = vML
    for ks in range(2):
        A(f"v_mfma_f32_16x16x32_bf16 {vr(vS, 4)}, {vr(vB + 8 + 4 * ks, 4)}, {vr(vB + 4 * ks, 4)}, {'0' if ks == 0 else vr(vS, 4)}")
        A(f"v_mfma_f32_16x16x32_bf16 {vr(vD, 4)}, {vr(vW13 + 4 * ks, 4)}, {vr(vB + 4 * ks, 4)}, {'0' if ks == 0 else vr(vD, 4)}")
        A(f"v_mfma_f32_16x16x32_bf16 {vr(vD + 4, 4)}, {vr(vW13 + 8 + 4 * ks, 4)}, {vr(vB + 4 * ks, 4)}, {'0' if ks == 0 else vr(vD + 4, 4)}")
    skipst = k.newlabel("skipst")
    A("s_cmp_lg_u32 s3, 0")
    A(f"s_cbranch_scc1 {skipst}")
    A("s_nop 3")
    A(f"v_mov_b32_dpp v{vS + 1}, v{vS} row_shl:1 {DPPM}")
    k.tag4(vS)
    A("s_mov_b64 exec, 1")
    A(f"global_store_dwordx4 v{vL16}, {vr(vS, 4)}, s[42:43] offset:{B_ST}")
    A("s_mov_b64 exec, -1")
    k.label(skipst)
    A("s_nop 5")
    for i in range(4):
        A(f"v_cndmask_b32 v{vD + i}, v{vD + i}, v{vD + 4 + i}, s[76:77]")
    k.tag4(vD)
    A("s_mov_b64 exec, s[74:75]")
    A(f"global_store_dwordx4 v{vP4a}, {vr(vD, 4)}, s[42:43] offset:{B_P4}")
    A("s_mov_b64 exec, 1")
    A(f"global_store_byte v{vHs4}, v{vHB}, s[14:15] offset:512")
    A("s_mov_b64 exec, -1")
    A.stamp(10)
    for i in range(4):
        A(f"v_mov_b32 v{vZ + i}, 0")
    k.tag4(vZ)
    A("s_lshl_b32 s8, s3, 4")
    A(f"v_mov_b32 v{t7}, s8")
    if o["hint4"]:
        k.hint_wait(vHr4, 512, t4)
    A.stamp(4, 1)
    k.poll([f"global_load_dwordx4 {vr(vG + 4, 4)}, v{vH4}, s[44:45] offset:{B_ST} sc1",
            f"global_load_dwordx4 {vr(vG, 4)}, v{vH4 + 1}, s[44:45] offset:{B_P4} sc1"],
           [vG + 4, vG], vAcc, True)
    A.stamp(11)
    sq, sm = vG + 4, vG + 5
    for md in ("quad_perm:[1,0,3,2]", "quad_perm:[2,3,0,1]", "row_half_mirror"):
        for r_ in (sm, sq):
            A(f"v_add_f32_dpp v{r_}, v{r_}, v{r_} {md} {DPPM}")
    k.ln_scalars(sm, sq)
    A(f"v_sub_f32 v{sm}, 0, v{sm}")
    A(f"v_cndmask_b32 v{sm}, v{sm}, 1.0, s[70:71]")
    for i in range(4):
        A(f"v_mul_f32 v{vG + i}, v{sm}, v{vG + i}")
    A(f"v_cndmask_b32 v{t0}, v{vG + 1}, v{vG}, s[66:67]")
    A(f"v_cndmask_b32 v{t1}, v{vG + 3}, v{vG + 2}, s[66:67]")
    A(f"v_cndmask_b32 v{t2}, v{vG}, v{vG + 1}, s[66:67]")
    A(f"v_cndmask_b32 v{t3}, v{vG + 2}, v{vG + 3}, s[66:67]")
    A(f"v_add_f32_dpp v{t2}, v{t0}, v{t2} quad_perm:[1,0,3,2] {DPPM}")
    A(f"v_add_f32_dpp v{t3}, v{t1}, v{t3} quad_perm:[1,0,3,2] {DPPM}")
    A(f"v_cndmask_b32 v{t0}, v{t3}, v{t2}, s[76:77]")
    A(f"v_cndmask_b32 v{t1}, v{t2}, v{t3}, s[76:77]")
    A(f"v_add_f32_dpp v{t1}, v{t0}, v{t1} quad_perm:[2,3,0,1] {DPPM}")
    A(f"v_add_f32_dpp v{t1}, v{t1}, v{t1} row_ror:4 {DPPM}")
    A(f"v_add_f32_dpp v{t1}, v{t1}, v{t1} row_ror:8 {DPPM}")
    A(f"v_mul_f32 v{t1}, v{sq}, v{t1}")
    k.round_bf16(t1, t1)
    A(f"v_mov_b32 v{t0}, v{t1}")
    A(f"v_permlane16_swap_b32 v{t1}, v{t0}")
    A(f"s_mov_b32 s8, {LOG2E | 0x80000000:#x}")
    A(f"v_mul_f32 v{t2}, s8, v{t1}")
    A(f"v_exp_f32 v{t2}, v{t2}")
    A(f"v_add_f32 v{t2}, 1.0, v{t2}")
    A(f"v_rcp_f32 v{t2}, v{t2}")
    A(f"v_mul_f32 v{t2}, v{t2}, v{t1}")
    k.round_bf16(t2, t2)
    A(f"v_mul_f32 v{t2}, v{t2}, v{t0}")
    A(f"v_cvt_pk_bf16_f32 v{t2}, v{t2}, v{t2}")
    A("s_mov_b32 exec_lo, 15")
    A("s_mov_b32 exec_hi, 15")
    A(f"ds_write_b16 v{vHHw}, v{t2}")
    k.sync(F_HH, t4, [f"ds_read_b128 {vr(vB, 4)}, v{vHHr}"], o["bar"] & 2)
    for u in range(2):
        A(f"v_mfma_f32_16x16x32_bf16 {vr(vD + 4 * u, 4)}, {vr(vW2 + 4 * u, 4)}, {vr(vB, 4)}, 0")
    A("s_mov_b64 exec, 1")
    A(f"global_store_dwordx4 v{t7}, {vr(vZ, 4)}, s[42:43] offset:{B_ACK}")
    A("s_mov_b64 exec, s[0:1]")
    for i in range(4):
        A(f"v_cndmask_b32 v{vD + i}, v{vD + i}, v{vD + 4 + i}, s[66:67]")
    k.tag4(vD)
    A(f"global_store_dwordx4 v{vP5a}, {vr(vD, 4)}, s[54:55] sc1")
    A("s_mov_b64 exec, -1")
    A.stamp(5, 1)
    if o.get("dirty", 0):
        A("s_lshl_b32 s8, s2, 2")
        A("s_add_u32 s8, s8, s3")
        A(f"s_mul_i32 s8, s8, {o['dirty'] * 1024}")
        A("s_add_u32 s8, s8, 0x1000000")
        A(f"v_add_u32 v{t0}, s8, v{vL16}")
        for i in range(o["dirty"]):
            A(f"global_store_dwordx4 v{t0}, {vr(vZ, 4)}, s[38:39]")
            A(f"v_add_u32 v{t0}, 1024, v{t0}")
    A("s_cmp_lg_u32 s3, 0")
    A("s_cbranch_scc1 L_stamp_end")
    A(f"s_mul_i32 s8, s9, {2 * BS}")
    A(f"v_lshrrev_b32 v{t0}, 3, v{vLane}")
    A(f"v_and_b32 v{t0}, 3, v{t0}")
    A(f"v_lshlrev_b32 v{t0}, 3, v{t0}")
    A(f"v_bfe_u32 v{t1}, v{vLane}, 2, 1")
    A(f"v_add_u32 v{t0}, v{t0}, v{t1}")
    A(f"v_mul_u32_u24 v{t0}, {BS}, v{t0}")
    A(f"v_and_b32 v{t1}, 3, v{vLane}")
    A(f"v_lshl_add_u32 v{t0}, v{t1}, 4, v{t0}")
    A(f"v_add_u32 v{t0}, s8, v{t0}")
    A("s_mov_b32 exec_hi, 0")
    A("s_mov_b32 s61, 0")
    k.label("L_ack")
    A(f"global_load_dwordx4 {vr(vG, 4)}, v{t0}, s[40:41] offset:{B_ACK} sc1")
    A("s_waitcnt vmcnt(0)")
    k.check(vAcc, [vG])
    A(f"v_cmp_ne_u32 vcc, 0, v{vAcc}")
    A("s_cbranch_vccz L_stamp_end0")
    A("s_sleep 2")
    A("s_add_u32 s61, s61, 1")
    A(f"s_cmp_lt_u32 s61, {POLL_LIMIT}")
    A("s_cbranch_scc1 L_ack")
    A("s_call_b64 s[64:65], L_panic")
    A("s_branch L_stamp_end0")

    k.label("L_final")
    A("s_lshr_b32 s8, s5, 2")
    A("s_lshl_b32 s8, s8, 14")
    A("s_and_b32 s10, s5, 3")
    A("s_lshl_b32 s10, s10, 7")
    A("s_add_u32 s8, s8, s10")
    A("s_lshl_b32 s10, s3, 4")
    A("s_add_u32 s8, s8, s10")
    A(f"v_lshlrev_b32 v{t1}, 9, v{vLane}")
    A(f"v_add_u32 v{t1}, s8, v{t1}")
    for i in range(8):
        A(f"v_mov_b32 v{vG + i}, 0")
    if o["L7"]:
        A(f"s_sleep {o['L7']}")
    A("s_mov_b32 exec_hi, 0")
    k.poll([f"global_load_dwordx4 {vr(vG, 4)}, v{t1}, s[52:53] sc1"], [vG], vAcc, False)
    A("s_mov_b64 exec, -1")
    A.stamp(9)
    k.reduce64_to_lane63(list(range(vG, vG + 4)))
    for i in range(2):
        k.round_bf16_pair(vG + 2 * i, vG + 2 * i + 1, vG + 2 * i, vG + 2 * i + 1, t0)
    for i in range(4):
        A(f"v_add_f32 v{vF + i}, v{vG + i}, v{vXF + i}")
    for i in range(2):
        k.round_bf16_pair(vF + 2 * i, vF + 2 * i + 1, vF + 2 * i, vF + 2 * i + 1, t0)
    A("s_mul_i32 s8, s9, 28672")
    A("s_lshl_b32 s10, s7, 6")
    A("s_add_u32 s8, s8, s10")
    A("s_lshl_b32 s10, s3, 4")
    A("s_add_u32 s8, s8, s10")
    A(f"v_lshlrev_b32 v{t1}, 9, v{vLane}")
    A(f"v_add_u32 v{t1}, s8, v{t1}")
    A("s_lshl_b32 s8, s5, 5")
    A("s_lshl_b32 s10, s3, 3")
    A("s_add_u32 s8, s8, s10")
    A(f"v_mov_b32 v{t2}, s8")
    A("s_mov_b32 exec_hi, 0x00ffffff")
    def h5_issue(s):
        A(f"global_load_dwordx4 {vr(vRing + 4 * s, 4)}, v{t1}, s[54:55] sc1")

    def h5_ok(s):
        for i in range(4):
            A(f"v_mov_b32 v{vG + 4 + i}, v{vRing + 4 * s + i}")
    if o["L5"]:
        A(f"s_sleep {o['L5']}")
    k.ring_poll("h5", o["N3"], h5_issue, lambda s: [vRing + 4 * s], 1, vAcc, False, o["G3"], h5_ok, pace=o["P5S"])
    A("s_mov_b64 exec, -1")
    A.stamp(11)
    k.reduce64_to_lane63(list(range(vG + 4, vG + 8)))
    for i in range(2):
        k.round_bf16_pair(vG + 4 + 2 * i, vG + 5 + 2 * i, vG + 4 + 2 * i, vG + 5 + 2 * i, t0 + i)
    for i in range(4):
        A(f"v_add_f32 v{vF + i}, v{vG + 4 + i}, v{vF + i}")
    for i in range(2):
        A(f"v_cvt_pk_bf16_f32 v{vX + i}, v{vF + 2 * i}, v{vF + 2 * i + 1}")
    A("s_mov_b32 exec_lo, 0")
    A("s_mov_b32 exec_hi, 0x80000000")
    A(f"global_store_dwordx2 v{t2}, {vr(vX, 2)}, s[34:35]")
    A("s_or_b32 s8, s5, s3")
    A("s_cmp_lg_u32 s8, 0")
    A("s_cbranch_scc1 L_stamp_end0")
    A(f"v_mov_b32 v{t0}, 0")
    A(f"v_mov_b32 v{t1}, s13")
    A(f"global_store_dword v{t0}, v{t1}, s[38:39]")
    k.label("L_stamp_end0")
    A("s_mov_b64 exec, -1")
    k.label("L_stamp_end")
    if o["exp"]:
        A("s_cmp_lg_u32 s2, 7")
        A("s_cbranch_scc1 L_end")
        A("s_cmp_lg_u32 s3, 0")
        A("s_cbranch_scc1 L_end")
        if o["exp"] == 1:
            A("s_memrealtime s[98:99]")
            A("s_waitcnt lgkmcnt(0)")
            A("s_sub_u32 s8, s98, s96")
            A("s_mul_i32 s8, s8, 10")
            k.label("L_exp")
            A("s_memrealtime s[10:11]")
            A("s_waitcnt lgkmcnt(0)")
            A("s_sub_u32 s10, s10, s98")
            A("s_cmp_lt_u32 s10, s8")
            A("s_cbranch_scc1 L_exp")
        else:
            A("s_memtime s[98:99]")
            k.label("L_exp")
            A("s_memtime s[10:11]")
            A("s_waitcnt lgkmcnt(0)")
            A("s_sub_u32 s10, s10, s98")
            A("s_cmp_lt_u32 s10, 240000")
            A("s_cbranch_scc1 L_exp")
    if dbgtime:
        A("s_cmp_lg_u32 s4, 7")
        A("s_cbranch_scc1 L_end")
        A("s_and_b32 s8, s5, 3")
        A("s_or_b32 s8, s8, s3")
        A("s_cmp_lg_u32 s8, 0")
        A("s_cbranch_scc1 L_end")
        A("s_memrealtime s[98:99]")
        A("s_waitcnt lgkmcnt(0)")
        A("s_not_b32 s96, s96")
        A(f"v_mov_b32 v{t0}, 0")
        A(f"v_mov_b32 v{t1}, s96")
        A(f"v_mov_b32 v{t2}, s98")
        A("s_mov_b64 exec, 1")
        A(f"global_atomic_umax v{t0}, v{t1}, s[36:37]")
        A(f"global_atomic_umax v{t0}, v{t2}, s[36:37] offset:4")
    if stamps:
        A("s_memrealtime s[76:77]")
        A("s_waitcnt lgkmcnt(0)")
        A("s_lshl_b32 s8, s2, 3")
        A("s_add_u32 s8, s8, s3")
        A("s_lshl_b32 s8, s8, 6")
        A(f"s_add_u32 s8, s8, {WS_STAMP}")
        A(f"v_mov_b32 v{t0}, s8")
        for i in range(12):
            A(f"v_mov_b32 v{vG + i}, {'s%d' % (78 + 2 * i) if i in stamps else 0}")
        A(f"v_mov_b32 v{vG + 12}, s76")
        A("s_mov_b64 exec, 1")
        for q in range(4):
            A(f"global_store_dwordx4 v{t0}, {vr(vG + 4 * q, 4)}, s[38:39] offset:{q * 16}")
        A("s_mov_b64 exec, 0xffff")
        A(f"s_add_u32 s8, s8, {0x40000}")
        A(f"v_add_u32 v{t0}, s8, v{vL4}")
        A(f"global_store_dword v{t0}, v{k.vCnt}, s[38:39]")
    A("s_endpgm")

    k.label("L_loader")
    a0, a1, a2, a3, b0, b1, cwq, cwo, cw13, d0, d1, b2, b3 = [vG + i for i in (0, 1, 2, 3, 4, 5, 6, 7, 8, 9, 10, 11, 23)]
    A(f"v_and_b32 v{t0}, 7, v{vLane}")
    A(f"v_lshlrev_b32 v{t1}, 1, v{vQd}")
    A(f"v_xor_b32 v{t0}, v{t0}, v{t1}")
    A(f"v_lshlrev_b32 v{t0}, 4, v{t0}")
    A(f"v_bfe_u32 v{t2}, v{vLane}, 3, 2")
    A(f"v_lshrrev_b32 v{t3}, 5, v{vLane}")
    A(f"v_lshl_add_u32 v{t2}, v{t3}, 3, v{t2}")
    A(f"v_lshl_add_u32 v{cwq}, v{t2}, 13, v{t0}")
    A("s_lshr_b32 s7, s5, 3")
    A("s_and_b32 s8, s5, 7")
    A("s_lshl_b32 s9, s7, 20")
    A("s_lshl_b32 s10, s4, 10")
    A("s_add_u32 s9, s9, s10")
    A("s_lshl_b32 s10, s8, 7")
    A("s_add_u32 s9, s9, s10")
    if o["earlyq"]:
        A("s_waitcnt lgkmcnt(0)")
    A("s_add_u32 s52, s22, s9"); A("s_addc_u32 s53, s23, 0")

    pre_rest = []
    P = pre_rest.append
    P(f"v_lshrrev_b32 v{t1}, 3, v{vLane}")
    P(f"v_lshl_add_u32 v{cwo}, v{t1}, 10, v{t0}")
    P(f"v_mul_u32_u24 v{cw13}, 3584, v{t1}")
    P(f"v_add_u32 v{cw13}, v{cw13}, v{t0}")
    P(f"v_xor_b32 v{t0}, v{vR}, v{vQd}")
    P(f"v_lshlrev_b32 v{t1}, 8, v{vQd}")
    P(f"v_lshl_add_u32 v{a0}, v{t0}, 4, v{t1}")
    P(f"v_xor_b32 v{a1}, 64, v{a0}")
    P(f"v_xor_b32 v{a2}, 128, v{a0}")
    P(f"v_xor_b32 v{a3}, 192, v{a0}")
    P(f"v_lshlrev_b32 v{t0}, 1, v{vQd}")
    P(f"v_xor_b32 v{t0}, v{vR}, v{t0}")
    P(f"v_lshl_add_u32 v{b0}, v{t0}, 4, v{t1}")
    P(f"v_xor_b32 v{b1}, 128, v{b0}")
    P(f"v_lshlrev_b32 v{t1}, 10, v{vQd}")
    P(f"v_lshl_add_u32 v{d0}, v{t0}, 4, v{t1}")
    P(f"v_xor_b32 v{d1}, 128, v{d0}")
    if o["ilv"]:
        dl = {1: [0, 31744, 2 * 31744, 3 * 31744], 2: [0, 0, 0, 0], 3: [0, 0, 65536 - 2048, 65536 - 2048]}[o["ilv"]]
        P(f"v_add_u32 v{b2}, {dl[2]}, v{b0}")
        P(f"v_add_u32 v{b3}, {dl[3]}, v{b1}")
        P(f"v_add_u32 v{b1}, {dl[1]}, v{b1}")
        for i_, r_ in enumerate((a1, a2, a3)):
            P(f"v_add_u32 v{r_}, {dl[i_ + 1]}, v{r_}")
        P(f"s_mul_i32 s12, s2, {o['rot']}")
    P("s_lshl_b32 s6, s4, 24")
    P(f"s_lshl_b32 s9, s5, {(15, 10, 12, 11)[o['ilv']]}")
    P("s_add_u32 s6, s6, s9")
    P(f"s_add_u32 s6, s6, {61440 * 256}")
    P("s_add_u32 s40, s18, s6"); P("s_addc_u32 s41, s19, 0")
    P("s_add_u32 s42, s20, s6"); P("s_addc_u32 s43, s21, 0")
    P("s_lshl_b32 s6, s4, 2"); P("s_add_u32 s6, s6, s7")
    P("s_lshl_b32 s9, s6, 17"); P("s_lshl_b32 s10, s8, 7"); P("s_add_u32 s9, s9, s10")
    P("s_add_u32 s44, s24, s9"); P("s_addc_u32 s45, s25, 0")
    P(f"s_mul_i32 s9, s8, {64 * 3584}"); P("s_lshl_b32 s10, s6, 7"); P("s_add_u32 s9, s9, s10")
    P("s_add_u32 s46, s28, s9"); P("s_addc_u32 s47, s29, 0")
    P("s_add_u32 s48, s30, s9"); P("s_addc_u32 s49, s31, 0")
    P("s_lshl_b32 s9, s4, 18"); P("s_lshl_b32 s10, s8, 15"); P("s_add_u32 s9, s9, s10")
    P("s_lshl_b32 s10, s7, 8"); P("s_add_u32 s9, s9, s10")
    P("s_add_u32 s50, s32, s9"); P("s_addc_u32 s51, s33, 0")

    def seg_ops(name):
        ops = []
        if name == "q":
            prevk = 0
            for i in range(16):
                krow = (i >> 2) * 32 + (0, 16, 4, 20)[i & 3]
                pre = [f"s_mov_b32 m0, {WQL + i * 1024}"]
                d = (krow - prevk) * 8192
                if d > 0:
                    pre += [f"s_add_u32 s52, s52, {d}", "s_addc_u32 s53, s53, 0"]
                elif d < 0:
                    pre += [f"s_sub_u32 s52, s52, {-d}", "s_subb_u32 s53, s53, 0"]
                prevk = krow
                ops.append(pre + [f"global_load_lds_dwordx4 v{cwq}, s[52:53] nt"])
            return ops, F_WQ
        if name in "kv":
            base, sreg, regs, fl = (KL, 40, (a0, a1, a2, a3), F_K) if name == "k" else (VL, 42, (b0, b1, b0, b1), F_V)
            for i in range(32):
                pre = []
                if o["ilv"]:
                    regs = (a0, a1, a2, a3) if name == "k" else (b0, b1, b2, b3)
                    if i % 4 == 0:
                        pre += [f"s_add_u32 s13, s12, {i // 4}", "s_and_b32 s13, s13, 7", "s_lshl_b32 s6, s13, 12",
                                f"s_add_u32 m0, s6, {base}", "s_lshl_b32 s6, s13, 17",
                                f"s_add_u32 s60, s{sreg}, s6", f"s_addc_u32 s61, s{sreg + 1}, 0"]
                    ops.append(pre + [f"global_load_lds_dwordx4 v{regs[i & 3]}, s[60:61] offset:{(i & 3) * 1024} nt"])
                    continue
                if i % 4 == 0:
                    pre += [f"s_mov_b32 m0, {base + i * 1024}"]
                    if i:
                        pre += [f"s_add_u32 s{sreg}, s{sreg}, 4096", f"s_addc_u32 s{sreg + 1}, s{sreg + 1}, 0"]
                ops.append(pre + [f"global_load_lds_dwordx4 v{regs[i & 3]}, s[{sreg}:{sreg + 1}] offset:{(i & 3) * 1024} nt"])
            return ops, fl
        if name == "o":
            for i in range(16):
                pre = [f"s_mov_b32 m0, {WOL + i * 1024}"]
                if i:
                    pre += ["s_add_u32 s44, s44, 8192", "s_addc_u32 s45, s45, 0"]
                ops.append(pre + [f"global_load_lds_dwordx4 v{cwo}, s[44:45] nt"])
            return ops, F_WO
        if name == "a":
            for base, sreg in ((W1L, 46), (W3L, 48)):
                for i in range(8):
                    pre = [f"s_mov_b32 m0, {base + i * 1024}"]
                    if i:
                        pre += [f"s_add_u32 s{sreg}, s{sreg}, {8 * 3584}", f"s_addc_u32 s{sreg + 1}, s{sreg + 1}, 0"]
                    ops.append(pre + [f"global_load_lds_dwordx4 v{cw13}, s[{sreg}:{sreg + 1}] nt"])
            return ops, F_W13
        if name == "b":
            for i in range(8):
                pre = [f"s_mov_b32 m0, {W2L + i * 1024}"]
                if i:
                    pre += ["s_add_u32 s50, s50, 4096", "s_addc_u32 s51, s51, 0"]
                ops.append(pre + [f"global_load_lds_dwordx4 v{(d0, d1)[i & 1]}, s[50:51] nt"])
            return ops, F_W2

    def emit_loader(order, start_n=0, pend=None, n=0):
        pend = list(pend or [])

        def drain():
            for (last, f) in list(pend):
                A(f"s_waitcnt vmcnt({n - 1 - last})")
                k.lds_signal(f)
            pend.clear()
        for name, D in order:
            if name == "G":
                drain()
                k.lds_wait(F_G2, 4, t4, sleep=1)
                continue
            ops, fl = seg_ops(name)
            Dspec = [int(x) for x in str(D).split(":")]
            for iop, op in enumerate(ops):
                D = Dspec[0] if len(Dspec) == 1 or iop < Dspec[1] else Dspec[2]
                if o["TZ"] and n == 16 + o["TX"] and (15, F_WQ) in pend:
                    A(f"s_waitcnt vmcnt({o['TX']})")
                    k.lds_signal(F_WQ)
                    pend.remove((15, F_WQ))
                if o["TZ"] and n < 16 + o["TZ"] and n >= 16 + o["TX"]:
                    sk = k.newlabel("tz")
                    A("s_cmp_ge_u32 s11, 4")
                    A(f"s_cbranch_scc1 {sk}")
                    A(f"s_waitcnt vmcnt({o['DS'] - 1})")
                    if (15, F_WQ) in pend and n - o["DS"] >= 15:
                        k.lds_signal(F_WQ)
                        pend.remove((15, F_WQ))
                    A(f"ds_read_b32 v{t4}, v{k.vFlag} offset:{F_G1}")
                    A("s_waitcnt lgkmcnt(0)")
                    A(f"v_readfirstlane_b32 s11, v{t4}")
                    k.label(sk)
                if n >= D:
                    A(f"s_waitcnt vmcnt({D - 1})")
                    for (last, f) in list(pend):
                        if last <= n - D:
                            k.lds_signal(f)
                            pend.remove((last, f))
                            if f == F_WQ and o["pgt"] == 2:
                                A("s_mov_b64 exec, 1")
                                A(f"global_load_dword v{vJunk}, v{t5}, s[54:55] nt")
                                A(f"global_load_dword v{vJunk}, v{t5}, s[58:59] nt")
                                A("s_mov_b64 exec, -1")
                                n += 2
                for s_ in op:
                    A(s_)
                n += 1
                if name == "v" and o["vq"] and iop % 8 == 7:
                    pend.append((n - 1, fl))
            if name == "v" and o["vq"]:
                pass
            else:
                pend.append((n - 1, fl))
        drain()

    order = []
    for tok in o["order"].split(","):
        order.append((tok[0], tok[1:] or "0"))
    if o["ctail"]:
        order = [x for x in order if x[0] not in "abG"]
    assert order[0][0] == "q"
    ops, fl = seg_ops("q")
    for op in ops:
        for s_ in op:
            A(s_)
    if o["earlyq"]:
        A("s_barrier")
    for s_ in pre_rest:
        A(s_)
    A("s_mov_b32 s11, 0")
    npt = 0
    if o["pgt"] == 2:
        A("s_lshl_b32 s6, s4, 24")
        A("s_lshl_b32 s9, s8, 17")
        A("s_add_u32 s6, s6, s9")
        A(f"s_add_u32 s6, s6, {61440 * 256}")
        A("s_add_u32 s54, s20, s6"); A("s_addc_u32 s55, s21, 0")
        A("s_mov_b32 s58, s34"); A("s_mov_b32 s59, s35")
        A("s_cmp_eq_u32 s7, 1")
        A("s_cselect_b32 s54, s44, s54"); A("s_cselect_b32 s55, s45, s55")
        A("s_cmp_eq_u32 s4, 7")
        A("s_cbranch_scc1 L_pg7")
        A("s_cmp_eq_u32 s7, 1")
        A("s_cselect_b32 s58, s50, s54"); A("s_cselect_b32 s59, s51, s55")
        A("s_cmp_eq_u32 s7, 2")
        A("s_cselect_b32 s54, s46, s54"); A("s_cselect_b32 s55, s47, s55")
        A("s_cmp_eq_u32 s7, 3")
        A("s_cselect_b32 s54, s48, s54"); A("s_cselect_b32 s55, s49, s55")
        k.label("L_pg7")
        A(f"v_mov_b32 v{t5}, 0")
    if o["pgt"] == 1:
        A(f"v_mov_b32 v{t5}, 0")
        A(f"v_mov_b32 v{t6}, {63 * 3584}")
        A("s_mov_b64 exec, 1")
        for sreg in (40, 42, 44):
            A(f"global_load_dword v{vJunk}, v{t5}, s[{sreg}:{sreg + 1}] nt")
        A("s_cmp_eq_u32 s4, 7")
        A("s_cselect_b32 s46, s40, s46"); A("s_cselect_b32 s47, s41, s47")
        A("s_cselect_b32 s48, s40, s48"); A("s_cselect_b32 s49, s41, s49")
        A("s_cselect_b32 s50, s40, s50"); A("s_cselect_b32 s51, s41, s51")
        for sreg in (46, 48, 50):
            A(f"global_load_dword v{vJunk}, v{t5}, s[{sreg}:{sreg + 1}] nt")
        A("s_mov_b64 exec, -1")
        npt = 6
    A("s_cmp_eq_u32 s4, 7")
    A("s_cbranch_scc1 L_loader7")
    k.in_loader = True
    emit_loader(order[1:], pend=[(15, F_WQ)], n=16 + npt)
    if stamps:
        A("s_waitcnt lgkmcnt(0)")
        A("s_lshl_b32 s8, s2, 3")
        A("s_add_u32 s8, s8, 4")
        A("s_lshl_b32 s8, s8, 6")
        A(f"s_add_u32 s8, s8, {WS_STAMP}")
        A(f"v_mov_b32 v{t0}, s8")
        for i in range(8):
            A(f"v_mov_b32 v{vG + 12 + i}, s{78 + 2 * i}")
        A("s_mov_b64 exec, 1")
        for q in range(2):
            A(f"global_store_dwordx4 v{t0}, {vr(vG + 12 + 4 * q, 4)}, s[38:39] offset:{q * 16}")
    A("s_endpgm")
    A(";;LOADER7")
    k.label("L_loader7")
    emit_loader([x for x in order[1:] if x[0] not in "abG"], pend=[(15, F_WQ)], n=16 + npt)
    k.label("L_end")
    A("s_endpgm")

    k.label("L_panic")
    A("s_mov_b64 s[100:101], exec")
    A("s_mov_b64 exec, -1")
    for i in range(4):
        A(f"global_load_dwordx4 {vr(vPT, 4)}, v{vL16}, s[42:43] offset:{i * 1024} sc1")
        A("s_waitcnt vmcnt(0)")
        A(f"global_store_dwordx4 v{vL16}, {vr(vPT, 4)}, s[48:49] offset:{i * 1024} sc1")
        A("s_waitcnt vmcnt(0)")
    A("s_xor_b32 s50, s40, s46")
    A("s_xor_b32 s51, s41, s47")
    A("s_add_u32 s62, s62, 1")
    A(f"s_cmp_ge_u32 s62, {PANIC_MAX}")
    A("s_cbranch_scc1 L_end")
    A("s_mov_b64 exec, s[100:101]")
    A("s_setpc_b64 s[64:65]")

    L = list(k.L)
    i0 = L.index("L_loader:"); i1 = L.index("    ;;LOADER7")
    ld = L[i0:i1]
    L = L[:i0] + L[i1:]
    ih = L.index("    ;;LOADER_HERE")
    L = L[:ih] + ld + L[ih + 1:]
    body = fix_hazards(L)
    body.append(f"    .fill (({NAME} + {CODE_PF_BYTES + 256} - .) >> 2) * ((({NAME} + {CODE_PF_BYTES + 256} - .) >> 63) + 1), 4, 0xbf810000")

    nv = (ra.next + 7) // 8 * 8
    tail = []
    tail.append('.section .rodata,"a"')
    tail.append(".p2align 6")
    tail.append(f".amdhsa_kernel {NAME}")
    tail.append(f"  .amdhsa_next_free_vgpr {nv}")
    tail.append("  .amdhsa_next_free_sgpr 102")
    tail.append(f"  .amdhsa_accum_offset {nv}")
    tail.append("  .amdhsa_group_segment_fixed_size 0")
    tail.append("  .amdhsa_kernarg_size 96")
    tail.append("  .amdhsa_user_sgpr_count 2")
    tail.append("  .amdhsa_user_sgpr_kernarg_segment_ptr 1")
    tail.append("  .amdhsa_system_sgpr_workgroup_id_x 1")
    tail.append(".end_amdhsa_kernel")
    return "\n".join(hdr + body + tail) + "\n"


if __name__ == "__main__":
    import argparse
    ap = argparse.ArgumentParser()
    ap.add_argument("-o", default="sequential_preLN__sliding_block_cached__glu_gated_swiglu__decode.s")
    ap.add_argument("--stamps", default="")
    ap.add_argument("--dbgtime", action="store_true")
    ap.add_argument("--opt", action="append", default=[])
    a = ap.parse_args()
    st = [int(x) for x in a.stamps.split(",")] if a.stamps else None
    opts = {}
    for kv in a.opt:
        kk, vv = kv.split("=")
        opts[kk] = int(vv) if vv.lstrip("-").isdigit() else vv
    open(a.o, "w").write(gen(st, a.dbgtime, **opts))
```

```python
import sys, os
sys.path.insert(0, os.path.dirname(os.path.abspath(__file__)))
from asmlib import fix_hazards, RegAlloc

NAME = "sequential_preLN__sliding_block_cached__glu_gated_swiglu__decode_kernel"

KL = 0
VL = 32768
WQL = 65536
WOL = 81920
W1L = 98304
W3L = 106496
W2L = 114688
XN = 122880
QF = 126976
PF = 131072
MX = 135168
LS = 136192
OF = 137216
HF = 137472
ONES = 137600
FLAGS = 137728
HH = 137984
LDS_BYTES = 138240
F_WQ, F_Q, F_M, F_P, F_O, F_H, F_K, F_V, F_WO, F_W13, F_W2, F_G2, F_HH, F_G1 = [4 * i for i in range(14)]

WS_STAMP = 0x10000
BS = 4224
WS_A = 0x100000
WS_B = 0x300000
WS_P3 = 0x500000
WS_P5 = 0x520000
WS_HINT = 0x540000
B_P1 = 0
B_ML = 256
B_ST = 384
B_ACK = 512
B_P4 = 1024
B_P2 = 2048

LOG2E = 0x3FB8AA3B
SCALE = 0x3DB504F3
EPS = 0x3727C5AC
INV512 = 0x3B000000

POLL_LIMIT = 512
HINT_LIMIT = 400
PANIC_MAX = 4000
LDS_SPIN_MAX = 1 << 24
CODE_PF_BYTES = 17408


def vr(b, n):
    return f"v[{b}:{b + n - 1}]" if n > 1 else f"v{b}"


def sr(b, n=2):
    return f"s[{b}:{b + n - 1}]"


DPPM = "row_mask:0xf bank_mask:0xf"


class K:
    def __init__(self, stamps, opts):
        self.L = []
        self.stamps = stamps
        self.o = opts
        self.uid = 0
        self.ncnt = 0

    def __call__(self, s):
        self.L.append("    " + s)

    def label(self, s):
        self.L.append(s + ":")

    def newlabel(self, p):
        self.uid += 1
        return f"L_{p}_{self.uid}"

    def stamp(self, idx, alt=0):
        if self.o.get("alt", 0) != alt and idx in (1, 2, 4, 5):
            return
        if self.stamps and idx in self.stamps:
            self(f"s_memrealtime {sr(78 + 2 * idx)}")

    def count(self):
        if self.stamps:
            self(f"v_writelane_b32 v{self.vCnt}, s61, {self.ncnt}")
            self.ncnt += 1

    def lds_wait(self, off, target, vtmp, extra_reads=(), sleep=None):
        lp = self.newlabel("lw")
        ok = self.newlabel("lwok")
        if sleep is None:
            sleep = self.o["lsleep"]
        ff = self.o["flagfirst"] and len(extra_reads) > 2
        if not ff:
            self(f"ds_read_b32 v{vtmp}, v{self.vFlag} offset:{off}")
            for r in extra_reads:
                self(r)
            self("s_waitcnt lgkmcnt(0)")
            self(f"v_cmp_le_u32 vcc, {target}, v{vtmp}")
            self(f"s_cbranch_vccnz {ok}")
        self(f"s_mov_b32 s63, {LDS_SPIN_MAX}")
        self.label(lp)
        if sleep and not ff:
            self(f"s_sleep {sleep}")
        self(f"ds_read_b32 v{vtmp}, v{self.vFlag} offset:{off}")
        self("s_sub_u32 s63, s63, 1")
        self("s_cbranch_scc1 L_end")
        self("s_waitcnt lgkmcnt(0)")
        self(f"v_cmp_le_u32 vcc, {target}, v{vtmp}")
        self(f"s_cbranch_vccz {lp}")
        if extra_reads:
            for r in extra_reads:
                self(r)
            self("s_waitcnt lgkmcnt(0)")
        self.label(ok)

    def sync(self, off, vtmp, reads, bar, mid=None):
        if bar:
            self("s_mov_b64 exec, -1")
            self("s_waitcnt lgkmcnt(0)")
            self("s_barrier")
            for r in reads:
                self(r)
            if mid:
                mid()
            self("s_waitcnt lgkmcnt(0)")
        else:
            self.lds_signal(off)
            self.lds_wait(off, 4, vtmp, reads)

    def lds_signal(self, off):
        if self.stamps and getattr(self, "in_loader", False):
            idx = {F_WQ: 1, F_K: 2, F_V: 3, F_WO: 4, F_W13: 5, F_W2: 6}[off]
            self(f"s_memrealtime {sr(78 + 2 * idx)}")
        self("s_mov_b64 exec, 1")
        self(f"ds_add_u32 v{self.vFlag}, v{self.vOne} offset:{off}")
        self("s_mov_b64 exec, -1")

    def tag4(self, b):
        for i in range(4):
            self(f"v_perm_b32 v{b + i}, v{b + i}, s56, v{self.vSel + i}")

    def check(self, acc, grans):
        first = True
        for b in grans:
            if isinstance(b, tuple):
                self(f"v_msad_u8 v{acc}, v{b[0]}, s{57 + b[1]}, {'0' if first else 'v%d' % acc}")
                first = False
                continue
            for i in range(4):
                self(f"v_msad_u8 v{acc}, v{b + i}, s{57 + i}, {'0' if first else 'v%d' % acc}")
                first = False

    def retry_tail(self, lp, toggle):
        nx = self.newlabel("pollnx")
        self("s_add_u32 s61, s61, 1")
        self(f"s_and_b32 s6, s61, {POLL_LIMIT - 1}")
        self(f"s_cbranch_scc1 {nx}")
        self("s_call_b64 s[64:65], L_panic")
        self.label(nx)
        if toggle:
            self("s_xor_b32 s44, s44, s50")
            self("s_xor_b32 s45, s45, s51")
        self(f"s_branch {lp}")

    def poll(self, loads, grans, acc, toggle, hook=None, preissued=False, first_wait=0, fw_cond=False):
        wt = self.newlabel("pollw")
        lp = self.newlabel("poll")
        ok = self.newlabel("pollok")
        self("s_mov_b32 s61, 0")
        if not preissued:
            for l in loads:
                self(l)
        if hook:
            hook()
        if first_wait:
            if fw_cond:
                self("s_cmp_eq_u32 s4, 7")
                self(f"s_cbranch_scc1 {wt}")
            self(f"s_waitcnt vmcnt({first_wait})")
            self(f"s_branch {wt}2")
        self.label(wt)
        self("s_waitcnt vmcnt(0)")
        if first_wait:
            self.label(wt + "2")
        self.check(acc, grans)
        self(f"v_cmp_ne_u32 vcc, 0, v{acc}")
        self(f"s_cbranch_vccz {ok}")
        nx = self.newlabel("pollnx")
        self("s_add_u32 s61, s61, 1")
        self(f"s_and_b32 s6, s61, {POLL_LIMIT - 1}")
        self(f"s_cbranch_scc1 {nx}")
        self("s_call_b64 s[64:65], L_panic")
        self.label(nx)
        if toggle:
            self("s_xor_b32 s44, s44, s50")
            self("s_xor_b32 s45, s45, s51")
        if self.o.get("psleep", 0):
            self(f"s_sleep {self.o['psleep']}")
        for l in loads:
            self(l)
        self(f"s_branch {wt}")
        self.label(ok)
        self.count()

    def ring_poll(self, name, nsets, issue, grans, nld, acc, toggle, gap, on_ok, hook=None, filler=None, pace=0):
        issue(0)
        if filler:
            filler()
        for s_ in range(1, nsets):
            if gap and not (s_ == 1 and filler):
                self(f"s_sleep {gap}")
            issue(s_)
        if hook:
            hook()
        self("s_mov_b32 s61, 0")
        self.label(f"L_{name}")
        for s_ in range(nsets):
            self(f"s_waitcnt vmcnt({nld * (nsets - 1)})")
            self.check(acc, grans(s_))
            self(f"v_cmp_ne_u32 vcc, 0, v{acc}")
            self(f"s_cbranch_vccz L_{name}ok{s_}")
            if pace:
                self(f"s_sleep {pace}")
            issue(s_)
        self("s_add_u32 s61, s61, 1")
        self(f"s_and_b32 s6, s61, {POLL_LIMIT // 4 - 1}")
        self(f"s_cbranch_scc1 L_{name}nx")
        self("s_call_b64 s[64:65], L_panic")
        self.label(f"L_{name}nx")
        if toggle:
            self("s_xor_b32 s44, s44, s50")
            self("s_xor_b32 s45, s45, s51")
        self(f"s_branch L_{name}")
        for s_ in range(nsets):
            self.label(f"L_{name}ok{s_}")
            on_ok(s_)
            if s_ < nsets - 1:
                self(f"s_branch L_{name}done")
        self.label(f"L_{name}done")
        self.count()
        self("s_nop 1")

    def hint_ring(self, name, vaddr, off, vregs, nlanes_mask, filler=None, gap=None):
        n = len(vregs)
        self(nlanes_mask)
        self(f"global_load_dword v{vregs[0]}, v{vaddr}, s[14:15] offset:{off} sc1")
        if filler:
            self("s_mov_b64 exec, -1")
            filler()
            self(nlanes_mask)
        for i in range(1, n):
            self(f"s_sleep {self.o['HGAP'] if gap is None else gap}")
            self(f"global_load_dword v{vregs[i]}, v{vaddr}, s[14:15] offset:{off} sc1")
        self(f"s_mov_b32 s61, {HINT_LIMIT // n}")
        self.label(f"L_{name}")
        for i in range(n):
            self(f"s_waitcnt vmcnt({n - 1})")
            self(f"v_cmp_ne_u32 vcc, s12, v{vregs[i]}")
            self(f"s_cbranch_vccz L_{name}ok")
            self(f"global_load_dword v{vregs[i]}, v{vaddr}, s[14:15] offset:{off} sc1")
        self("s_sub_u32 s61, s61, 1")
        self(f"s_cbranch_scc0 L_{name}")
        self.label(f"L_{name}ok")
        self.count()
        self("s_mov_b64 exec, -1")

    def hint_wait(self, vaddr, off, vtmp):
        lp = self.newlabel("hint")
        ok = self.newlabel("hintok")
        self(f"s_mov_b32 s61, {HINT_LIMIT}")
        self("s_mov_b64 exec, 0xff")
        self.label(lp)
        self(f"global_load_dword v{vtmp}, v{vaddr}, s[14:15] offset:{off} sc1")
        self("s_waitcnt vmcnt(0)")
        self(f"v_cmp_ne_u32 vcc, s12, v{vtmp}")
        self(f"s_cbranch_vccz {ok}")
        if self.o.get("hsleep", 0):
            self(f"s_sleep {self.o['hsleep']}")
        self("s_sub_u32 s61, s61, 1")
        self(f"s_cbranch_scc0 {lp}")
        self.label(ok)
        self.count()
        self("s_mov_b64 exec, -1")

    def allreduce16(self, op, regs, steps=(1, 2, 4, 8)):
        for st in steps:
            for r in regs:
                self(f"{op}_dpp v{r}, v{r}, v{r} row_ror:{st} {DPPM}")

    def reduce64_to_lane63(self, regs):
        self.allreduce16("v_add_f32", regs)
        for r in regs:
            self(f"v_add_f32_dpp v{r}, v{r}, v{r} row_bcast:15 row_mask:0xa bank_mask:0xf")
        for r in regs:
            self(f"v_add_f32_dpp v{r}, v{r}, v{r} row_bcast:31 row_mask:0xc bank_mask:0xf")

    def round_bf16(self, dst, src):
        self(f"v_cvt_pk_bf16_f32 v{dst}, v{src}, v{src}")
        self(f"v_and_b32 v{dst}, 0xffff0000, v{dst}")

    def round_bf16_pair(self, d0, d1, s0, s1, tmp):
        self(f"v_cvt_pk_bf16_f32 v{tmp}, v{s0}, v{s1}")
        self(f"v_lshlrev_b32 v{d0}, 16, v{tmp}")
        self(f"v_and_b32 v{d1}, 0xffff0000, v{tmp}")

    def ln_scalars(self, sm, sq):
        self(f"s_mov_b32 s8, {INV512:#x}")
        self(f"v_mul_f32 v{sm}, s8, v{sm}")
        self(f"v_mul_f32 v{sq}, s8, v{sq}")
        self(f"v_fma_f32 v{sq}, -v{sm}, v{sm}, v{sq}")
        self(f"v_max_f32 v{sq}, 0, v{sq}")
        self.round_bf16(sq, sq)
        self(f"v_add_f32 v{sq}, {EPS:#x}, v{sq}")
        self.round_bf16(sq, sq)
        self(f"v_sqrt_f32 v{sq}, v{sq}")
        self.round_bf16(sm, sm)
        self.round_bf16(sq, sq)
        self(f"v_rcp_f32 v{sq}, v{sq}")


def gen(stamps=None, dbgtime=False, **opts):
    o = dict(NP=6, GAP=7, pf=1, order="q0,k16,v32,o16,a16,b16", ptc=0, ptp=0, ptx=0, ptf='nt', pff='', lsleep=0, PACE=8, ptl=0, exp=0, pgt=1, flagfirst=1, GAP0=4, wl=1, TZ=0, DS=8, TX=8, mlsep=1, NH2=0, L3=0, P3S=0, L5=0, L7=0, P5S=0, hint1=1, NH=6, HGAP=4, mlpre=1, pxf='', xf='', wsoff=0, hint2=1, hint4=1, N3=5, G3=4)
    o.update(hint4=0, N3=1, ptx=1, pxf="nt", L7=40, hint1=0, mlsep=0, NH2=3, NP=2, GAP0=4, GAP=10, PACE=4,
             order="q0,k16,v32,o32,G,a40,b40", pgt=0, lam=1, vq=0, ilv=1, rot=0, earlyq=1, bar=3, ctail=0, L3=16, L5=14)
    o.update(opts)
    k = K(stamps, o)
    A = k
    ra = RegAlloc(1, 256)
    V = ra.alloc
    NP = o["NP"]

    hdr = []
    hdr.append("; 256 workgroups (one per CU) x 5 waves: 4 compute waves + 1 LDS-DMA loader wave.")
    hdr.append(f"; @launch grid=(256,1,1) block=(320,1,1) lds={LDS_BYTES}")
    hdr.append('.amdgcn_target "amdgcn-amd-amdhsa--gfx950"')
    hdr.append(".text")
    hdr.append(f".globl {NAME}")
    hdr.append(".p2align 8")
    hdr.append(f".type {NAME},@function")
    hdr.append(f"{NAME}:")

    vLane = V("lane"); vR = V("r"); vQd = V("qd"); vL16 = V("l16")
    k.vFlag = V("flag"); k.vOne = V("one")
    t0 = V("t0"); t1 = V("t1"); t2 = V("t2"); t3 = V("t3"); t4 = V("t4"); t5 = V("t5"); t6 = V("t6"); t7 = V("t7")
    vJunk = V("junk")
    k.vCnt = V("cnt")
    vPT = V("panic", 4)

    A.stamp(0)
    if dbgtime or o["exp"]:
        A("s_memrealtime s[96:97]")
    A("s_cmp_ge_u32 s2, 256")
    A("s_cbranch_scc1 L_end")
    A("s_load_dwordx16 s[16:31], s[0:1], 0")
    A("s_load_dwordx8 s[32:39], s[0:1], 64")
    if o["pf"]:
        A("s_getpc_b64 s[14:15]")
        A(f"v_lshlrev_b32 v{t0}, 7, v0")
        A(f"v_min_u32 v{t0}, {CODE_PF_BYTES - 128}, v{t0}")
        A(f"global_load_dword v{vJunk}, v{t0}, s[14:15] {o['pff']}")
    A(f"v_lshrrev_b32 v{t0}, 6, v0")
    A(f"v_and_b32 v{vLane}, 63, v0")
    A(f"v_readfirstlane_b32 s3, v{t0}")
    A("s_and_b32 s4, s2, 7")
    A("s_lshr_b32 s5, s2, 3")
    A(f"v_and_b32 v{vR}, 15, v{vLane}")
    A(f"v_lshrrev_b32 v{vQd}, 4, v{vLane}")
    A(f"v_lshlrev_b32 v{vL16}, 4, v{vLane}")
    A(f"v_mov_b32 v{k.vFlag}, {FLAGS}")
    A(f"v_mov_b32 v{k.vOne}, 1")
    A(f"v_lshlrev_b32 v{t0}, 2, v{vLane}")
    A(f"v_add_u32 v{t0}, {ONES}, v{t0}")
    A(f"v_mov_b32 v{t1}, 0")
    A(f"v_mov_b32 v{t2}, 0x3f803f80")
    A(f"ds_write_b32 v{t0}, v{t1} offset:{FLAGS - ONES}")
    A("s_mov_b32 exec_hi, 0")
    A(f"ds_write_b32 v{t0}, v{t2}")
    A("s_mov_b64 exec, -1")
    vX = V("x", 4)
    vXR = V("xr", 2)
    vZ = V("zero4", 4)
    k.vSel = V("sel", 4)
    if o["earlyq"]:
        A("s_cmp_eq_u32 s3, 4")
        A("s_cbranch_scc1 L_loader")
        A("s_waitcnt lgkmcnt(0)")
        A(f"global_load_dwordx4 {vr(vX, 4)}, v{vL16}, s[16:17] {o['xf']}")
        A("s_load_dword s56, s[38:39], 0")
        A("s_barrier")
        A("s_branch L_compute")
    else:
        A("s_waitcnt lgkmcnt(0)")
        if o["wsoff"]:
            A(f"s_add_u32 s38, s38, {o['wsoff'] << 20}")
            A("s_addc_u32 s39, s39, 0")
        A(f"global_load_dwordx4 {vr(vX, 4)}, v{vL16}, s[16:17] {o['xf']}")
        A("s_load_dword s56, s[38:39], 0")
        A("s_barrier")
        A("s_cmp_lg_u32 s3, 4")
        A("s_cbranch_scc1 L_compute")
    A(";;LOADER_HERE")
    k.label("L_compute")
    A("s_lshr_b32 s9, s5, 3")
    A("s_and_b32 s7, s5, 7")
    A("s_lshl_b32 s8, s7, 7")
    A("s_lshl_b32 s10, s3, 5")
    A("s_add_u32 s8, s8, s10")
    A(f"v_lshlrev_b32 v{t0}, 3, v{vQd}")
    A(f"v_add_u32 v{t0}, s8, v{t0}")
    A("s_lshl_b32 s8, s5, 5")
    A("s_lshl_b32 s10, s3, 3")
    A("s_add_u32 s8, s8, s10")
    A(f"v_mov_b32 v{t1}, s8")
    A("s_cmp_eq_u32 s4, 7")
    A("s_cselect_b64 s[10:11], -1, 0")
    A(f"v_cndmask_b32 v{t0}, v{t0}, v{t1}, s[10:11]")
    A(f"global_load_dwordx2 {vr(vXR, 2)}, v{t0}, s[16:17]")
    A(f"s_mul_i32 s8, s4, {32 * BS}")
    A(f"s_add_u32 s8, s8, {WS_A}")
    A("s_add_u32 s40, s38, s8")
    A("s_addc_u32 s41, s39, 0")
    A(f"s_mul_i32 s8, s5, {BS}")
    A("s_add_u32 s42, s40, s8")
    A("s_addc_u32 s43, s41, 0")
    for i in range(4):
        A(f"v_mov_b32 v{vZ + i}, 0")
    vWL = V("wl16")
    A("s_lshl_b32 s8, s3, 10")
    A(f"v_add_u32 v{vWL}, s8, v{vL16}")
    A(f"global_load_dword v{vJunk}, v{vWL}, s[42:43] {o['ptf']}")
    A(f"global_store_dwordx4 v{vWL}, {vr(vZ, 4)}, s[42:43]")
    A("s_lshl_b32 s8, s4, 11")
    A(f"s_add_u32 s8, s8, {WS_HINT}")
    A("s_add_u32 s14, s38, s8")
    A("s_addc_u32 s15, s39, 0")
    vL4 = V("l4")
    A(f"v_lshlrev_b32 v{vL4}, 2, v{vLane}")
    A(f"v_lshlrev_b32 v{t0}, 5, v{vLane}")
    A(f"global_load_dword v{vJunk}, v{t0}, s[14:15] {o['ptf']}")
    A("s_mov_b32 s44, s40")
    A("s_mov_b32 s45, s41")
    A(f"s_add_u32 s46, s40, {WS_B - WS_A}")
    A("s_addc_u32 s47, s41, 0")
    A(f"s_add_u32 s48, s42, {WS_B - WS_A}")
    A("s_addc_u32 s49, s43, 0")
    A("s_mov_b32 s50, 0")
    A("s_mov_b32 s51, 0")
    A(f"s_add_u32 s52, s38, {WS_P3}")
    A("s_addc_u32 s53, s39, 0")
    A(f"s_add_u32 s54, s38, {WS_P5}")
    A("s_addc_u32 s55, s39, 0")
    A("s_mov_b32 s62, 0")
    if o["ptx"]:
        A("s_lshl_b32 s8, s7, 5")
        A("s_lshl_b32 s10, s4, 2")
        A("s_add_u32 s8, s8, s10")
        A("s_add_u32 s8, s8, s9")
        A("s_mul_i32 s10, s9, 56")
        A("s_lshl_b32 s11, s4, 3")
        A("s_add_u32 s10, s10, s11")
        A("s_add_u32 s10, s10, s7")
        A(f"s_add_u32 s10, s10, {(WS_P5 - WS_P3) // 512}")
        A("s_cmp_eq_u32 s4, 7")
        A("s_cselect_b32 s10, s8, s10")
        A(f"v_mov_b32 v{t0}, s8")
        A(f"v_writelane_b32 v{t0}, s10, 1")
        A(f"v_lshlrev_b32 v{t0}, 9, v{t0}")
        A("s_lshl_b32 s8, s3, 7")
        A(f"v_add_u32 v{t0}, s8, v{t0}")
        A("s_mov_b64 exec, 3")
        A(f"global_load_dword v{vJunk}, v{t0}, s[52:53] {o['pxf']}")
        if o["pgt"] == 1:
            A(f"global_load_dword v{vJunk}, v{vZ}, s[34:35] nt")
        A("s_mov_b64 exec, -1")
    for i in range(4):
        A(f"v_mov_b32 v{k.vSel + i}, {0x07060500 + i:#x}")
    vRR = V("rr"); vCC = V("cc")
    A(f"v_lshrrev_b32 v{vRR}, 2, v{vR}")
    A(f"v_and_b32 v{vCC}, 3, v{vLane}")
    A(f"v_cmp_eq_u32 s[68:69], 0, v{vR}")
    A(f"v_cmp_gt_u32 s[70:71], 8, v{vR}")
    A(f"v_cmp_eq_u32 s[72:73], 1, v{vRR}")
    A(f"v_cmp_gt_u32 s[74:75], 4, v{vR}")
    A(f"v_and_b32 v{t0}, 2, v{vR}")
    A(f"v_cmp_ne_u32 s[76:77], 0, v{t0}")
    A(f"v_and_b32 v{t0}, 1, v{vR}")
    A(f"v_cmp_ne_u32 s[66:67], 0, v{t0}")
    vTR128 = V("tr128")
    A(f"v_lshl_add_u32 v{t0}, v{vQd}, 2, v{vRR}")
    A(f"v_lshlrev_b32 v{vTR128}, 7, v{t0}")
    A(f"v_bfe_u32 v{t1}, v{t0}, 1, 2")
    A(f"v_lshlrev_b32 v{t1}, 1, v{t1}")
    A(f"v_lshrrev_b32 v{t2}, 1, v{vCC}")
    A("s_lshl_b32 s8, s3, 1")
    A(f"v_add_u32 v{t2}, s8, v{t2}")
    A(f"v_xor_b32 v{t2}, v{t2}, v{t1}")
    A(f"v_lshl_add_u32 v{vTR128}, v{t2}, 4, v{vTR128}")
    A(f"v_and_b32 v{t2}, 1, v{vCC}")
    A(f"v_lshl_add_u32 v{vTR128}, v{t2}, 3, v{vTR128}")
    A(f"v_add_u32 v{vTR128}, {WQL}, v{vTR128}")
    vTR256 = V("tr256", 2)
    A(f"v_lshlrev_b32 v{vTR256}, 8, v{t0}")
    A(f"v_and_b32 v{t1}, 7, v{t0}")
    A(f"v_lshlrev_b32 v{t1}, 1, v{t1}")
    A(f"v_lshrrev_b32 v{t3}, 1, v{vCC}")
    A("s_lshl_b32 s8, s3, 2")
    A(f"v_add_u32 v{t3}, s8, v{t3}")
    A(f"v_xor_b32 v{t3}, v{t3}, v{t1}")
    A(f"v_lshl_add_u32 v{vTR256}, v{t3}, 4, v{vTR256}")
    A(f"v_lshl_add_u32 v{vTR256}, v{t2}, 3, v{vTR256}")
    A(f"v_xor_b32 v{vTR256 + 1}, 32, v{vTR256}")
    vPub = V("pubaddr")
    A("s_lshl_b32 s8, s3, 6")
    A(f"v_lshlrev_b32 v{vPub}, 4, v{vQd}")
    A(f"v_add_u32 v{vPub}, s8, v{vPub}")
    vH1 = V("h1a")
    A(f"v_lshlrev_b32 v{t0}, 3, v{vRR}")
    A(f"v_and_b32 v{t1}, 3, v{vR}")
    A(f"v_lshl_add_u32 v{t0}, v{t1}, 1, v{t0}")
    A("s_lshr_b32 s8, s3, 1")
    A(f"v_add_u32 v{t0}, s8, v{t0}")
    A(f"v_mul_u32_u24 v{t0}, {BS}, v{t0}")
    A("s_and_b32 s8, s3, 1")
    A("s_lshl_b32 s8, s8, 7")
    A(f"v_lshl_add_u32 v{vH1}, v{vQd}, 5, v{t0}")
    A(f"v_add_u32 v{vH1}, s8, v{vH1}")
    vXNr = V("xnr")
    A("s_lshl_b32 s8, s3, 10")
    A("s_lshl_b32 s10, s9, 8")
    A("s_add_u32 s8, s8, s10")
    A(f"s_add_u32 s8, s8, {XN}")
    A(f"v_lshlrev_b32 v{vXNr}, 4, v{vQd}")
    A(f"v_add_u32 v{vXNr}, s8, v{vXNr}")
    A(f"v_add_u32 v{t7}, {XN}, v{vWL}")

    vF = V("f", 8)
    A(f"s_waitcnt vmcnt({(5 + (o['pgt'] == 1)) if o['ptx'] else 4})")
    for i in range(4):
        A(f"v_lshlrev_b32 v{vF + 2 * i}, 16, v{vX + i}")
        A(f"v_and_b32 v{vF + 2 * i + 1}, 0xffff0000, v{vX + i}")
    A(f"v_add_f32 v{t0}, v{vF}, v{vF + 1}")
    A(f"v_mul_f32 v{t1}, v{vF}, v{vF}")
    A(f"v_fmac_f32 v{t1}, v{vF + 1}, v{vF + 1}")
    for i in range(2, 8):
        A(f"v_add_f32 v{t0}, v{t0}, v{vF + i}")
        A(f"v_fmac_f32 v{t1}, v{vF + i}, v{vF + i}")
    k.reduce64_to_lane63([t0, t1])
    A(f"v_readlane_b32 s8, v{t0}, 63")
    A(f"v_readlane_b32 s10, v{t1}, 63")
    A(f"v_mov_b32 v{t0}, s8")
    A(f"v_mov_b32 v{t1}, s10")
    k.ln_scalars(t0, t1)
    for i in range(8):
        A(f"v_sub_f32 v{vF + i}, v{vF + i}, v{t0}")
    for i in range(4):
        k.round_bf16_pair(vF + 2 * i, vF + 2 * i + 1, vF + 2 * i, vF + 2 * i + 1, t3)
    for i in range(8):
        A(f"v_mul_f32 v{vF + i}, v{vF + i}, v{t1}")
    for i in range(4):
        A(f"v_cvt_pk_bf16_f32 v{vX + i}, v{vF + 2 * i}, v{vF + 2 * i + 1}")
    A(f"ds_write_b128 v{t7}, {vr(vX, 4)}")
    vB = V("bfrag", 16)
    for ks in range(4):
        A(f"ds_read_b128 {vr(vB + 4 * ks, 4)}, v{vXNr} offset:{ks * 64}")
    A("s_waitcnt lgkmcnt(0)")
    A("s_add_u32 s13, s56, 1")
    A("s_and_b32 s13, s13, 0x0fffffff")
    for i, sh in enumerate((0, 7, 0, 14)):
        A(f"s_bfe_u32 s8, s13, {(7 << 16) | sh:#x}")
        if i == 2:
            A("s_xor_b32 s8, s8, 0x2a")
        A(f"s_or_b32 s{57 + i}, s8, 0x80")
    A("s_lshl_b32 s8, s58, 8")
    A("s_or_b32 s56, s57, s8")
    A("s_lshl_b32 s8, s59, 16")
    A("s_or_b32 s56, s56, s8")
    A("s_lshl_b32 s8, s60, 24")
    A("s_or_b32 s56, s56, s8")
    A("s_mul_i32 s12, s57, 0x01010101")
    vHs1 = V("hs1")
    A("s_lshl_b32 s8, s5, 2")
    A("s_add_u32 s8, s8, s3")
    A(f"v_mov_b32 v{vHs1}, s8")
    vHB = V("hintbyte")
    A(f"v_mov_b32 v{vHB}, s57")
    A.stamp(1)
    vW = V("wfrag", 16)
    k.lds_wait(F_WQ, 1, t0)
    for ks in range(4):
        for hf in range(2):
            A(f"ds_read_b64_tr_b16 {vr(vW + 4 * ks + 2 * hf, 2)}, v{vTR128} offset:{ks * 4096 + hf * 2048}")
    vD = V("d", 8)
    for ks in range(4):
        A(f"s_waitcnt lgkmcnt({6 - 2 * ks})")
        A(f"v_mfma_f32_16x16x32_bf16 {vr(vD, 4)}, {vr(vW + 4 * ks, 4)}, {vr(vB + 4 * ks, 4)}, {'0' if ks == 0 else vr(vD, 4)}")
    k.tag4(vD)
    A("s_mov_b64 exec, s[68:69]")
    A(f"global_store_dwordx4 v{vPub}, {vr(vD, 4)}, s[42:43] offset:{B_P1}")
    A("s_mov_b64 exec, 1")
    A(f"global_store_byte v{vHs1}, v{vHB}, s[14:15] offset:1024")
    A("s_mov_b64 exec, -1")
    A.stamp(2)
    vG = V("g", 24)
    vAcc = V("acc")
    vRing = V("ring", max(24, 8 * NP))

    def h1_issue(s):
        A(f"global_load_dwordx4 {vr(vRing + 8 * s, 4)}, v{vH1}, s[44:45] offset:{B_P1} sc1")
        A(f"global_load_dwordx4 {vr(vRing + 8 * s + 4, 4)}, v{vH1}, s[44:45] offset:{B_P1 + 16} sc1")

    later = []
    LA = later.append
    vL16Q = V("l16q")
    LA(f"v_add_u32 v{vL16Q}, {QF}, v{vL16}")
    vKa = V("ka", 4)
    LA("s_lshl_b32 s8, s3, 13")
    LA(f"v_lshlrev_b32 v{vKa}, 8, v{vR}")
    LA(f"v_add_u32 v{vKa}, s8, v{vKa}")
    LA(f"v_xor_b32 v{t1}, v{vQd}, v{vR}")
    LA(f"v_lshl_add_u32 v{vKa}, v{t1}, 4, v{vKa}")
    LA(f"v_xor_b32 v{vKa + 1}, 64, v{vKa}")
    LA(f"v_xor_b32 v{vKa + 2}, 128, v{vKa}")
    LA(f"v_xor_b32 v{vKa + 3}, 192, v{vKa}")
    vMXw = V("mxw"); vMXr = V("mxr")
    LA(f"v_lshlrev_b32 v{vMXr}, 6, v{vR}")
    LA(f"v_add_u32 v{vMXr}, {MX}, v{vMXr}")
    LA("s_lshl_b32 s8, s3, 4")
    LA(f"v_lshl_add_u32 v{vMXw}, v{vQd}, 2, v{vMXr}")
    LA(f"v_add_u32 v{vMXw}, s8, v{vMXw}")
    vMX2w = V("mx2w"); vMX2r = V("mx2r")
    LA(f"v_lshlrev_b32 v{vMX2r}, 4, v{vR}")
    LA(f"v_add_u32 v{vMX2r}, {MX}, v{vMX2r}")
    LA("s_lshl_b32 s8, s3, 2")
    LA(f"v_add_u32 v{vMX2w}, s8, v{vMX2r}")
    vSelP = V("selp", 2)
    LA(f"v_and_b32 v{t0}, 1, v{vRR}")
    LA(f"v_lshlrev_b32 v{t0}, 1, v{t0}")
    LA(f"v_add_u32 v{vSelP}, 0x07060500, v{t0}")
    LA(f"v_add_u32 v{vSelP + 1}, 0x07060501, v{t0}")
    vP2a = V("p2a")
    LA(f"v_and_b32 v{t0}, 3, v{vR}")
    LA(f"v_lshlrev_b32 v{vP2a}, 9, v{t0}")
    LA(f"v_lshl_add_u32 v{vP2a}, v{vRR}, 6, v{vP2a}")
    LA(f"v_lshl_add_u32 v{vP2a}, v{vQd}, 4, v{vP2a}")
    LA("s_lshl_b32 s8, s3, 7")
    LA(f"v_add_u32 v{vP2a}, s8, v{vP2a}")
    vH2 = V("h2a", 4)
    LA("s_lshl_b32 s10, s9, 9")
    LA("s_add_u32 s10, s10, s8")
    LA(f"v_mul_u32_u24 v{t0}, {BS}, v{vR}")
    LA(f"v_lshl_add_u32 v{vH2}, v{vQd}, 4, v{t0}")
    LA(f"v_add_u32 v{vH2}, s10, v{vH2}")
    LA(f"v_add_u32 v{vH2 + 1}, {16 * BS}, v{vH2}")
    LA("s_lshl_b32 s10, s9, 4")
    LA(f"v_add_u32 v{vH2 + 2}, s10, v{t0}")
    LA(f"v_add_u32 v{vH2 + 3}, {16 * BS}, v{vH2 + 2}")
    vHs2 = V("hs2"); vHr2 = V("hr2"); vHs4 = V("hs4"); vHr4 = V("hr4")
    LA("s_lshl_b32 s8, s3, 7")
    LA(f"v_add_u32 v{vHr2}, s8, v{vL4}")
    LA("s_add_u32 s8, s8, s5")
    LA(f"v_mov_b32 v{vHs2}, s8")
    LA("s_lshl_b32 s8, s9, 7")
    LA("s_lshl_b32 s10, s7, 2")
    LA("s_add_u32 s8, s8, s10")
    LA("s_add_u32 s8, s8, s3")
    LA(f"v_mov_b32 v{vHs4}, s8")
    LA("s_lshr_b32 s8, s7, 1")
    LA("s_lshl_b32 s8, s8, 7")
    LA(f"v_add_u32 v{vHr4}, s8, v{vL4}")
    vOFw = V("ofw"); vQ16 = V("q16")
    LA(f"v_add_u32 v{vOFw}, {OF}, v{vPub}")
    LA(f"v_lshlrev_b32 v{vQ16}, 4, v{vQd}")
    LA(f"v_add_u32 v{vQ16}, {OF}, v{vQ16}")
    vP3a = V("p3a")
    LA("s_lshl_b32 s8, s7, 5")
    LA("s_lshl_b32 s10, s4, 2")
    LA("s_add_u32 s8, s8, s10")
    LA("s_add_u32 s8, s8, s9")
    LA("s_lshl_b32 s8, s8, 9")
    LA("s_lshl_b32 s10, s3, 6")
    LA("s_add_u32 s8, s8, s10")
    LA(f"v_add_u32 v{vP3a}, s8, v{vPub}")
    vH3 = V("h3a", 2); vP4a = V("p4a")
    LA("s_lshl_b32 s8, s7, 14")
    LA("s_add_u32 s8, s8, s10")
    LA(f"v_lshl_add_u32 v{vP4a}, v{vR}, 8, v{vPub}")
    LA(f"v_lshl_add_u32 v{vH3}, v{vR}, 9, v{vPub}")
    LA(f"v_add_u32 v{vH3}, s8, v{vH3}")
    LA(f"v_add_u32 v{vH3 + 1}, 8192, v{vH3}")
    vHFw = V("hfw"); vHFa = V("hfa"); vHFb = V("hfb")
    LA("s_lshr_b32 s8, s3, 1")
    LA("s_lshl_b32 s8, s8, 6")
    LA("s_and_b32 s10, s3, 1")
    LA("s_lshl_b32 s10, s10, 3")
    LA("s_add_u32 s8, s8, s10")
    LA(f"v_lshlrev_b32 v{vHFa}, 4, v{vQd}")
    LA(f"v_add_u32 v{vHFa}, {HF}, v{vHFa}")
    LA(f"v_add_u32 v{vHFw}, s8, v{vHFa}")
    LA(f"v_and_b32 v{t0}, 1, v{vR}")
    LA(f"v_lshl_add_u32 v{vHFb}, v{t0}, 7, v{vHFa}")
    vH4 = V("h4a", 2)
    LA("s_lshr_b32 s8, s7, 1")
    LA(f"s_mul_i32 s8, s8, {8 * BS}")
    LA("s_and_b32 s10, s7, 1")
    LA("s_lshl_b32 s10, s10, 7")
    LA("s_lshl_b32 s11, s3, 4")
    LA("s_add_u32 s10, s10, s11")
    LA(f"v_and_b32 v{t0}, 7, v{vLane}")
    LA(f"v_mul_u32_u24 v{t0}, {BS}, v{t0}")
    LA(f"v_add_u32 v{vH4}, s8, v{t0}")
    LA(f"v_bfe_u32 v{t1}, v{vLane}, 3, 2")
    LA(f"v_lshl_add_u32 v{t1}, v{t1}, 8, v{vH4}")
    LA(f"v_lshrrev_b32 v{t0}, 5, v{vLane}")
    LA(f"v_lshl_add_u32 v{t1}, v{t0}, 6, v{t1}")
    LA(f"v_add_u32 v{vH4 + 1}, s10, v{t1}")
    vHHw = V("hhw"); vHHr = V("hhr")
    LA(f"v_lshlrev_b32 v{vHHw}, 3, v{t0}")
    LA(f"v_lshl_add_u32 v{vHHw}, v{vCC}, 1, v{vHHw}")
    LA(f"s_add_u32 s11, s11, {HH}")
    LA(f"v_add_u32 v{vHHw}, s11, v{vHHw}")
    LA(f"v_lshlrev_b32 v{vHHr}, 4, v{vQd}")
    LA(f"v_add_u32 v{vHHr}, {HH}, v{vHHr}")
    vP5a = V("p5a")
    LA("s_mul_i32 s8, s9, 56")
    LA("s_lshl_b32 s10, s4, 3")
    LA("s_add_u32 s8, s8, s10")
    LA("s_add_u32 s8, s8, s7")
    LA("s_lshl_b32 s8, s8, 9")
    LA("s_lshl_b32 s10, s3, 7")
    LA("s_add_u32 s8, s8, s10")
    LA(f"v_lshlrev_b32 v{vP5a}, 4, v{vQd}")
    LA(f"v_add_u32 v{vP5a}, s8, v{vP5a}")
    LA(f"v_and_b32 v{t0}, 1, v{vR}")
    LA(f"v_lshl_add_u32 v{vP5a}, v{t0}, 6, v{vP5a}")
    LA(f"v_cmp_gt_u32 s[10:11], 2, v{vR}")
    LA("s_mov_b64 s[0:1], s[10:11]")

    vTD = V("taildma", 3)
    if o["ctail"]:
        LA(f"v_and_b32 v{t0}, 7, v{vLane}")
        LA(f"v_lshlrev_b32 v{t1}, 1, v{vQd}")
        LA(f"v_xor_b32 v{t0}, v{t0}, v{t1}")
        LA(f"v_lshlrev_b32 v{t0}, 4, v{t0}")
        LA(f"v_lshrrev_b32 v{t2}, 3, v{vLane}")
        LA(f"v_mul_u32_u24 v{vTD}, 3584, v{t2}")
        LA(f"v_add_u32 v{vTD}, v{vTD}, v{t0}")
        LA(f"v_xor_b32 v{t0}, v{vR}, v{t1}")
        LA(f"v_lshlrev_b32 v{t2}, 10, v{vQd}")
        LA(f"v_lshl_add_u32 v{vTD + 1}, v{t0}, 4, v{t2}")
        LA(f"v_xor_b32 v{vTD + 2}, 128, v{vTD + 1}")
        LA(f"v_add_u32 v{vTD + 2}, {4096 - 1024}, v{vTD + 2}")
        LA("s_lshl_b32 s8, s7, 2")
        LA("s_add_u32 s8, s8, s3")
        LA(f"s_mul_i32 s8, s8, {16 * 3584}")
        LA("s_lshl_b32 s10, s4, 2")
        LA("s_add_u32 s10, s10, s9")
        LA("s_lshl_b32 s10, s10, 7")
        LA("s_add_u32 s8, s8, s10")
        LA("s_add_u32 s18, s28, s8"); LA("s_addc_u32 s19, s29, 0")
        LA("s_add_u32 s20, s30, s8"); LA("s_addc_u32 s21, s31, 0")
        LA(f"s_add_u32 s22, s18, {8 * 3584}"); LA("s_addc_u32 s23, s19, 0")
        LA(f"s_add_u32 s24, s20, {8 * 3584}"); LA("s_addc_u32 s25, s21, 0")
        LA("s_lshl_b32 s8, s4, 18")
        LA("s_lshl_b32 s10, s7, 15")
        LA("s_add_u32 s8, s8, s10")
        LA("s_lshl_b32 s10, s3, 13")
        LA("s_add_u32 s8, s8, s10")
        LA("s_lshl_b32 s10, s9, 8")
        LA("s_add_u32 s8, s8, s10")
        LA("s_add_u32 s26, s32, s8"); LA("s_addc_u32 s27, s33, 0")
    vTW2 = V("tw2", 2)
    LA(f"v_add_u32 v{vTW2}, {W2L}, v{vTR256}")
    LA(f"v_add_u32 v{vTW2 + 1}, {W2L}, v{vTR256 + 1}")
    vXF = V("xf", 4)
    LA("s_waitcnt vmcnt(4)")
    LA(f"v_lshlrev_b32 v{vXF}, 16, v{vXR}")
    LA(f"v_and_b32 v{vXF + 1}, 0xffff0000, v{vXR}")
    LA(f"v_lshlrev_b32 v{vXF + 2}, 16, v{vXR + 1}")
    LA(f"v_and_b32 v{vXF + 3}, 0xffff0000, v{vXR + 1}")

    def h1_ok(s):
        for i in range(8):
            A(f"v_add_f32_dpp v{vG + i}, v{vRing + 8 * s + i}, v{vRing + 8 * s + i} row_ror:4 {DPPM}")

    def h1_fill():
        for s_ in later:
            A(s_)
    if o["hint1"]:
        k.hint_ring("hr1", vL4, 1024, [vRing + 16 + i for i in range(o["NH"])], "s_mov_b32 exec_hi, 0", filler=h1_fill)
        k.poll([f"global_load_dwordx4 {vr(vRing, 4)}, v{vH1}, s[44:45] offset:{B_P1} sc1",
                f"global_load_dwordx4 {vr(vRing + 4, 4)}, v{vH1}, s[44:45] offset:{B_P1 + 16} sc1"],
               [vRing, vRing + 4], vAcc, True, hook=lambda: k.lds_signal(F_G1))
        h1_ok(0)
    else:
        h1_fill()
        if o["GAP0"]:
            A(f"s_sleep {o['GAP0']}")
        k.ring_poll("h1", NP, h1_issue, lambda s: [vRing + 8 * s, vRing + 8 * s + 4], 2, vAcc, True, o["GAP"], h1_ok, pace=o['PACE'])
    h2_loads = [f"global_load_dwordx4 {vr(vG, 4)}, v{vH2}, s[44:45] offset:{B_P2} sc1",
                f"global_load_dwordx4 {vr(vG + 4, 4)}, v{vH2}, s[44:45] offset:{B_P2 + 64} sc1",
                f"global_load_dwordx4 {vr(vG + 8, 4)}, v{vH2 + 1}, s[44:45] offset:{B_P2} sc1",
                f"global_load_dwordx4 {vr(vG + 12, 4)}, v{vH2 + 1}, s[44:45] offset:{B_P2 + 64} sc1"]
    if o["ptl"] & 1:
        A(f"global_load_dword v{vJunk}, v{vWL}, s[42:43] {o['ptf']}")
    if o["ptc"]:
        A(f"global_load_dword v{vJunk}, v{vH2}, s[44:45] offset:{B_P2} sc1")
        A(f"global_load_dword v{vJunk}, v{vH2 + 1}, s[44:45] offset:{B_P2} sc1")
        A(f"global_load_dword v{vJunk}, v{vH2 + 2}, s[44:45] offset:{B_ML} sc1")
        A(f"global_load_dword v{vJunk}, v{vH2 + 3}, s[44:45] offset:{B_ML} sc1")
        A(f"global_load_dword v{vJunk}, v{vL16}, s[14:15] sc1")
    if o["ptp"]:
        skp = k.newlabel("skp")
        A("s_cmp_eq_u32 s3, 1")
        A(f"s_cbranch_scc1 {skp}")
        A("s_cmp_eq_u32 s3, 0")
        A("s_cselect_b32 exec_lo, 0xffff0000, -1")
        A(f"global_store_dwordx4 v{vWL}, {vr(vZ, 4)}, s[42:43]")
        A("s_mov_b64 exec, -1")
        k.label(skp)
    A.stamp(3)
    k.allreduce16("v_add_f32", list(range(vG, vG + 8)), steps=(8,))
    for i in range(4):
        A(f"v_cvt_pk_bf16_f32 v{vX + i}, v{vG + 2 * i}, v{vG + 2 * i + 1}")
    A(f"v_add_u32 v{t0}, {QF}, v{vWL}")
    A(f"ds_write_b128 v{t0}, {vr(vX, 4)}")
    k.lds_signal(F_Q)
    vKF = V("kfrag", 32)
    k.lds_wait(F_K, 1, t4)
    for kt in range(2):
        for s in range(4):
            A(f"ds_read_b128 {vr(vKF + 16 * kt + 4 * s, 4)}, v{vKa + s} offset:{KL + kt * 4096}")
    A.stamp(1, 2)
    k.lds_wait(F_Q, 4, t4, [f"ds_read_b128 {vr(vB + 4 * s, 4)}, v{vL16Q} offset:{s * 1024}" for s in range(4)])
    for s in range(4):
        for kt in range(2):
            A(f"v_mfma_f32_16x16x32_bf16 {vr(vD + 4 * kt, 4)}, {vr(vKF + 16 * kt + 4 * s, 4)}, {vr(vB + 4 * s, 4)}, {'0' if s == 0 else vr(vD + 4 * kt, 4)}")
    A.stamp(2, 2)
    A(f"s_mov_b32 s8, {SCALE:#x}")
    for i in range(4):
        k.round_bf16_pair(vF + 2 * i, vF + 2 * i + 1, vD + 2 * i, vD + 2 * i + 1, t0)
    for i in range(8):
        A(f"v_mul_f32 v{vF + i}, s8, v{vF + i}")
    for i in range(4):
        k.round_bf16_pair(vF + 2 * i, vF + 2 * i + 1, vF + 2 * i, vF + 2 * i + 1, t0)
    A(f"v_max3_f32 v{t0}, v{vF}, v{vF + 1}, v{vF + 2}")
    A(f"v_max3_f32 v{t1}, v{vF + 3}, v{vF + 4}, v{vF + 5}")
    A(f"v_max3_f32 v{t0}, v{t0}, v{vF + 6}, v{vF + 7}")
    A(f"v_max_f32 v{t0}, v{t0}, v{t1}")
    if o['wl']:
        A(f"v_mov_b32 v{t1}, v{t0}")
        A(f"v_permlane16_swap_b32 v{t0}, v{t1}")
        A(f"v_max_f32 v{t0}, v{t0}, v{t1}")
        A(f"v_mov_b32 v{t1}, v{t0}")
        A(f"v_permlane32_swap_b32 v{t0}, v{t1}")
        A(f"v_max_f32 v{t0}, v{t0}, v{t1}")
        A(f"s_mov_b32 s8, {LOG2E:#x}")
        A(f"v_mul_f32 v{t1}, s8, v{t0}")
        for i in range(8):
            A(f"v_fma_f32 v{vF + i}, v{vF + i}, s8, -v{t1}")
        for i in range(8):
            A(f"v_exp_f32 v{vF + i}, v{vF + i}")
        for i in range(4):
            A(f"v_cvt_pk_bf16_f32 v{vX + i}, v{vF + 2 * i}, v{vF + 2 * i + 1}")
        A(f"v_add_u32 v{t1}, {PF}, v{vWL}")
        A(f"ds_write_b128 v{t1}, {vr(vX, 4)}")
        A(f"ds_write_b32 v{vMX2w}, v{t0}")
        A(f"v_add_f32 v{t2}, v{vF}, v{vF + 1}")
        A(f"v_add_f32 v{t3}, v{vF + 2}, v{vF + 3}")
        for i in range(4, 8, 2):
            A(f"v_add_f32 v{t2}, v{t2}, v{vF + i}")
            A(f"v_add_f32 v{t3}, v{t3}, v{vF + i + 1}")
        A(f"v_add_f32 v{t2}, v{t2}, v{t3}")
        A(f"v_mov_b32 v{t3}, v{t2}")
        A(f"v_permlane16_swap_b32 v{t2}, v{t3}")
        A(f"v_add_f32 v{t2}, v{t2}, v{t3}")
        A(f"v_mov_b32 v{t3}, v{t2}")
        A(f"v_permlane32_swap_b32 v{t2}, v{t3}")
        A(f"v_add_f32 v{t2}, v{t2}, v{t3}")
        A(f"ds_write_b32 v{vMX2w}, v{t2} offset:{LS - MX}")
        k.lds_signal(F_P)
        A.stamp(4, 2)
        vML = V("ml", 4)
        vM = vML
        vSC = V("sc", 4)
        k.lds_wait(F_P, 4, t4,
                   [f"ds_read_b128 {vr(vB + 4 * s, 4)}, v{vL16Q} offset:{PF - QF + s * 1024}" for s in range(4)] +
                   [f"ds_read_b128 {vr(vSC, 4)}, v{vMX2r}", f"ds_read_b128 {vr(vG, 4)}, v{vMX2r} offset:{LS - MX}"])
        A.stamp(5, 2)
        A(f"v_max3_f32 v{vM}, v{vSC}, v{vSC + 1}, v{vSC + 2}")
        A(f"v_max_f32 v{vM}, v{vM}, v{vSC + 3}")
        for i in range(4):
            A(f"v_sub_f32 v{vSC + i}, v{vSC + i}, v{vM}")
        for i in range(4):
            A(f"v_mul_f32 v{vSC + i}, s8, v{vSC + i}")
        for i in range(4):
            A(f"v_exp_f32 v{vSC + i}, v{vSC + i}")
        if o["lam"]:
            A(f"v_mul_f32 v{vML + 1}, v{vSC}, v{vG}")
            for i in range(1, 4):
                A(f"v_fmac_f32 v{vML + 1}, v{vSC + i}, v{vG + i}")
            A(f"v_rcp_f32 v{vML + 2}, v{vML + 1}")
            A(f"v_log_f32 v{vML + 1}, v{vML + 1}")
            for i in range(4):
                A(f"v_mul_f32 v{vSC + i}, v{vML + 2}, v{vSC + i}")
            A(f"v_fmac_f32 v{vML + 1}, s8, v{vM}")
        else:
            skipml = k.newlabel("skipml")
            A("s_cmp_lg_u32 s3, 0")
            A(f"s_cbranch_scc1 {skipml}")
            A(f"v_mul_f32 v{vML + 1}, v{vSC}, v{vG}")
            for i in range(1, 4):
                A(f"v_fmac_f32 v{vML + 1}, v{vSC + i}, v{vG + i}")
            A(f"v_mov_b32 v{vML + 2}, 0")
            A(f"v_mov_b32 v{vML + 3}, 0")
            k.tag4(vML)
            A("s_mov_b64 exec, 15")
            A(f"global_store_dwordx4 v{vL16}, {vr(vML, 4)}, s[42:43] offset:{B_ML}")
            A("s_mov_b64 exec, -1")
            k.label(skipml)
        ml_loads = [f"global_load_dwordx4 {vr(vG + 16, 4)}, v{vH2 + 2}, s[44:45] offset:{B_ML} sc1",
                    f"global_load_dwordx4 {vr(vG + 20, 4)}, v{vH2 + 3}, s[44:45] offset:{B_ML} sc1"]
        if o["mlpre"] and o["mlsep"]:
            for l_ in ml_loads:
                A(l_)
        A.stamp(4)
        vO = vW
        if o["vq"]:
            for ks in range(4):
                k.lds_wait(F_V, ks + 1, t4)
                if ks == 3:
                    A.stamp(5)
                for t in range(2):
                    for hf in range(2):
                        A(f"ds_read_b64_tr_b16 {vr(vKF + 8 * ks + 4 * t + 2 * hf, 2)}, v{vTR256 + t} offset:{VL + ks * 8192 + hf * 4096}")
                if ks:
                    for i in range(4):
                        A(f"v_cndmask_b32 v{vO + 4 * (ks - 1) + i}, v{vO + 4 * (ks - 1) + i}, v{vG + 4 * (ks - 1) + i}, s[72:73]")
                    for i in range(4):
                        if ks == 1:
                            A(f"v_mul_f32 v{vD + i}, v{vSC}, v{vO + i}")
                        else:
                            A(f"v_fmac_f32 v{vD + i}, v{vSC + ks - 1}, v{vO + 4 * (ks - 1) + i}")
                A("s_waitcnt lgkmcnt(2)")
                A(f"v_mfma_f32_16x16x32_bf16 {vr(vO + 4 * ks, 4)}, {vr(vKF + 8 * ks, 4)}, {vr(vB + 4 * ks, 4)}, 0")
                A("s_waitcnt lgkmcnt(0)")
                A(f"v_mfma_f32_16x16x32_bf16 {vr(vG + 4 * ks, 4)}, {vr(vKF + 8 * ks + 4, 4)}, {vr(vB + 4 * ks, 4)}, 0")
        else:
            k.lds_wait(F_V, 1, t4)
            A.stamp(5)
            for ks in range(4):
                for t in range(2):
                    for hf in range(2):
                        A(f"ds_read_b64_tr_b16 {vr(vKF + 8 * ks + 4 * t + 2 * hf, 2)}, v{vTR256 + t} offset:{VL + ks * 8192 + hf * 4096}")
            for ks in range(4):
                A(f"s_waitcnt lgkmcnt({12 - 4 * ks})")
                A(f"v_mfma_f32_16x16x32_bf16 {vr(vO + 4 * ks, 4)}, {vr(vKF + 8 * ks, 4)}, {vr(vB + 4 * ks, 4)}, 0")
                A(f"v_mfma_f32_16x16x32_bf16 {vr(vG + 4 * ks, 4)}, {vr(vKF + 8 * ks + 4, 4)}, {vr(vB + 4 * ks, 4)}, 0")
        for ks in (range(3, 4) if o["vq"] else range(4)):
            for i in range(4):
                A(f"v_cndmask_b32 v{vO + 4 * ks + i}, v{vO + 4 * ks + i}, v{vG + 4 * ks + i}, s[72:73]")
            for i in range(4):
                if ks == 0:
                    A(f"v_mul_f32 v{vD + i}, v{vSC}, v{vO + i}")
                else:
                    A(f"v_fmac_f32 v{vD + i}, v{vSC + ks}, v{vO + 4 * ks + i}")
    else:
        A(f"ds_write_b32 v{vMXw}, v{t0}")
        k.lds_signal(F_M)
        A(f"s_mov_b32 s8, {LOG2E:#x}")
        for i in range(8):
            A(f"v_mul_f32 v{vF + i}, s8, v{vF + i}")
        k.lds_wait(F_M, 4, t4, [f"ds_read_b128 {vr(vG + 4 * i, 4)}, v{vMXr} offset:{16 * i}" for i in range(4)])
        A.stamp(4, 2)
        vML = V("ml", 4)
        vM = vML
        A(f"v_max3_f32 v{vM}, v{vG}, v{vG + 1}, v{vG + 2}")
        A(f"v_max3_f32 v{t1}, v{vG + 3}, v{vG + 4}, v{vG + 5}")
        A(f"v_max3_f32 v{t2}, v{vG + 6}, v{vG + 7}, v{vG + 8}")
        A(f"v_max3_f32 v{t3}, v{vG + 9}, v{vG + 10}, v{vG + 11}")
        A(f"v_max3_f32 v{vM}, v{vM}, v{vG + 12}, v{vG + 13}")
        A(f"v_max3_f32 v{t1}, v{t1}, v{vG + 14}, v{vG + 15}")
        A(f"v_max3_f32 v{vM}, v{vM}, v{t1}, v{t2}")
        A(f"v_max_f32 v{vM}, v{vM}, v{t3}")
        A(f"v_mul_f32 v{t1}, s8, v{vM}")
        for i in range(8):
            A(f"v_sub_f32 v{vF + i}, v{vF + i}, v{t1}")
        for i in range(8):
            A(f"v_exp_f32 v{vF + i}, v{vF + i}")
        for i in range(4):
            A(f"v_cvt_pk_bf16_f32 v{vX + i}, v{vF + 2 * i}, v{vF + 2 * i + 1}")
        A(f"v_add_u32 v{t1}, {PF}, v{vWL}")
        A(f"ds_write_b128 v{t1}, {vr(vX, 4)}")
        A(f"v_add_f32 v{t0}, v{vF}, v{vF + 1}")
        for i in range(2, 8):
            A(f"v_add_f32 v{t0}, v{t0}, v{vF + i}")
        A(f"ds_write_b32 v{vMXw}, v{t0} offset:{LS - MX}")
        k.lds_signal(F_P)
        k.lds_wait(F_P, 4, t4,
                   [f"ds_read_b128 {vr(vB + 4 * s, 4)}, v{vL16Q} offset:{PF - QF + s * 1024}" for s in range(4)] +
                   [f"ds_read_b128 {vr(vG + 4 * i, 4)}, v{vMXr} offset:{LS - MX + 16 * i}" for i in range(4)])
        A.stamp(5, 2)
        skipml = k.newlabel("skipml")
        A("s_cmp_lg_u32 s3, 0")
        A(f"s_cbranch_scc1 {skipml}")
        A(f"v_add_f32 v{vML + 1}, v{vG}, v{vG + 1}")
        for i in range(2, 16):
            A(f"v_add_f32 v{vML + 1}, v{vML + 1}, v{vG + i}")
        A(f"v_mov_b32 v{vML + 2}, 0")
        A(f"v_mov_b32 v{vML + 3}, 0")
        k.tag4(vML)
        A("s_mov_b64 exec, 15")
        A(f"global_store_dwordx4 v{vL16}, {vr(vML, 4)}, s[42:43] offset:{B_ML}")
        A("s_mov_b64 exec, -1")
        k.label(skipml)
        ml_loads = [f"global_load_dwordx4 {vr(vG + 16, 4)}, v{vH2 + 2}, s[44:45] offset:{B_ML} sc1",
                f"global_load_dwordx4 {vr(vG + 20, 4)}, v{vH2 + 3}, s[44:45] offset:{B_ML} sc1"]
        if o["mlpre"] and o["mlsep"]:
            for l_ in ml_loads:
                A(l_)
        A.stamp(4)
        k.lds_wait(F_V, 1, t4)
        A.stamp(5)
        for ks in range(4):
            for t in range(2):
                for hf in range(2):
                    A(f"ds_read_b64_tr_b16 {vr(vKF + 8 * ks + 4 * t + 2 * hf, 2)}, v{vTR256 + t} offset:{VL + ks * 8192 + hf * 4096}")
        for ks in range(4):
            A(f"s_waitcnt lgkmcnt({12 - 4 * ks})")
            for t in range(2):
                A(f"v_mfma_f32_16x16x32_bf16 {vr(vD + 4 * t, 4)}, {vr(vKF + 8 * ks + 4 * t, 4)}, {vr(vB + 4 * ks, 4)}, {'0' if ks == 0 else vr(vD + 4 * t, 4)}")
        for i in range(4):
            A(f"v_cndmask_b32 v{vD + i}, v{vD + i}, v{vD + 4 + i}, s[72:73]")
    if o["lam"]:
        A(f"v_perm_b32 v{vD}, v{vD}, s56, v{vSelP}")
        A(f"v_perm_b32 v{vD + 1}, v{vD + 1}, s56, v{vSelP + 1}")
        A(f"v_perm_b32 v{vD + 2}, v{vD + 2}, v{vML + 1}, v{vSelP}")
        A(f"v_perm_b32 v{vD + 3}, v{vD + 3}, v{vML + 1}, v{vSelP + 1}")
    else:
        k.tag4(vD)
    A("s_mov_b64 exec, s[70:71]")
    A(f"global_store_dwordx4 v{vP2a}, {vr(vD, 4)}, s[42:43] offset:{B_P2}")
    A("s_mov_b64 exec, 1")
    A(f"global_store_byte v{vHs2}, v{vHB}, s[14:15]")
    A("s_mov_b64 exec, -1")
    A.stamp(6)
    m1, l1, m2, l2 = vG + 16, vG + 17, vG + 20, vG + 21

    def ml_weights():
        A(f"v_and_b32 v{m1}, 0xffffff00, v{m1}")
        A(f"v_and_b32 v{m2}, 0xffffff00, v{m2}")
        A(f"v_max_f32 v{t0}, v{m1}, v{m2}")
        k.allreduce16("v_max_f32", [t0])
        A(f"s_mov_b32 s8, {LOG2E:#x}")
        A(f"v_sub_f32 v{m1}, v{m1}, v{t0}")
        A(f"v_sub_f32 v{m2}, v{m2}, v{t0}")
        A(f"v_mul_f32 v{m1}, s8, v{m1}")
        A(f"v_mul_f32 v{m2}, s8, v{m2}")
        A(f"v_exp_f32 v{m1}, v{m1}")
        A(f"v_exp_f32 v{m2}, v{m2}")
        A(f"v_mul_f32 v{t1}, v{m1}, v{l1}")
        A(f"v_fmac_f32 v{t1}, v{m2}, v{l2}")
        k.allreduce16("v_add_f32", [t1])
        A(f"v_rcp_f32 v{t1}, v{t1}")
        A(f"v_mul_f32 v{m1}, v{t1}, v{m1}")
        A(f"v_mul_f32 v{m2}, v{t1}, v{m2}")
    if o["mlsep"]:
        k.poll(ml_loads, [vG + 16, vG + 20], vAcc, True, preissued=bool(o["mlpre"]), first_wait=2 if o["mlpre"] else 0)
        A.stamp(1, 1)
        ml_weights()
    if o["hint2"]:
        if o["NH2"]:
            k.hint_ring("hr2", vHr2, 0, [vRing + 16 + i for i in range(o["NH2"])], "s_mov_b64 exec, 0xff", gap=1)
        else:
            k.hint_wait(vHr2, 0, t4)
    A.stamp(2, 1)

    def tail_dma():
        A("s_lshl_b32 s8, s3, 11")
        for base, sreg in ((W1L, 18), (W1L + 1024, 22), (W3L, 20), (W3L + 1024, 24)):
            A(f"s_add_u32 m0, s8, {base}")
            A(f"global_load_lds_dwordx4 v{vTD}, s[{sreg}:{sreg + 1}] nt")
        A(f"s_add_u32 m0, s8, {W2L}")
        A(f"global_load_lds_dwordx4 v{vTD + 1}, s[26:27] nt")
        A(f"global_load_lds_dwordx4 v{vTD + 2}, s[26:27] offset:1024 nt")

    def hook3():
        if o["ctail"]:
            pass
        else:
            k.lds_signal(F_G2)
        k.lds_wait(F_WO, 1, t4)
        for ks in range(4):
            for hf in range(2):
                A(f"ds_read_b64_tr_b16 {vr(vW + 4 * ks + 2 * hf, 2)}, v{vTR128} offset:{WOL - WQL + ks * 4096 + hf * 2048}")
    if o["lam"]:
        A("s_mov_b32 s10, 0x0c0c0400")
        A("s_mov_b32 s11, 0x04000c0c")
        k.poll(h2_loads, [(vG + b_ + i_, 2 * (b_ // 4 % 2) + i_) for b_ in (0, 4, 8, 12) for i_ in range(2)], vAcc, True, hook=hook3,
               first_wait=0)
        A(f"v_perm_b32 v{m1}, v{vG + 3}, v{vG + 2}, s10")
        A(f"v_perm_b32 v{l1}, v{vG + 7}, v{vG + 6}, s11")
        A(f"v_perm_b32 v{m2}, v{vG + 11}, v{vG + 10}, s10")
        A(f"v_perm_b32 v{l2}, v{vG + 15}, v{vG + 14}, s11")
        A(f"v_or_b32 v{m1}, v{m1}, v{l1}")
        A(f"v_or_b32 v{m2}, v{m2}, v{l2}")
        A(f"v_max_f32 v{t0}, v{m1}, v{m2}")
        k.allreduce16("v_max_f32", [t0])
        A(f"v_sub_f32 v{m1}, v{m1}, v{t0}")
        A(f"v_sub_f32 v{m2}, v{m2}, v{t0}")
        A(f"v_exp_f32 v{m1}, v{m1}")
        A(f"v_exp_f32 v{m2}, v{m2}")
    elif o["mlsep"]:
        k.poll(h2_loads, [vG, vG + 4, vG + 8, vG + 12], vAcc, True, hook=hook3)
    else:
        k.poll(ml_loads + h2_loads, [vG + 16, vG + 20, vG, vG + 4, vG + 8, vG + 12], vAcc, True, hook=hook3)
        ml_weights()
    A.stamp(7)

    def tail_mid():
        skp = k.newlabel("notail")
        A("s_cmp_eq_u32 s4, 7")
        A(f"s_cbranch_scc1 {skp}")
        tail_dma()
        k.label(skp)
    for i in range(8):
        A(f"v_mul_f32 v{vG + i}, v{m1}, v{vG + i}")
    for i in range(8):
        A(f"v_fmac_f32 v{vG + i}, v{m2}, v{vG + 8 + i}")
    if o["lam"]:
        A(f"v_add_f32 v{t1}, v{m1}, v{m2}")
        k.allreduce16("v_add_f32", [t1] + list(range(vG, vG + 8)))
        A(f"v_rcp_f32 v{t1}, v{t1}")
        for i in range(8):
            A(f"v_mul_f32 v{vG + i}, v{t1}, v{vG + i}")
    else:
        k.allreduce16("v_add_f32", list(range(vG, vG + 8)))
    for i in range(4):
        A(f"v_cvt_pk_bf16_f32 v{vX + i}, v{vG + 2 * i}, v{vG + 2 * i + 1}")
    A("s_mov_b64 exec, s[68:69]")
    A(f"ds_write_b128 v{vOFw}, {vr(vX, 4)}")
    k.sync(F_O, t4, [f"ds_read_b128 {vr(vB + 4 * ks, 4)}, v{vQ16} offset:{ks * 64}" for ks in range(4)], o["ctail"], mid=tail_mid if o["ctail"] == 1 else None)
    for ks in range(4):
        A(f"v_mfma_f32_16x16x32_bf16 {vr(vD, 4)}, {vr(vW + 4 * ks, 4)}, {vr(vB + 4 * ks, 4)}, {'0' if ks == 0 else vr(vD, 4)}")
    k.tag4(vD)
    A("s_mov_b64 exec, s[68:69]")
    A(f"global_store_dwordx4 v{vP3a}, {vr(vD, 4)}, s[52:53] sc1")
    A("s_mov_b64 exec, -1")
    A.stamp(8)
    A("s_cmp_eq_u32 s4, 7")
    A("s_cbranch_scc1 L_final")

    if o["ctail"] == 2:
        tail_dma()
    vW13 = vKF
    vW2 = vKF + 16

    def hook4():
        if o["ctail"]:
            A("s_waitcnt vmcnt(0)")
            A("s_barrier")
        else:
            k.lds_wait(F_W13, 1, t4)
        for mat, base in enumerate((W1L, W3L)):
            for ks in range(2):
                for hf in range(2):
                    A(f"ds_read_b64_tr_b16 {vr(vW13 + 8 * mat + 4 * ks + 2 * hf, 2)}, v{vTR128} offset:{base - WQL + ks * 4096 + hf * 2048}")
        if not o["ctail"]:
            k.lds_wait(F_W2, 1, t4)
        for u in range(2):
            for hf in range(2):
                A(f"ds_read_b64_tr_b16 {vr(vW2 + 4 * u + 2 * hf, 2)}, v{vTW2 + u} offset:{hf * 4096}")
    if o["ptl"] & 2:
        A(f"global_load_dword v{vJunk}, v{vWL}, s[42:43] {o['ptf']}")
    if o["ptc"]:
        A(f"global_load_dword v{vJunk}, v{vH4}, s[44:45] offset:{B_ST} sc1")
        A(f"global_load_dword v{vJunk}, v{vH4 + 1}, s[44:45] offset:{B_P4} sc1")
    if o["ptp"]:
        skp = k.newlabel("skp")
        A("s_cmp_ge_u32 s3, 2")
        A(f"s_cbranch_scc1 {skp}")
        A("s_cmp_eq_u32 s3, 0")
        A("s_cselect_b32 exec_lo, 0xff000000, -1")
        A(f"global_store_dwordx4 v{vWL}, {vr(vZ, 4)}, s[42:43]")
        A("s_mov_b64 exec, -1")
        k.label(skp)

    def h3_issue(s):
        A(f"global_load_dwordx4 {vr(vRing + 8 * s, 4)}, v{vH3}, s[52:53] sc1")
        A(f"global_load_dwordx4 {vr(vRing + 8 * s + 4, 4)}, v{vH3 + 1}, s[52:53] sc1")

    def h3_ok(s):
        for i in range(4):
            A(f"v_add_f32 v{vG + i}, v{vRing + 8 * s + i}, v{vRing + 8 * s + 4 + i}")
    if o["L3"]:
        A(f"s_sleep {o['L3']}")
    if o["ctail"]:
        hook4()
    k.ring_poll("h3", o["N3"], h3_issue, lambda s: [vRing + 8 * s, vRing + 8 * s + 4], 2, vAcc, False, o["G3"], h3_ok,
                hook=None if o["ctail"] else hook4, pace=o["P3S"])
    A.stamp(9)
    k.allreduce16("v_add_f32", list(range(vG, vG + 4)))
    for i in range(2):
        k.round_bf16_pair(vG + 2 * i, vG + 2 * i + 1, vG + 2 * i, vG + 2 * i + 1, t0 + i)
    for i in range(4):
        A(f"v_add_f32 v{vG + i}, v{vG + i}, v{vXF + i}")
    for i in range(2):
        A(f"v_cvt_pk_bf16_f32 v{vX + i}, v{vG + 2 * i}, v{vG + 2 * i + 1}")
    A("s_mov_b64 exec, s[68:69]")
    A(f"ds_write_b64 v{vHFw}, {vr(vX, 2)}")
    k.sync(F_H, t4,
           [f"ds_read_b128 {vr(vB + 4 * ks, 4)}, v{vHFb} offset:{ks * 64}" for ks in range(2)] +
           [f"ds_read_b128 {vr(vB + 8 + 4 * ks, 4)}, v{vHFa} offset:{ks * 64}" for ks in range(2)], o["bar"] & 1)
    vS = vML
    for ks in range(2):
        A(f"v_mfma_f32_16x16x32_bf16 {vr(vS, 4)}, {vr(vB + 8 + 4 * ks, 4)}, {vr(vB + 4 * ks, 4)}, {'0' if ks == 0 else vr(vS, 4)}")
        A(f"v_mfma_f32_16x16x32_bf16 {vr(vD, 4)}, {vr(vW13 + 4 * ks, 4)}, {vr(vB + 4 * ks, 4)}, {'0' if ks == 0 else vr(vD, 4)}")
        A(f"v_mfma_f32_16x16x32_bf16 {vr(vD + 4, 4)}, {vr(vW13 + 8 + 4 * ks, 4)}, {vr(vB + 4 * ks, 4)}, {'0' if ks == 0 else vr(vD + 4, 4)}")
    skipst = k.newlabel("skipst")
    A("s_cmp_lg_u32 s3, 0")
    A(f"s_cbranch_scc1 {skipst}")
    A("s_nop 3")
    A(f"v_mov_b32_dpp v{vS + 1}, v{vS} row_shl:1 {DPPM}")
    k.tag4(vS)
    A("s_mov_b64 exec, 1")
    A(f"global_store_dwordx4 v{vL16}, {vr(vS, 4)}, s[42:43] offset:{B_ST}")
    A("s_mov_b64 exec, -1")
    k.label(skipst)
    A("s_nop 5")
    for i in range(4):
        A(f"v_cndmask_b32 v{vD + i}, v{vD + i}, v{vD + 4 + i}, s[76:77]")
    k.tag4(vD)
    A("s_mov_b64 exec, s[74:75]")
    A(f"global_store_dwordx4 v{vP4a}, {vr(vD, 4)}, s[42:43] offset:{B_P4}")
    A("s_mov_b64 exec, 1")
    A(f"global_store_byte v{vHs4}, v{vHB}, s[14:15] offset:512")
    A("s_mov_b64 exec, -1")
    A.stamp(10)
    for i in range(4):
        A(f"v_mov_b32 v{vZ + i}, 0")
    k.tag4(vZ)
    A("s_lshl_b32 s8, s3, 4")
    A(f"v_mov_b32 v{t7}, s8")
    if o["hint4"]:
        k.hint_wait(vHr4, 512, t4)
    A.stamp(4, 1)
    k.poll([f"global_load_dwordx4 {vr(vG + 4, 4)}, v{vH4}, s[44:45] offset:{B_ST} sc1",
            f"global_load_dwordx4 {vr(vG, 4)}, v{vH4 + 1}, s[44:45] offset:{B_P4} sc1"],
           [vG + 4, vG], vAcc, True)
    A.stamp(11)
    sq, sm = vG + 4, vG + 5
    for md in ("quad_perm:[1,0,3,2]", "quad_perm:[2,3,0,1]", "row_half_mirror"):
        for r_ in (sm, sq):
            A(f"v_add_f32_dpp v{r_}, v{r_}, v{r_} {md} {DPPM}")
    k.ln_scalars(sm, sq)
    A(f"v_sub_f32 v{sm}, 0, v{sm}")
    A(f"v_cndmask_b32 v{sm}, v{sm}, 1.0, s[70:71]")
    for i in range(4):
        A(f"v_mul_f32 v{vG + i}, v{sm}, v{vG + i}")
    A(f"v_cndmask_b32 v{t0}, v{vG + 1}, v{vG}, s[66:67]")
    A(f"v_cndmask_b32 v{t1}, v{vG + 3}, v{vG + 2}, s[66:67]")
    A(f"v_cndmask_b32 v{t2}, v{vG}, v{vG + 1}, s[66:67]")
    A(f"v_cndmask_b32 v{t3}, v{vG + 2}, v{vG + 3}, s[66:67]")
    A(f"v_add_f32_dpp v{t2}, v{t0}, v{t2} quad_perm:[1,0,3,2] {DPPM}")
    A(f"v_add_f32_dpp v{t3}, v{t1}, v{t3} quad_perm:[1,0,3,2] {DPPM}")
    A(f"v_cndmask_b32 v{t0}, v{t3}, v{t2}, s[76:77]")
    A(f"v_cndmask_b32 v{t1}, v{t2}, v{t3}, s[76:77]")
    A(f"v_add_f32_dpp v{t1}, v{t0}, v{t1} quad_perm:[2,3,0,1] {DPPM}")
    A(f"v_add_f32_dpp v{t1}, v{t1}, v{t1} row_ror:4 {DPPM}")
    A(f"v_add_f32_dpp v{t1}, v{t1}, v{t1} row_ror:8 {DPPM}")
    A(f"v_mul_f32 v{t1}, v{sq}, v{t1}")
    k.round_bf16(t1, t1)
    A(f"v_mov_b32 v{t0}, v{t1}")
    A(f"v_permlane16_swap_b32 v{t1}, v{t0}")
    A(f"s_mov_b32 s8, {LOG2E | 0x80000000:#x}")
    A(f"v_mul_f32 v{t2}, s8, v{t1}")
    A(f"v_exp_f32 v{t2}, v{t2}")
    A(f"v_add_f32 v{t2}, 1.0, v{t2}")
    A(f"v_rcp_f32 v{t2}, v{t2}")
    A(f"v_mul_f32 v{t2}, v{t2}, v{t1}")
    k.round_bf16(t2, t2)
    A(f"v_mul_f32 v{t2}, v{t2}, v{t0}")
    A(f"v_cvt_pk_bf16_f32 v{t2}, v{t2}, v{t2}")
    A("s_mov_b32 exec_lo, 15")
    A("s_mov_b32 exec_hi, 15")
    A(f"ds_write_b16 v{vHHw}, v{t2}")
    k.sync(F_HH, t4, [f"ds_read_b128 {vr(vB, 4)}, v{vHHr}"], o["bar"] & 2)
    for u in range(2):
        A(f"v_mfma_f32_16x16x32_bf16 {vr(vD + 4 * u, 4)}, {vr(vW2 + 4 * u, 4)}, {vr(vB, 4)}, 0")
    A("s_mov_b64 exec, 1")
    A(f"global_store_dwordx4 v{t7}, {vr(vZ, 4)}, s[42:43] offset:{B_ACK}")
    A("s_mov_b64 exec, s[0:1]")
    for i in range(4):
        A(f"v_cndmask_b32 v{vD + i}, v{vD + i}, v{vD + 4 + i}, s[66:67]")
    k.tag4(vD)
    A(f"global_store_dwordx4 v{vP5a}, {vr(vD, 4)}, s[54:55] sc1")
    A("s_mov_b64 exec, -1")
    A.stamp(5, 1)
    if o.get("dirty", 0):
        A("s_lshl_b32 s8, s2, 2")
        A("s_add_u32 s8, s8, s3")
        A(f"s_mul_i32 s8, s8, {o['dirty'] * 1024}")
        A("s_add_u32 s8, s8, 0x1000000")
        A(f"v_add_u32 v{t0}, s8, v{vL16}")
        for i in range(o["dirty"]):
            A(f"global_store_dwordx4 v{t0}, {vr(vZ, 4)}, s[38:39]")
            A(f"v_add_u32 v{t0}, 1024, v{t0}")
    A("s_cmp_lg_u32 s3, 0")
    A("s_cbranch_scc1 L_stamp_end")
    A(f"s_mul_i32 s8, s9, {2 * BS}")
    A(f"v_lshrrev_b32 v{t0}, 3, v{vLane}")
    A(f"v_and_b32 v{t0}, 3, v{t0}")
    A(f"v_lshlrev_b32 v{t0}, 3, v{t0}")
    A(f"v_bfe_u32 v{t1}, v{vLane}, 2, 1")
    A(f"v_add_u32 v{t0}, v{t0}, v{t1}")
    A(f"v_mul_u32_u24 v{t0}, {BS}, v{t0}")
    A(f"v_and_b32 v{t1}, 3, v{vLane}")
    A(f"v_lshl_add_u32 v{t0}, v{t1}, 4, v{t0}")
    A(f"v_add_u32 v{t0}, s8, v{t0}")
    A("s_mov_b32 exec_hi, 0")
    A("s_mov_b32 s61, 0")
    k.label("L_ack")
    A(f"global_load_dwordx4 {vr(vG, 4)}, v{t0}, s[40:41] offset:{B_ACK} sc1")
    A("s_waitcnt vmcnt(0)")
    k.check(vAcc, [vG])
    A(f"v_cmp_ne_u32 vcc, 0, v{vAcc}")
    A("s_cbranch_vccz L_stamp_end0")
    A("s_sleep 2")
    A("s_add_u32 s61, s61, 1")
    A(f"s_cmp_lt_u32 s61, {POLL_LIMIT}")
    A("s_cbranch_scc1 L_ack")
    A("s_call_b64 s[64:65], L_panic")
    A("s_branch L_stamp_end0")

    k.label("L_final")
    A("s_lshr_b32 s8, s5, 2")
    A("s_lshl_b32 s8, s8, 14")
    A("s_and_b32 s10, s5, 3")
    A("s_lshl_b32 s10, s10, 7")
    A("s_add_u32 s8, s8, s10")
    A("s_lshl_b32 s10, s3, 4")
    A("s_add_u32 s8, s8, s10")
    A(f"v_lshlrev_b32 v{t1}, 9, v{vLane}")
    A(f"v_add_u32 v{t1}, s8, v{t1}")
    for i in range(8):
        A(f"v_mov_b32 v{vG + i}, 0")
    if o["L7"]:
        A(f"s_sleep {o['L7']}")
    A("s_mov_b32 exec_hi, 0")
    k.poll([f"global_load_dwordx4 {vr(vG, 4)}, v{t1}, s[52:53] sc1"], [vG], vAcc, False)
    A("s_mov_b64 exec, -1")
    A.stamp(9)
    k.reduce64_to_lane63(list(range(vG, vG + 4)))
    for i in range(2):
        k.round_bf16_pair(vG + 2 * i, vG + 2 * i + 1, vG + 2 * i, vG + 2 * i + 1, t0)
    for i in range(4):
        A(f"v_add_f32 v{vF + i}, v{vG + i}, v{vXF + i}")
    for i in range(2):
        k.round_bf16_pair(vF + 2 * i, vF + 2 * i + 1, vF + 2 * i, vF + 2 * i + 1, t0)
    A("s_mul_i32 s8, s9, 28672")
    A("s_lshl_b32 s10, s7, 6")
    A("s_add_u32 s8, s8, s10")
    A("s_lshl_b32 s10, s3, 4")
    A("s_add_u32 s8, s8, s10")
    A(f"v_lshlrev_b32 v{t1}, 9, v{vLane}")
    A(f"v_add_u32 v{t1}, s8, v{t1}")
    A("s_lshl_b32 s8, s5, 5")
    A("s_lshl_b32 s10, s3, 3")
    A("s_add_u32 s8, s8, s10")
    A(f"v_mov_b32 v{t2}, s8")
    A("s_mov_b32 exec_hi, 0x00ffffff")
    def h5_issue(s):
        A(f"global_load_dwordx4 {vr(vRing + 4 * s, 4)}, v{t1}, s[54:55] sc1")

    def h5_ok(s):
        for i in range(4):
            A(f"v_mov_b32 v{vG + 4 + i}, v{vRing + 4 * s + i}")
    if o["L5"]:
        A(f"s_sleep {o['L5']}")
    k.ring_poll("h5", o["N3"], h5_issue, lambda s: [vRing + 4 * s], 1, vAcc, False, o["G3"], h5_ok, pace=o["P5S"])
    A("s_mov_b64 exec, -1")
    A.stamp(11)
    k.reduce64_to_lane63(list(range(vG + 4, vG + 8)))
    for i in range(2):
        k.round_bf16_pair(vG + 4 + 2 * i, vG + 5 + 2 * i, vG + 4 + 2 * i, vG + 5 + 2 * i, t0 + i)
    for i in range(4):
        A(f"v_add_f32 v{vF + i}, v{vG + 4 + i}, v{vF + i}")
    if o.get("errinj", 0):
        import struct
        bits = struct.unpack("<I", struct.pack("<f", o["errinj"] / 1000.0))[0]
        A("s_or_b32 s8, s5, s3")
        A("s_cmp_eq_u32 s8, 0")
        A(f"s_cselect_b32 s8, {bits:#x}, 0")
        A(f"v_add_f32 v{vF}, s8, v{vF}")
    for i in range(2):
        A(f"v_cvt_pk_bf16_f32 v{vX + i}, v{vF + 2 * i}, v{vF + 2 * i + 1}")
    A("s_mov_b32 exec_lo, 0")
    A("s_mov_b32 exec_hi, 0x80000000")
    A(f"global_store_dwordx2 v{t2}, {vr(vX, 2)}, s[34:35]")
    A("s_or_b32 s8, s5, s3")
    A("s_cmp_lg_u32 s8, 0")
    A("s_cbranch_scc1 L_stamp_end0")
    A(f"v_mov_b32 v{t0}, 0")
    A(f"v_mov_b32 v{t1}, s13")
    A(f"global_store_dword v{t0}, v{t1}, s[38:39]")
    k.label("L_stamp_end0")
    A("s_mov_b64 exec, -1")
    k.label("L_stamp_end")
    if o["exp"]:
        A("s_cmp_lg_u32 s2, 7")
        A("s_cbranch_scc1 L_end")
        A("s_cmp_lg_u32 s3, 0")
        A("s_cbranch_scc1 L_end")
        if o["exp"] == 1:
            A("s_memrealtime s[98:99]")
            A("s_waitcnt lgkmcnt(0)")
            A("s_sub_u32 s8, s98, s96")
            A("s_mul_i32 s8, s8, 10")
            k.label("L_exp")
            A("s_memrealtime s[10:11]")
            A("s_waitcnt lgkmcnt(0)")
            A("s_sub_u32 s10, s10, s98")
            A("s_cmp_lt_u32 s10, s8")
            A("s_cbranch_scc1 L_exp")
        else:
            A("s_memtime s[98:99]")
            k.label("L_exp")
            A("s_memtime s[10:11]")
            A("s_waitcnt lgkmcnt(0)")
            A("s_sub_u32 s10, s10, s98")
            A("s_cmp_lt_u32 s10, 240000")
            A("s_cbranch_scc1 L_exp")
    if dbgtime:
        A("s_cmp_lg_u32 s4, 7")
        A("s_cbranch_scc1 L_end")
        A("s_and_b32 s8, s5, 3")
        A("s_or_b32 s8, s8, s3")
        A("s_cmp_lg_u32 s8, 0")
        A("s_cbranch_scc1 L_end")
        A("s_memrealtime s[98:99]")
        A("s_waitcnt lgkmcnt(0)")
        A("s_not_b32 s96, s96")
        A(f"v_mov_b32 v{t0}, 0")
        A(f"v_mov_b32 v{t1}, s96")
        A(f"v_mov_b32 v{t2}, s98")
        A("s_mov_b64 exec, 1")
        A(f"global_atomic_umax v{t0}, v{t1}, s[36:37]")
        A(f"global_atomic_umax v{t0}, v{t2}, s[36:37] offset:4")
    if stamps:
        A("s_memrealtime s[76:77]")
        A("s_waitcnt lgkmcnt(0)")
        A("s_lshl_b32 s8, s2, 3")
        A("s_add_u32 s8, s8, s3")
        A("s_lshl_b32 s8, s8, 6")
        A(f"s_add_u32 s8, s8, {WS_STAMP}")
        A(f"v_mov_b32 v{t0}, s8")
        for i in range(12):
            A(f"v_mov_b32 v{vG + i}, {'s%d' % (78 + 2 * i) if i in stamps else 0}")
        A(f"v_mov_b32 v{vG + 12}, s76")
        A("s_mov_b64 exec, 1")
        for q in range(4):
            A(f"global_store_dwordx4 v{t0}, {vr(vG + 4 * q, 4)}, s[38:39] offset:{q * 16}")
        A("s_mov_b64 exec, 0xffff")
        A(f"s_add_u32 s8, s8, {0x40000}")
        A(f"v_add_u32 v{t0}, s8, v{vL4}")
        A(f"global_store_dword v{t0}, v{k.vCnt}, s[38:39]")
    A("s_endpgm")

    k.label("L_loader")
    a0, a1, a2, a3, b0, b1, cwq, cwo, cw13, d0, d1, b2, b3 = [vG + i for i in (0, 1, 2, 3, 4, 5, 6, 7, 8, 9, 10, 11, 23)]
    A(f"v_and_b32 v{t0}, 7, v{vLane}")
    A(f"v_lshlrev_b32 v{t1}, 1, v{vQd}")
    A(f"v_xor_b32 v{t0}, v{t0}, v{t1}")
    A(f"v_lshlrev_b32 v{t0}, 4, v{t0}")
    A(f"v_bfe_u32 v{t2}, v{vLane}, 3, 2")
    A(f"v_lshrrev_b32 v{t3}, 5, v{vLane}")
    A(f"v_lshl_add_u32 v{t2}, v{t3}, 3, v{t2}")
    A(f"v_lshl_add_u32 v{cwq}, v{t2}, 13, v{t0}")
    A("s_lshr_b32 s7, s5, 3")
    A("s_and_b32 s8, s5, 7")
    A("s_lshl_b32 s9, s7, 20")
    A("s_lshl_b32 s10, s4, 10")
    A("s_add_u32 s9, s9, s10")
    A("s_lshl_b32 s10, s8, 7")
    A("s_add_u32 s9, s9, s10")
    if o["earlyq"]:
        A("s_waitcnt lgkmcnt(0)")
    A("s_add_u32 s52, s22, s9"); A("s_addc_u32 s53, s23, 0")

    pre_rest = []
    P = pre_rest.append
    P(f"v_lshrrev_b32 v{t1}, 3, v{vLane}")
    P(f"v_lshl_add_u32 v{cwo}, v{t1}, 10, v{t0}")
    P(f"v_mul_u32_u24 v{cw13}, 3584, v{t1}")
    P(f"v_add_u32 v{cw13}, v{cw13}, v{t0}")
    P(f"v_xor_b32 v{t0}, v{vR}, v{vQd}")
    P(f"v_lshlrev_b32 v{t1}, 8, v{vQd}")
    P(f"v_lshl_add_u32 v{a0}, v{t0}, 4, v{t1}")
    P(f"v_xor_b32 v{a1}, 64, v{a0}")
    P(f"v_xor_b32 v{a2}, 128, v{a0}")
    P(f"v_xor_b32 v{a3}, 192, v{a0}")
    P(f"v_lshlrev_b32 v{t0}, 1, v{vQd}")
    P(f"v_xor_b32 v{t0}, v{vR}, v{t0}")
    P(f"v_lshl_add_u32 v{b0}, v{t0}, 4, v{t1}")
    P(f"v_xor_b32 v{b1}, 128, v{b0}")
    P(f"v_lshlrev_b32 v{t1}, 10, v{vQd}")
    P(f"v_lshl_add_u32 v{d0}, v{t0}, 4, v{t1}")
    P(f"v_xor_b32 v{d1}, 128, v{d0}")
    if o["ilv"]:
        dl = {1: [0, 31744, 2 * 31744, 3 * 31744], 2: [0, 0, 0, 0], 3: [0, 0, 65536 - 2048, 65536 - 2048]}[o["ilv"]]
        P(f"v_add_u32 v{b2}, {dl[2]}, v{b0}")
        P(f"v_add_u32 v{b3}, {dl[3]}, v{b1}")
        P(f"v_add_u32 v{b1}, {dl[1]}, v{b1}")
        for i_, r_ in enumerate((a1, a2, a3)):
            P(f"v_add_u32 v{r_}, {dl[i_ + 1]}, v{r_}")
        P(f"s_mul_i32 s12, s2, {o['rot']}")
    P("s_lshl_b32 s6, s4, 24")
    P(f"s_lshl_b32 s9, s5, {(15, 10, 12, 11)[o['ilv']]}")
    P("s_add_u32 s6, s6, s9")
    P(f"s_add_u32 s6, s6, {61440 * 256}")
    P("s_add_u32 s40, s18, s6"); P("s_addc_u32 s41, s19, 0")
    P("s_add_u32 s42, s20, s6"); P("s_addc_u32 s43, s21, 0")
    P("s_lshl_b32 s6, s4, 2"); P("s_add_u32 s6, s6, s7")
    P("s_lshl_b32 s9, s6, 17"); P("s_lshl_b32 s10, s8, 7"); P("s_add_u32 s9, s9, s10")
    P("s_add_u32 s44, s24, s9"); P("s_addc_u32 s45, s25, 0")
    P(f"s_mul_i32 s9, s8, {64 * 3584}"); P("s_lshl_b32 s10, s6, 7"); P("s_add_u32 s9, s9, s10")
    P("s_add_u32 s46, s28, s9"); P("s_addc_u32 s47, s29, 0")
    P("s_add_u32 s48, s30, s9"); P("s_addc_u32 s49, s31, 0")
    P("s_lshl_b32 s9, s4, 18"); P("s_lshl_b32 s10, s8, 15"); P("s_add_u32 s9, s9, s10")
    P("s_lshl_b32 s10, s7, 8"); P("s_add_u32 s9, s9, s10")
    P("s_add_u32 s50, s32, s9"); P("s_addc_u32 s51, s33, 0")

    def seg_ops(name):
        ops = []
        if name == "q":
            prevk = 0
            for i in range(16):
                krow = (i >> 2) * 32 + (0, 16, 4, 20)[i & 3]
                pre = [f"s_mov_b32 m0, {WQL + i * 1024}"]
                d = (krow - prevk) * 8192
                if d > 0:
                    pre += [f"s_add_u32 s52, s52, {d}", "s_addc_u32 s53, s53, 0"]
                elif d < 0:
                    pre += [f"s_sub_u32 s52, s52, {-d}", "s_subb_u32 s53, s53, 0"]
                prevk = krow
                ops.append(pre + [f"global_load_lds_dwordx4 v{cwq}, s[52:53] nt"])
            return ops, F_WQ
        if name in "kv":
            base, sreg, regs, fl = (KL, 40, (a0, a1, a2, a3), F_K) if name == "k" else (VL, 42, (b0, b1, b0, b1), F_V)
            for i in range(32):
                pre = []
                if o["ilv"]:
                    regs = (a0, a1, a2, a3) if name == "k" else (b0, b1, b2, b3)
                    if i % 4 == 0:
                        pre += [f"s_add_u32 s13, s12, {i // 4}", "s_and_b32 s13, s13, 7", "s_lshl_b32 s6, s13, 12",
                                f"s_add_u32 m0, s6, {base}", "s_lshl_b32 s6, s13, 17",
                                f"s_add_u32 s60, s{sreg}, s6", f"s_addc_u32 s61, s{sreg + 1}, 0"]
                    ops.append(pre + [f"global_load_lds_dwordx4 v{regs[i & 3]}, s[60:61] offset:{(i & 3) * 1024} nt"])
                    continue
                if i % 4 == 0:
                    pre += [f"s_mov_b32 m0, {base + i * 1024}"]
                    if i:
                        pre += [f"s_add_u32 s{sreg}, s{sreg}, 4096", f"s_addc_u32 s{sreg + 1}, s{sreg + 1}, 0"]
                ops.append(pre + [f"global_load_lds_dwordx4 v{regs[i & 3]}, s[{sreg}:{sreg + 1}] offset:{(i & 3) * 1024} nt"])
            return ops, fl
        if name == "o":
            for i in range(16):
                pre = [f"s_mov_b32 m0, {WOL + i * 1024}"]
                if i:
                    pre += ["s_add_u32 s44, s44, 8192", "s_addc_u32 s45, s45, 0"]
                ops.append(pre + [f"global_load_lds_dwordx4 v{cwo}, s[44:45] nt"])
            return ops, F_WO
        if name == "a":
            for base, sreg in ((W1L, 46), (W3L, 48)):
                for i in range(8):
                    pre = [f"s_mov_b32 m0, {base + i * 1024}"]
                    if i:
                        pre += [f"s_add_u32 s{sreg}, s{sreg}, {8 * 3584}", f"s_addc_u32 s{sreg + 1}, s{sreg + 1}, 0"]
                    ops.append(pre + [f"global_load_lds_dwordx4 v{cw13}, s[{sreg}:{sreg + 1}] nt"])
            return ops, F_W13
        if name == "b":
            for i in range(8):
                pre = [f"s_mov_b32 m0, {W2L + i * 1024}"]
                if i:
                    pre += ["s_add_u32 s50, s50, 4096", "s_addc_u32 s51, s51, 0"]
                ops.append(pre + [f"global_load_lds_dwordx4 v{(d0, d1)[i & 1]}, s[50:51] nt"])
            return ops, F_W2

    def emit_loader(order, start_n=0, pend=None, n=0):
        pend = list(pend or [])

        def drain():
            for (last, f) in list(pend):
                A(f"s_waitcnt vmcnt({n - 1 - last})")
                k.lds_signal(f)
            pend.clear()
        for name, D in order:
            if name == "G":
                drain()
                k.lds_wait(F_G2, 4, t4, sleep=1)
                continue
            ops, fl = seg_ops(name)
            Dspec = [int(x) for x in str(D).split(":")]
            for iop, op in enumerate(ops):
                D = Dspec[0] if len(Dspec) == 1 or iop < Dspec[1] else Dspec[2]
                if o["TZ"] and n == 16 + o["TX"] and (15, F_WQ) in pend:
                    A(f"s_waitcnt vmcnt({o['TX']})")
                    k.lds_signal(F_WQ)
                    pend.remove((15, F_WQ))
                if o["TZ"] and n < 16 + o["TZ"] and n >= 16 + o["TX"]:
                    sk = k.newlabel("tz")
                    A("s_cmp_ge_u32 s11, 4")
                    A(f"s_cbranch_scc1 {sk}")
                    A(f"s_waitcnt vmcnt({o['DS'] - 1})")
                    if (15, F_WQ) in pend and n - o["DS"] >= 15:
                        k.lds_signal(F_WQ)
                        pend.remove((15, F_WQ))
                    A(f"ds_read_b32 v{t4}, v{k.vFlag} offset:{F_G1}")
                    A("s_waitcnt lgkmcnt(0)")
                    A(f"v_readfirstlane_b32 s11, v{t4}")
                    k.label(sk)
                if n >= D:
                    A(f"s_waitcnt vmcnt({D - 1})")
                    for (last, f) in list(pend):
                        if last <= n - D:
                            k.lds_signal(f)
                            pend.remove((last, f))
                            if f == F_WQ and o["pgt"] == 2:
                                A("s_mov_b64 exec, 1")
                                A(f"global_load_dword v{vJunk}, v{t5}, s[54:55] nt")
                                A(f"global_load_dword v{vJunk}, v{t5}, s[58:59] nt")
                                A("s_mov_b64 exec, -1")
                                n += 2
                for s_ in op:
                    A(s_)
                n += 1
                if name == "v" and o["vq"] and iop % 8 == 7:
                    pend.append((n - 1, fl))
            if name == "v" and o["vq"]:
                pass
            else:
                pend.append((n - 1, fl))
        drain()

    order = []
    for tok in o["order"].split(","):
        order.append((tok[0], tok[1:] or "0"))
    if o["ctail"]:
        order = [x for x in order if x[0] not in "abG"]
    assert order[0][0] == "q"
    ops, fl = seg_ops("q")
    for op in ops:
        for s_ in op:
            A(s_)
    if o["earlyq"]:
        A("s_barrier")
    for s_ in pre_rest:
        A(s_)
    A("s_mov_b32 s11, 0")
    npt = 0
    if o["pgt"] == 2:
        A("s_lshl_b32 s6, s4, 24")
        A("s_lshl_b32 s9, s8, 17")
        A("s_add_u32 s6, s6, s9")
        A(f"s_add_u32 s6, s6, {61440 * 256}")
        A("s_add_u32 s54, s20, s6"); A("s_addc_u32 s55, s21, 0")
        A("s_mov_b32 s58, s34"); A("s_mov_b32 s59, s35")
        A("s_cmp_eq_u32 s7, 1")
        A("s_cselect_b32 s54, s44, s54"); A("s_cselect_b32 s55, s45, s55")
        A("s_cmp_eq_u32 s4, 7")
        A("s_cbranch_scc1 L_pg7")
        A("s_cmp_eq_u32 s7, 1")
        A("s_cselect_b32 s58, s50, s54"); A("s_cselect_b32 s59, s51, s55")
        A("s_cmp_eq_u32 s7, 2")
        A("s_cselect_b32 s54, s46, s54"); A("s_cselect_b32 s55, s47, s55")
        A("s_cmp_eq_u32 s7, 3")
        A("s_cselect_b32 s54, s48, s54"); A("s_cselect_b32 s55, s49, s55")
        k.label("L_pg7")
        A(f"v_mov_b32 v{t5}, 0")
    if o["pgt"] == 1:
        A(f"v_mov_b32 v{t5}, 0")
        A(f"v_mov_b32 v{t6}, {63 * 3584}")
        A("s_mov_b64 exec, 1")
        for sreg in (40, 42, 44):
            A(f"global_load_dword v{vJunk}, v{t5}, s[{sreg}:{sreg + 1}] nt")
        A("s_cmp_eq_u32 s4, 7")
        A("s_cselect_b32 s46, s40, s46"); A("s_cselect_b32 s47, s41, s47")
        A("s_cselect_b32 s48, s40, s48"); A("s_cselect_b32 s49, s41, s49")
        A("s_cselect_b32 s50, s40, s50"); A("s_cselect_b32 s51, s41, s51")
        for sreg in (46, 48, 50):
            A(f"global_load_dword v{vJunk}, v{t5}, s[{sreg}:{sreg + 1}] nt")
        A("s_mov_b64 exec, -1")
        npt = 6
    A("s_cmp_eq_u32 s4, 7")
    A("s_cbranch_scc1 L_loader7")
    k.in_loader = True
    emit_loader(order[1:], pend=[(15, F_WQ)], n=16 + npt)
    if stamps:
        A("s_waitcnt lgkmcnt(0)")
        A("s_lshl_b32 s8, s2, 3")
        A("s_add_u32 s8, s8, 4")
        A("s_lshl_b32 s8, s8, 6")
        A(f"s_add_u32 s8, s8, {WS_STAMP}")
        A(f"v_mov_b32 v{t0}, s8")
        for i in range(8):
            A(f"v_mov_b32 v{vG + 12 + i}, s{78 + 2 * i}")
        A("s_mov_b64 exec, 1")
        for q in range(2):
            A(f"global_store_dwordx4 v{t0}, {vr(vG + 12 + 4 * q, 4)}, s[38:39] offset:{q * 16}")
    A("s_endpgm")
    A(";;LOADER7")
    k.label("L_loader7")
    emit_loader([x for x in order[1:] if x[0] not in "abG"], pend=[(15, F_WQ)], n=16 + npt)
    k.label("L_end")
    A("s_endpgm")

    k.label("L_panic")
    A("s_mov_b64 s[100:101], exec")
    A("s_mov_b64 exec, -1")
    for i in range(4):
        A(f"global_load_dwordx4 {vr(vPT, 4)}, v{vL16}, s[42:43] offset:{i * 1024} sc1")
        A("s_waitcnt vmcnt(0)")
        A(f"global_store_dwordx4 v{vL16}, {vr(vPT, 4)}, s[48:49] offset:{i * 1024} sc1")
        A("s_waitcnt vmcnt(0)")
    A("s_xor_b32 s50, s40, s46")
    A("s_xor_b32 s51, s41, s47")
    A("s_add_u32 s62, s62, 1")
    A(f"s_cmp_ge_u32 s62, {PANIC_MAX}")
    A("s_cbranch_scc1 L_end")
    A("s_mov_b64 exec, s[100:101]")
    A("s_setpc_b64 s[64:65]")

    L = list(k.L)
    i0 = L.index("L_loader:"); i1 = L.index("    ;;LOADER7")
    ld = L[i0:i1]
    L = L[:i0] + L[i1:]
    ih = L.index("    ;;LOADER_HERE")
    L = L[:ih] + ld + L[ih + 1:]
    body = fix_hazards(L)
    body.append(f"    .fill (({NAME} + {CODE_PF_BYTES + 256} - .) >> 2) * ((({NAME} + {CODE_PF_BYTES + 256} - .) >> 63) + 1), 4, 0xbf810000")

    nv = (ra.next + 7) // 8 * 8
    tail = []
    tail.append('.section .rodata,"a"')
    tail.append(".p2align 6")
    tail.append(f".amdhsa_kernel {NAME}")
    tail.append(f"  .amdhsa_next_free_vgpr {nv}")
    tail.append("  .amdhsa_next_free_sgpr 102")
    tail.append(f"  .amdhsa_accum_offset {nv}")
    tail.append("  .amdhsa_group_segment_fixed_size 0")
    tail.append("  .amdhsa_kernarg_size 96")
    tail.append("  .amdhsa_user_sgpr_count 2")
    tail.append("  .amdhsa_user_sgpr_kernarg_segment_ptr 1")
    tail.append("  .amdhsa_system_sgpr_workgroup_id_x 1")
    tail.append(".end_amdhsa_kernel")
    return "\n".join(hdr + body + tail) + "\n"


if __name__ == "__main__":
    import argparse
    ap = argparse.ArgumentParser()
    ap.add_argument("-o", default="sequential_preLN__sliding_block_cached__glu_gated_swiglu__decode.s")
    ap.add_argument("--stamps", default="")
    ap.add_argument("--dbgtime", action="store_true")
    ap.add_argument("--opt", action="append", default=[])
    a = ap.parse_args()
    st = [int(x) for x in a.stamps.split(",")] if a.stamps else None
    opts = {}
    for kv in a.opt:
        kk, vv = kv.split("=")
        opts[kk] = int(vv) if vv.lstrip("-").isdigit() else vv
    open(a.o, "w").write(gen(st, a.dbgtime, **opts))
```

```python
import sys, os
sys.path.insert(0, os.path.dirname(os.path.abspath(__file__)))
from asmlib import fix_hazards, RegAlloc

NAME = "sequential_preLN__sliding_block_cached__glu_gated_swiglu__decode_kernel"

KL = 0
VL = 32768
WQL = 65536
WOL = 81920
W1L = 98304
W3L = 106496
W2L = 114688
XN = 122880
QF = 126976
PF = 131072
MX = 135168
LS = 136192
OF = 137216
HF = 137472
ONES = 137600
FLAGS = 137728
HH = 137984
LDS_BYTES = 138240
F_WQ, F_Q, F_M, F_P, F_O, F_H, F_K, F_V, F_WO, F_W13, F_W2, F_G2, F_HH, F_G1 = [4 * i for i in range(14)]

WS_STAMP = 0x10000
BS = 4224
WS_A = 0x100000
WS_B = 0x300000
WS_P3 = 0x500000
WS_P5 = 0x520000
WS_HINT = 0x540000
B_P1 = 0
B_ML = 256
B_ST = 384
B_ACK = 512
B_P4 = 1024
B_P2 = 2048

LOG2E = 0x3FB8AA3B
SCALE = 0x3DB504F3
EPS = 0x3727C5AC
INV512 = 0x3B000000

POLL_LIMIT = 512
HINT_LIMIT = 400
PANIC_MAX = 4000
LDS_SPIN_MAX = 1 << 24
CODE_PF_BYTES = 17408


def vr(b, n):
    return f"v[{b}:{b + n - 1}]" if n > 1 else f"v{b}"


def sr(b, n=2):
    return f"s[{b}:{b + n - 1}]"


DPPM = "row_mask:0xf bank_mask:0xf"


class K:
    def __init__(self, stamps, opts):
        self.L = []
        self.stamps = stamps
        self.o = opts
        self.uid = 0
        self.ncnt = 0

    def __call__(self, s):
        self.L.append("    " + s)

    def label(self, s):
        self.L.append(s + ":")

    def newlabel(self, p):
        self.uid += 1
        return f"L_{p}_{self.uid}"

    def stamp(self, idx, alt=0):
        if self.o.get("alt", 0) != alt and idx in (1, 2, 4, 5):
            return
        if self.stamps and idx in self.stamps:
            self(f"s_memrealtime {sr(78 + 2 * idx)}")

    def count(self):
        if self.stamps:
            self(f"v_writelane_b32 v{self.vCnt}, s61, {self.ncnt}")
            self.ncnt += 1

    def lds_wait(self, off, target, vtmp, extra_reads=(), sleep=None):
        lp = self.newlabel("lw")
        ok = self.newlabel("lwok")
        if sleep is None:
            sleep = self.o["lsleep"]
        ff = self.o["flagfirst"] and len(extra_reads) > 2
        if not ff:
            self(f"ds_read_b32 v{vtmp}, v{self.vFlag} offset:{off}")
            for r in extra_reads:
                self(r)
            self("s_waitcnt lgkmcnt(0)")
            self(f"v_cmp_le_u32 vcc, {target}, v{vtmp}")
            self(f"s_cbranch_vccnz {ok}")
        self(f"s_mov_b32 s63, {LDS_SPIN_MAX}")
        self.label(lp)
        if sleep and not ff:
            self(f"s_sleep {sleep}")
        self(f"ds_read_b32 v{vtmp}, v{self.vFlag} offset:{off}")
        self("s_sub_u32 s63, s63, 1")
        self("s_cbranch_scc1 L_end")
        self("s_waitcnt lgkmcnt(0)")
        self(f"v_cmp_le_u32 vcc, {target}, v{vtmp}")
        self(f"s_cbranch_vccz {lp}")
        if extra_reads:
            for r in extra_reads:
                self(r)
            self("s_waitcnt lgkmcnt(0)")
        self.label(ok)

    def sync(self, off, vtmp, reads, bar, mid=None):
        if bar:
            self("s_mov_b64 exec, -1")
            self("s_waitcnt lgkmcnt(0)")
            self("s_barrier")
            for r in reads:
                self(r)
            if mid:
                mid()
            self("s_waitcnt lgkmcnt(0)")
        else:
            self.lds_signal(off)
            self.lds_wait(off, 4, vtmp, reads)

    def lds_signal(self, off):
        if self.stamps and getattr(self, "in_loader", False):
            idx = {F_WQ: 1, F_K: 2, F_V: 3, F_WO: 4, F_W13: 5, F_W2: 6}[off]
            self(f"s_memrealtime {sr(78 + 2 * idx)}")
        self("s_mov_b64 exec, 1")
        self(f"ds_add_u32 v{self.vFlag}, v{self.vOne} offset:{off}")
        self("s_mov_b64 exec, -1")

    def tag4(self, b):
        for i in range(4):
            self(f"v_perm_b32 v{b + i}, v{b + i}, s56, v{self.vSel + i}")

    def check(self, acc, grans):
        first = True
        for b in grans:
            if isinstance(b, tuple):
                self(f"v_msad_u8 v{acc}, v{b[0]}, s{57 + b[1]}, {'0' if first else 'v%d' % acc}")
                first = False
                continue
            for i in range(4):
                self(f"v_msad_u8 v{acc}, v{b + i}, s{57 + i}, {'0' if first else 'v%d' % acc}")
                first = False

    def retry_tail(self, lp, toggle):
        nx = self.newlabel("pollnx")
        self("s_add_u32 s61, s61, 1")
        self(f"s_and_b32 s6, s61, {POLL_LIMIT - 1}")
        self(f"s_cbranch_scc1 {nx}")
        self("s_call_b64 s[64:65], L_panic")
        self.label(nx)
        if toggle:
            self("s_xor_b32 s44, s44, s50")
            self("s_xor_b32 s45, s45, s51")
        self(f"s_branch {lp}")

    def poll(self, loads, grans, acc, toggle, hook=None, preissued=False, first_wait=0, fw_cond=False):
        wt = self.newlabel("pollw")
        lp = self.newlabel("poll")
        ok = self.newlabel("pollok")
        self("s_mov_b32 s61, 0")
        if not preissued:
            for l in loads:
                self(l)
        if hook:
            hook()
        if first_wait:
            if fw_cond:
                self("s_cmp_eq_u32 s4, 7")
                self(f"s_cbranch_scc1 {wt}")
            self(f"s_waitcnt vmcnt({first_wait})")
            self(f"s_branch {wt}2")
        self.label(wt)
        self("s_waitcnt vmcnt(0)")
        if first_wait:
            self.label(wt + "2")
        self.check(acc, grans)
        self(f"v_cmp_ne_u32 vcc, 0, v{acc}")
        self(f"s_cbranch_vccz {ok}")
        nx = self.newlabel("pollnx")
        self("s_add_u32 s61, s61, 1")
        self(f"s_and_b32 s6, s61, {POLL_LIMIT - 1}")
        self(f"s_cbranch_scc1 {nx}")
        self("s_call_b64 s[64:65], L_panic")
        self.label(nx)
        if toggle:
            self("s_xor_b32 s44, s44, s50")
            self("s_xor_b32 s45, s45, s51")
        if self.o.get("psleep", 0):
            self(f"s_sleep {self.o['psleep']}")
        for l in loads:
            self(l)
        self(f"s_branch {wt}")
        self.label(ok)
        self.count()

    def ring_poll(self, name, nsets, issue, grans, nld, acc, toggle, gap, on_ok, hook=None, filler=None, pace=0):
        issue(0)
        if filler:
            filler()
        for s_ in range(1, nsets):
            if gap and not (s_ == 1 and filler):
                self(f"s_sleep {gap}")
            issue(s_)
        if hook:
            hook()
        self("s_mov_b32 s61, 0")
        self.label(f"L_{name}")
        for s_ in range(nsets):
            self(f"s_waitcnt vmcnt({nld * (nsets - 1)})")
            self.check(acc, grans(s_))
            self(f"v_cmp_ne_u32 vcc, 0, v{acc}")
            self(f"s_cbranch_vccz L_{name}ok{s_}")
            if pace:
                self(f"s_sleep {pace}")
            issue(s_)
        self("s_add_u32 s61, s61, 1")
        self(f"s_and_b32 s6, s61, {POLL_LIMIT // 4 - 1}")
        self(f"s_cbranch_scc1 L_{name}nx")
        self("s_call_b64 s[64:65], L_panic")
        self.label(f"L_{name}nx")
        if toggle:
            self("s_xor_b32 s44, s44, s50")
            self("s_xor_b32 s45, s45, s51")
        self(f"s_branch L_{name}")
        for s_ in range(nsets):
            self.label(f"L_{name}ok{s_}")
            on_ok(s_)
            if s_ < nsets - 1:
                self(f"s_branch L_{name}done")
        self.label(f"L_{name}done")
        self.count()
        self("s_nop 1")

    def hint_ring(self, name, vaddr, off, vregs, nlanes_mask, filler=None, gap=None):
        n = len(vregs)
        self(nlanes_mask)
        self(f"global_load_dword v{vregs[0]}, v{vaddr}, s[14:15] offset:{off} sc1")
        if filler:
            self("s_mov_b64 exec, -1")
            filler()
            self(nlanes_mask)
        for i in range(1, n):
            self(f"s_sleep {self.o['HGAP'] if gap is None else gap}")
            self(f"global_load_dword v{vregs[i]}, v{vaddr}, s[14:15] offset:{off} sc1")
        self(f"s_mov_b32 s61, {HINT_LIMIT // n}")
        self.label(f"L_{name}")
        for i in range(n):
            self(f"s_waitcnt vmcnt({n - 1})")
            self(f"v_cmp_ne_u32 vcc, s12, v{vregs[i]}")
            self(f"s_cbranch_vccz L_{name}ok")
            self(f"global_load_dword v{vregs[i]}, v{vaddr}, s[14:15] offset:{off} sc1")
        self("s_sub_u32 s61, s61, 1")
        self(f"s_cbranch_scc0 L_{name}")
        self.label(f"L_{name}ok")
        self.count()
        self("s_mov_b64 exec, -1")

    def hint_wait(self, vaddr, off, vtmp):
        lp = self.newlabel("hint")
        ok = self.newlabel("hintok")
        self(f"s_mov_b32 s61, {HINT_LIMIT}")
        self("s_mov_b64 exec, 0xff")
        self.label(lp)
        self(f"global_load_dword v{vtmp}, v{vaddr}, s[14:15] offset:{off} sc1")
        self("s_waitcnt vmcnt(0)")
        self(f"v_cmp_ne_u32 vcc, s12, v{vtmp}")
        self(f"s_cbranch_vccz {ok}")
        if self.o.get("hsleep", 0):
            self(f"s_sleep {self.o['hsleep']}")
        self("s_sub_u32 s61, s61, 1")
        self(f"s_cbranch_scc0 {lp}")
        self.label(ok)
        self.count()
        self("s_mov_b64 exec, -1")

    def allreduce16(self, op, regs, steps=(1, 2, 4, 8)):
        for st in steps:
            for r in regs:
                self(f"{op}_dpp v{r}, v{r}, v{r} row_ror:{st} {DPPM}")

    def reduce64_to_lane63(self, regs):
        self.allreduce16("v_add_f32", regs)
        for r in regs:
            self(f"v_add_f32_dpp v{r}, v{r}, v{r} row_bcast:15 row_mask:0xa bank_mask:0xf")
        for r in regs:
            self(f"v_add_f32_dpp v{r}, v{r}, v{r} row_bcast:31 row_mask:0xc bank_mask:0xf")

    def round_bf16(self, dst, src):
        self(f"v_cvt_pk_bf16_f32 v{dst}, v{src}, v{src}")
        self(f"v_and_b32 v{dst}, 0xffff0000, v{dst}")

    def round_bf16_pair(self, d0, d1, s0, s1, tmp):
        self(f"v_cvt_pk_bf16_f32 v{tmp}, v{s0}, v{s1}")
        self(f"v_lshlrev_b32 v{d0}, 16, v{tmp}")
        self(f"v_and_b32 v{d1}, 0xffff0000, v{tmp}")

    def ln_scalars(self, sm, sq):
        self(f"s_mov_b32 s8, {INV512:#x}")
        self(f"v_mul_f32 v{sm}, s8, v{sm}")
        self(f"v_mul_f32 v{sq}, s8, v{sq}")
        self(f"v_fma_f32 v{sq}, -v{sm}, v{sm}, v{sq}")
        self(f"v_max_f32 v{sq}, 0, v{sq}")
        self.round_bf16(sq, sq)
        self(f"v_add_f32 v{sq}, {EPS:#x}, v{sq}")
        self.round_bf16(sq, sq)
        self(f"v_sqrt_f32 v{sq}, v{sq}")
        self.round_bf16(sm, sm)
        self.round_bf16(sq, sq)
        self(f"v_rcp_f32 v{sq}, v{sq}")


def gen(stamps=None, dbgtime=False, **opts):
    o = dict(NP=6, GAP=7, pf=1, order="q0,k16,v32,o16,a16,b16", ptc=0, ptp=0, ptx=0, ptf='nt', pff='', lsleep=0, PACE=8, ptl=0, exp=0, pgt=1, flagfirst=1, GAP0=4, wl=1, TZ=0, DS=8, TX=8, mlsep=1, NH2=0, L3=0, P3S=0, L5=0, L7=0, P5S=0, hint1=1, NH=6, HGAP=4, mlpre=1, pxf='', xf='', wsoff=0, hint2=1, hint4=1, N3=5, G3=4)
    o.update(hint4=0, N3=1, ptx=1, pxf="nt", L7=40, hint1=0, mlsep=0, NH2=3, NP=2, GAP0=4, GAP=10, PACE=4,
             order="q0,k16,v32,o32,G,a40,b40", pgt=0, lam=1, vq=0, ilv=1, rot=0, earlyq=1, bar=3, ctail=0, lin3=0, L3=16, L5=14)
    o.update(opts)
    k = K(stamps, o)
    A = k
    ra = RegAlloc(1, 256)
    V = ra.alloc
    NP = o["NP"]

    hdr = []
    for line in """Fused pre-LN sliding-window GQA decode attention + SwiGLU block in ONE persistent launch (generated by gen/gen11.py).
256 workgroups (one per CU, co-resident) x 5 waves: 4 compute waves + 1 LDS-DMA loader wave that streams
wq/K/V/wo/w1/w3/w2 tiles (nt loads) into LDS.  WG b: g = b&7 (kv head / hand-off group), j = b>>3.
Stages: LN1+q partial -> H1 -> scores/online-softmax/PV over 128 keys -> H2 -> combine + wo tile -> H3 ->
h, LN2 statistics, w1/w3 tile -> H4 -> SiLU*up, w2 tile -> H5 -> final reduce + residual (groups g==7).
Hand-offs go through d_ws as 16-byte granules whose low bytes carry a per-launch tag (epoch word in d_ws).
H1/H2/H4 use plain stores + sc1 loads (fast when the group shares an L2); any poll that times out copies the
workgroup's block to a write-through (sc1) mirror that all later polls also read, so the result is correct
under any workgroup placement.  H3/H5 always use sc1 stores/loads.  All spins are bounded.""".splitlines():
        hdr.append("; " + line)
    hdr.append(f"; @launch grid=(256,1,1) block=(320,1,1) lds={LDS_BYTES}")
    hdr.append('.amdgcn_target "amdgcn-amd-amdhsa--gfx950"')
    hdr.append(".text")
    hdr.append(f".globl {NAME}")
    hdr.append(".p2align 8")
    hdr.append(f".type {NAME},@function")
    hdr.append(f"{NAME}:")

    vLane = V("lane"); vR = V("r"); vQd = V("qd"); vL16 = V("l16")
    k.vFlag = V("flag"); k.vOne = V("one")
    t0 = V("t0"); t1 = V("t1"); t2 = V("t2"); t3 = V("t3"); t4 = V("t4"); t5 = V("t5"); t6 = V("t6"); t7 = V("t7")
    vJunk = V("junk")
    k.vCnt = V("cnt")
    vPT = V("panic", 4)

    A.stamp(0)
    if dbgtime or o["exp"]:
        A("s_memrealtime s[96:97]")
    A("s_cmp_ge_u32 s2, 256")
    A("s_cbranch_scc1 L_end")
    A("s_load_dwordx16 s[16:31], s[0:1], 0")
    A("s_load_dwordx8 s[32:39], s[0:1], 64")
    if o["pf"]:
        A("s_getpc_b64 s[14:15]")
        A(f"v_lshlrev_b32 v{t0}, 7, v0")
        A(f"v_min_u32 v{t0}, {CODE_PF_BYTES - 128}, v{t0}")
        A(f"global_load_dword v{vJunk}, v{t0}, s[14:15] {o['pff']}")
    A(f"v_lshrrev_b32 v{t0}, 6, v0")
    A(f"v_and_b32 v{vLane}, 63, v0")
    A(f"v_readfirstlane_b32 s3, v{t0}")
    A("s_and_b32 s4, s2, 7")
    A("s_lshr_b32 s5, s2, 3")
    A(f"v_and_b32 v{vR}, 15, v{vLane}")
    A(f"v_lshrrev_b32 v{vQd}, 4, v{vLane}")
    A(f"v_lshlrev_b32 v{vL16}, 4, v{vLane}")
    A(f"v_mov_b32 v{k.vFlag}, {FLAGS}")
    A(f"v_mov_b32 v{k.vOne}, 1")
    A(f"v_lshlrev_b32 v{t0}, 2, v{vLane}")
    A(f"v_add_u32 v{t0}, {ONES}, v{t0}")
    A(f"v_mov_b32 v{t1}, 0")
    A(f"v_mov_b32 v{t2}, 0x3f803f80")
    A(f"ds_write_b32 v{t0}, v{t1} offset:{FLAGS - ONES}")
    A("s_mov_b32 exec_hi, 0")
    A(f"ds_write_b32 v{t0}, v{t2}")
    A("s_mov_b64 exec, -1")
    vX = V("x", 4)
    vXR = V("xr", 2)
    vZ = V("zero4", 4)
    k.vSel = V("sel", 4)
    if o["earlyq"]:
        A("s_cmp_eq_u32 s3, 4")
        A("s_cbranch_scc1 L_loader")
        A("s_waitcnt lgkmcnt(0)")
        A(f"global_load_dwordx4 {vr(vX, 4)}, v{vL16}, s[16:17] {o['xf']}")
        A("s_load_dword s56, s[38:39], 0")
        A("s_barrier")
        A("s_branch L_compute")
    else:
        A("s_waitcnt lgkmcnt(0)")
        if o["wsoff"]:
            A(f"s_add_u32 s38, s38, {o['wsoff'] << 20}")
            A("s_addc_u32 s39, s39, 0")
        A(f"global_load_dwordx4 {vr(vX, 4)}, v{vL16}, s[16:17] {o['xf']}")
        A("s_load_dword s56, s[38:39], 0")
        A("s_barrier")
        A("s_cmp_lg_u32 s3, 4")
        A("s_cbranch_scc1 L_compute")
    A(";;LOADER_HERE")
    k.label("L_compute")
    A("s_lshr_b32 s9, s5, 3")
    A("s_and_b32 s7, s5, 7")
    A("s_lshl_b32 s8, s7, 7")
    A("s_lshl_b32 s10, s3, 5")
    A("s_add_u32 s8, s8, s10")
    A(f"v_lshlrev_b32 v{t0}, 3, v{vQd}")
    A(f"v_add_u32 v{t0}, s8, v{t0}")
    A("s_lshl_b32 s8, s5, 5")
    A("s_lshl_b32 s10, s3, 3")
    A("s_add_u32 s8, s8, s10")
    A(f"v_mov_b32 v{t1}, s8")
    A("s_cmp_eq_u32 s4, 7")
    A("s_cselect_b64 s[10:11], -1, 0")
    A(f"v_cndmask_b32 v{t0}, v{t0}, v{t1}, s[10:11]")
    A(f"global_load_dwordx2 {vr(vXR, 2)}, v{t0}, s[16:17]")
    A(f"s_mul_i32 s8, s4, {32 * BS}")
    A(f"s_add_u32 s8, s8, {WS_A}")
    A("s_add_u32 s40, s38, s8")
    A("s_addc_u32 s41, s39, 0")
    A(f"s_mul_i32 s8, s5, {BS}")
    A("s_add_u32 s42, s40, s8")
    A("s_addc_u32 s43, s41, 0")
    for i in range(4):
        A(f"v_mov_b32 v{vZ + i}, 0")
    vWL = V("wl16")
    A("s_lshl_b32 s8, s3, 10")
    A(f"v_add_u32 v{vWL}, s8, v{vL16}")
    A(f"global_load_dword v{vJunk}, v{vWL}, s[42:43] {o['ptf']}")
    A(f"global_store_dwordx4 v{vWL}, {vr(vZ, 4)}, s[42:43]")
    A("s_lshl_b32 s8, s4, 11")
    A(f"s_add_u32 s8, s8, {WS_HINT}")
    A("s_add_u32 s14, s38, s8")
    A("s_addc_u32 s15, s39, 0")
    vL4 = V("l4")
    A(f"v_lshlrev_b32 v{vL4}, 2, v{vLane}")
    A(f"v_lshlrev_b32 v{t0}, 5, v{vLane}")
    A(f"global_load_dword v{vJunk}, v{t0}, s[14:15] {o['ptf']}")
    A("s_mov_b32 s44, s40")
    A("s_mov_b32 s45, s41")
    A(f"s_add_u32 s46, s40, {WS_B - WS_A}")
    A("s_addc_u32 s47, s41, 0")
    A(f"s_add_u32 s48, s42, {WS_B - WS_A}")
    A("s_addc_u32 s49, s43, 0")
    A("s_mov_b32 s50, 0")
    A("s_mov_b32 s51, 0")
    A(f"s_add_u32 s52, s38, {WS_P3}")
    A("s_addc_u32 s53, s39, 0")
    A(f"s_add_u32 s54, s38, {WS_P5}")
    A("s_addc_u32 s55, s39, 0")
    A("s_mov_b32 s62, 0")
    if o["ptx"]:
        A("s_lshl_b32 s8, s7, 5")
        A("s_lshl_b32 s10, s4, 2")
        A("s_add_u32 s8, s8, s10")
        A("s_add_u32 s8, s8, s9")
        A("s_mul_i32 s10, s9, 56")
        A("s_lshl_b32 s11, s4, 3")
        A("s_add_u32 s10, s10, s11")
        A("s_add_u32 s10, s10, s7")
        A(f"s_add_u32 s10, s10, {(WS_P5 - WS_P3) // 512}")
        A("s_cmp_eq_u32 s4, 7")
        A("s_cselect_b32 s10, s8, s10")
        A(f"v_mov_b32 v{t0}, s8")
        A(f"v_writelane_b32 v{t0}, s10, 1")
        A(f"v_lshlrev_b32 v{t0}, 9, v{t0}")
        A("s_lshl_b32 s8, s3, 7")
        A(f"v_add_u32 v{t0}, s8, v{t0}")
        A("s_mov_b64 exec, 3")
        A(f"global_load_dword v{vJunk}, v{t0}, s[52:53] {o['pxf']}")
        if o["pgt"] == 1:
            A(f"global_load_dword v{vJunk}, v{vZ}, s[34:35] nt")
        A("s_mov_b64 exec, -1")
    for i in range(4):
        A(f"v_mov_b32 v{k.vSel + i}, {0x07060500 + i:#x}")
    vRR = V("rr"); vCC = V("cc")
    A(f"v_lshrrev_b32 v{vRR}, 2, v{vR}")
    A(f"v_and_b32 v{vCC}, 3, v{vLane}")
    A(f"v_cmp_eq_u32 s[68:69], 0, v{vR}")
    A(f"v_cmp_gt_u32 s[70:71], 8, v{vR}")
    A(f"v_cmp_eq_u32 s[72:73], 1, v{vRR}")
    A(f"v_cmp_gt_u32 s[74:75], 4, v{vR}")
    A(f"v_and_b32 v{t0}, 2, v{vR}")
    A(f"v_cmp_ne_u32 s[76:77], 0, v{t0}")
    A(f"v_and_b32 v{t0}, 1, v{vR}")
    A(f"v_cmp_ne_u32 s[66:67], 0, v{t0}")
    vTR128 = V("tr128")
    A(f"v_lshl_add_u32 v{t0}, v{vQd}, 2, v{vRR}")
    A(f"v_lshlrev_b32 v{vTR128}, 7, v{t0}")
    A(f"v_bfe_u32 v{t1}, v{t0}, 1, 2")
    A(f"v_lshlrev_b32 v{t1}, 1, v{t1}")
    A(f"v_lshrrev_b32 v{t2}, 1, v{vCC}")
    A("s_lshl_b32 s8, s3, 1")
    A(f"v_add_u32 v{t2}, s8, v{t2}")
    A(f"v_xor_b32 v{t2}, v{t2}, v{t1}")
    A(f"v_lshl_add_u32 v{vTR128}, v{t2}, 4, v{vTR128}")
    A(f"v_and_b32 v{t2}, 1, v{vCC}")
    A(f"v_lshl_add_u32 v{vTR128}, v{t2}, 3, v{vTR128}")
    A(f"v_add_u32 v{vTR128}, {WQL}, v{vTR128}")
    vTR256 = V("tr256", 2)
    A(f"v_lshlrev_b32 v{vTR256}, 8, v{t0}")
    A(f"v_and_b32 v{t1}, 7, v{t0}")
    A(f"v_lshlrev_b32 v{t1}, 1, v{t1}")
    A(f"v_lshrrev_b32 v{t3}, 1, v{vCC}")
    A("s_lshl_b32 s8, s3, 2")
    A(f"v_add_u32 v{t3}, s8, v{t3}")
    A(f"v_xor_b32 v{t3}, v{t3}, v{t1}")
    A(f"v_lshl_add_u32 v{vTR256}, v{t3}, 4, v{vTR256}")
    A(f"v_lshl_add_u32 v{vTR256}, v{t2}, 3, v{vTR256}")
    A(f"v_xor_b32 v{vTR256 + 1}, 32, v{vTR256}")
    vPub = V("pubaddr")
    A("s_lshl_b32 s8, s3, 6")
    A(f"v_lshlrev_b32 v{vPub}, 4, v{vQd}")
    A(f"v_add_u32 v{vPub}, s8, v{vPub}")
    vH1 = V("h1a")
    A(f"v_lshlrev_b32 v{t0}, 3, v{vRR}")
    A(f"v_and_b32 v{t1}, 3, v{vR}")
    A(f"v_lshl_add_u32 v{t0}, v{t1}, 1, v{t0}")
    A("s_lshr_b32 s8, s3, 1")
    A(f"v_add_u32 v{t0}, s8, v{t0}")
    A(f"v_mul_u32_u24 v{t0}, {BS}, v{t0}")
    A("s_and_b32 s8, s3, 1")
    A("s_lshl_b32 s8, s8, 7")
    A(f"v_lshl_add_u32 v{vH1}, v{vQd}, 5, v{t0}")
    A(f"v_add_u32 v{vH1}, s8, v{vH1}")
    vXNr = V("xnr")
    A("s_lshl_b32 s8, s3, 10")
    A("s_lshl_b32 s10, s9, 8")
    A("s_add_u32 s8, s8, s10")
    A(f"s_add_u32 s8, s8, {XN}")
    A(f"v_lshlrev_b32 v{vXNr}, 4, v{vQd}")
    A(f"v_add_u32 v{vXNr}, s8, v{vXNr}")
    A(f"v_add_u32 v{t7}, {XN}, v{vWL}")

    vF = V("f", 8)
    A(f"s_waitcnt vmcnt({(5 + (o['pgt'] == 1)) if o['ptx'] else 4})")
    for i in range(4):
        A(f"v_lshlrev_b32 v{vF + 2 * i}, 16, v{vX + i}")
        A(f"v_and_b32 v{vF + 2 * i + 1}, 0xffff0000, v{vX + i}")
    A(f"v_add_f32 v{t0}, v{vF}, v{vF + 1}")
    A(f"v_mul_f32 v{t1}, v{vF}, v{vF}")
    A(f"v_fmac_f32 v{t1}, v{vF + 1}, v{vF + 1}")
    for i in range(2, 8):
        A(f"v_add_f32 v{t0}, v{t0}, v{vF + i}")
        A(f"v_fmac_f32 v{t1}, v{vF + i}, v{vF + i}")
    k.reduce64_to_lane63([t0, t1])
    A(f"v_readlane_b32 s8, v{t0}, 63")
    A(f"v_readlane_b32 s10, v{t1}, 63")
    A(f"v_mov_b32 v{t0}, s8")
    A(f"v_mov_b32 v{t1}, s10")
    k.ln_scalars(t0, t1)
    for i in range(8):
        A(f"v_sub_f32 v{vF + i}, v{vF + i}, v{t0}")
    for i in range(4):
        k.round_bf16_pair(vF + 2 * i, vF + 2 * i + 1, vF + 2 * i, vF + 2 * i + 1, t3)
    for i in range(8):
        A(f"v_mul_f32 v{vF + i}, v{vF + i}, v{t1}")
    for i in range(4):
        A(f"v_cvt_pk_bf16_f32 v{vX + i}, v{vF + 2 * i}, v{vF + 2 * i + 1}")
    A(f"ds_write_b128 v{t7}, {vr(vX, 4)}")
    vB = V("bfrag", 16)
    for ks in range(4):
        A(f"ds_read_b128 {vr(vB + 4 * ks, 4)}, v{vXNr} offset:{ks * 64}")
    A("s_waitcnt lgkmcnt(0)")
    A("s_add_u32 s13, s56, 1")
    A("s_and_b32 s13, s13, 0x0fffffff")
    for i, sh in enumerate((0, 7, 0, 14)):
        A(f"s_bfe_u32 s8, s13, {(7 << 16) | sh:#x}")
        if i == 2:
            A("s_xor_b32 s8, s8, 0x2a")
        A(f"s_or_b32 s{57 + i}, s8, 0x80")
    A("s_lshl_b32 s8, s58, 8")
    A("s_or_b32 s56, s57, s8")
    A("s_lshl_b32 s8, s59, 16")
    A("s_or_b32 s56, s56, s8")
    A("s_lshl_b32 s8, s60, 24")
    A("s_or_b32 s56, s56, s8")
    A("s_mul_i32 s12, s57, 0x01010101")
    vHs1 = V("hs1")
    A("s_lshl_b32 s8, s5, 2")
    A("s_add_u32 s8, s8, s3")
    A(f"v_mov_b32 v{vHs1}, s8")
    vHB = V("hintbyte")
    A(f"v_mov_b32 v{vHB}, s57")
    A.stamp(1)
    vW = V("wfrag", 16)
    k.lds_wait(F_WQ, 1, t0)
    for ks in range(4):
        for hf in range(2):
            A(f"ds_read_b64_tr_b16 {vr(vW + 4 * ks + 2 * hf, 2)}, v{vTR128} offset:{ks * 4096 + hf * 2048}")
    vD = V("d", 8)
    for ks in range(4):
        A(f"s_waitcnt lgkmcnt({6 - 2 * ks})")
        A(f"v_mfma_f32_16x16x32_bf16 {vr(vD, 4)}, {vr(vW + 4 * ks, 4)}, {vr(vB + 4 * ks, 4)}, {'0' if ks == 0 else vr(vD, 4)}")
    k.tag4(vD)
    A("s_mov_b64 exec, s[68:69]")
    A(f"global_store_dwordx4 v{vPub}, {vr(vD, 4)}, s[42:43] offset:{B_P1}")
    if o["hint1"]:
        A("s_mov_b64 exec, 1")
        A(f"global_store_byte v{vHs1}, v{vHB}, s[14:15] offset:1024")
    A("s_mov_b64 exec, -1")
    A.stamp(2)
    vG = V("g", 24)
    vAcc = V("acc")
    vRing = V("ring", max(24, 8 * NP))

    def h1_issue(s):
        A(f"global_load_dwordx4 {vr(vRing + 8 * s, 4)}, v{vH1}, s[44:45] offset:{B_P1} sc1")
        A(f"global_load_dwordx4 {vr(vRing + 8 * s + 4, 4)}, v{vH1}, s[44:45] offset:{B_P1 + 16} sc1")

    later = []
    LA = later.append
    vL16Q = V("l16q")
    LA(f"v_add_u32 v{vL16Q}, {QF}, v{vL16}")
    vKa = V("ka", 4)
    LA("s_lshl_b32 s8, s3, 13")
    LA(f"v_lshlrev_b32 v{vKa}, 8, v{vR}")
    LA(f"v_add_u32 v{vKa}, s8, v{vKa}")
    LA(f"v_xor_b32 v{t1}, v{vQd}, v{vR}")
    LA(f"v_lshl_add_u32 v{vKa}, v{t1}, 4, v{vKa}")
    LA(f"v_xor_b32 v{vKa + 1}, 64, v{vKa}")
    LA(f"v_xor_b32 v{vKa + 2}, 128, v{vKa}")
    LA(f"v_xor_b32 v{vKa + 3}, 192, v{vKa}")
    vMXw = V("mxw"); vMXr = V("mxr")
    LA(f"v_lshlrev_b32 v{vMXr}, 6, v{vR}")
    LA(f"v_add_u32 v{vMXr}, {MX}, v{vMXr}")
    LA("s_lshl_b32 s8, s3, 4")
    LA(f"v_lshl_add_u32 v{vMXw}, v{vQd}, 2, v{vMXr}")
    LA(f"v_add_u32 v{vMXw}, s8, v{vMXw}")
    vMX2w = V("mx2w"); vMX2r = V("mx2r")
    LA(f"v_lshlrev_b32 v{vMX2r}, 4, v{vR}")
    LA(f"v_add_u32 v{vMX2r}, {MX}, v{vMX2r}")
    LA("s_lshl_b32 s8, s3, 2")
    LA(f"v_add_u32 v{vMX2w}, s8, v{vMX2r}")
    vSelP = V("selp", 2)
    LA(f"v_and_b32 v{t0}, 1, v{vRR}")
    LA(f"v_lshlrev_b32 v{t0}, 1, v{t0}")
    LA(f"v_add_u32 v{vSelP}, 0x07060500, v{t0}")
    LA(f"v_add_u32 v{vSelP + 1}, 0x07060501, v{t0}")
    vP2a = V("p2a")
    LA(f"v_and_b32 v{t0}, 3, v{vR}")
    LA(f"v_lshlrev_b32 v{vP2a}, 9, v{t0}")
    LA(f"v_lshl_add_u32 v{vP2a}, v{vRR}, 6, v{vP2a}")
    LA(f"v_lshl_add_u32 v{vP2a}, v{vQd}, 4, v{vP2a}")
    LA("s_lshl_b32 s8, s3, 7")
    LA(f"v_add_u32 v{vP2a}, s8, v{vP2a}")
    vH2 = V("h2a", 4)
    LA("s_lshl_b32 s10, s9, 9")
    LA("s_add_u32 s10, s10, s8")
    LA(f"v_mul_u32_u24 v{t0}, {BS}, v{vR}")
    LA(f"v_lshl_add_u32 v{vH2}, v{vQd}, 4, v{t0}")
    LA(f"v_add_u32 v{vH2}, s10, v{vH2}")
    LA(f"v_add_u32 v{vH2 + 1}, {16 * BS}, v{vH2}")
    LA("s_lshl_b32 s10, s9, 4")
    LA(f"v_add_u32 v{vH2 + 2}, s10, v{t0}")
    LA(f"v_add_u32 v{vH2 + 3}, {16 * BS}, v{vH2 + 2}")
    vHs2 = V("hs2"); vHr2 = V("hr2"); vHs4 = V("hs4"); vHr4 = V("hr4")
    LA("s_lshl_b32 s8, s3, 7")
    LA(f"v_add_u32 v{vHr2}, s8, v{vL4}")
    LA("s_add_u32 s8, s8, s5")
    LA(f"v_mov_b32 v{vHs2}, s8")
    LA("s_lshl_b32 s8, s9, 7")
    LA("s_lshl_b32 s10, s7, 2")
    LA("s_add_u32 s8, s8, s10")
    LA("s_add_u32 s8, s8, s3")
    LA(f"v_mov_b32 v{vHs4}, s8")
    LA("s_lshr_b32 s8, s7, 1")
    LA("s_lshl_b32 s8, s8, 7")
    LA(f"v_add_u32 v{vHr4}, s8, v{vL4}")
    vOFw = V("ofw"); vQ16 = V("q16")
    LA(f"v_add_u32 v{vOFw}, {OF}, v{vPub}")
    LA(f"v_lshlrev_b32 v{vQ16}, 4, v{vQd}")
    LA(f"v_add_u32 v{vQ16}, {OF}, v{vQ16}")
    vP3a = V("p3a")
    LA("s_lshl_b32 s8, s7, 5")
    LA("s_lshl_b32 s10, s4, 2")
    LA("s_add_u32 s8, s8, s10")
    LA("s_add_u32 s8, s8, s9")
    LA("s_lshl_b32 s8, s8, 9")
    LA("s_lshl_b32 s10, s3, 6")
    LA("s_add_u32 s8, s8, s10")
    LA(f"v_add_u32 v{vP3a}, s8, v{vPub}")
    vH3 = V("h3a", 2); vP4a = V("p4a")
    LA("s_lshl_b32 s8, s7, 14")
    LA("s_add_u32 s8, s8, s10")
    LA(f"v_lshl_add_u32 v{vP4a}, v{vR}, 8, v{vPub}")
    LA(f"v_lshl_add_u32 v{vH3}, v{vR}, 9, v{vPub}")
    LA(f"v_add_u32 v{vH3}, s8, v{vH3}")
    LA(f"v_add_u32 v{vH3 + 1}, 8192, v{vH3}")
    vHFw = V("hfw"); vHFa = V("hfa"); vHFb = V("hfb")
    LA("s_lshr_b32 s8, s3, 1")
    LA("s_lshl_b32 s8, s8, 6")
    LA("s_and_b32 s10, s3, 1")
    LA("s_lshl_b32 s10, s10, 3")
    LA("s_add_u32 s8, s8, s10")
    LA(f"v_lshlrev_b32 v{vHFa}, 4, v{vQd}")
    LA(f"v_add_u32 v{vHFa}, {HF}, v{vHFa}")
    LA(f"v_add_u32 v{vHFw}, s8, v{vHFa}")
    LA(f"v_and_b32 v{t0}, 1, v{vR}")
    LA(f"v_lshl_add_u32 v{vHFb}, v{t0}, 7, v{vHFa}")
    vH4 = V("h4a", 2)
    LA("s_lshr_b32 s8, s7, 1")
    LA(f"s_mul_i32 s8, s8, {8 * BS}")
    LA("s_and_b32 s10, s7, 1")
    LA("s_lshl_b32 s10, s10, 7")
    LA("s_lshl_b32 s11, s3, 4")
    LA("s_add_u32 s10, s10, s11")
    LA(f"v_and_b32 v{t0}, 7, v{vLane}")
    LA(f"v_mul_u32_u24 v{t0}, {BS}, v{t0}")
    LA(f"v_add_u32 v{vH4}, s8, v{t0}")
    LA(f"v_bfe_u32 v{t1}, v{vLane}, 3, 2")
    LA(f"v_lshl_add_u32 v{t1}, v{t1}, 8, v{vH4}")
    LA(f"v_lshrrev_b32 v{t0}, 5, v{vLane}")
    LA(f"v_lshl_add_u32 v{t1}, v{t0}, 6, v{t1}")
    LA(f"v_add_u32 v{vH4 + 1}, s10, v{t1}")
    vHHw = V("hhw"); vHHr = V("hhr")
    LA(f"v_lshlrev_b32 v{vHHw}, 3, v{t0}")
    LA(f"v_lshl_add_u32 v{vHHw}, v{vCC}, 1, v{vHHw}")
    LA(f"s_add_u32 s11, s11, {HH}")
    LA(f"v_add_u32 v{vHHw}, s11, v{vHHw}")
    LA(f"v_lshlrev_b32 v{vHHr}, 4, v{vQd}")
    LA(f"v_add_u32 v{vHHr}, {HH}, v{vHHr}")
    vP5a = V("p5a")
    LA("s_mul_i32 s8, s9, 56")
    LA("s_lshl_b32 s10, s4, 3")
    LA("s_add_u32 s8, s8, s10")
    LA("s_add_u32 s8, s8, s7")
    LA("s_lshl_b32 s8, s8, 9")
    LA("s_lshl_b32 s10, s3, 7")
    LA("s_add_u32 s8, s8, s10")
    LA(f"v_lshlrev_b32 v{vP5a}, 4, v{vQd}")
    LA(f"v_add_u32 v{vP5a}, s8, v{vP5a}")
    LA(f"v_and_b32 v{t0}, 1, v{vR}")
    LA(f"v_lshl_add_u32 v{vP5a}, v{t0}, 6, v{vP5a}")
    LA(f"v_cmp_gt_u32 s[10:11], 2, v{vR}")
    LA("s_mov_b64 s[0:1], s[10:11]")

    vTD = V("taildma", 3)
    if o["ctail"]:
        LA(f"v_and_b32 v{t0}, 7, v{vLane}")
        LA(f"v_lshlrev_b32 v{t1}, 1, v{vQd}")
        LA(f"v_xor_b32 v{t0}, v{t0}, v{t1}")
        LA(f"v_lshlrev_b32 v{t0}, 4, v{t0}")
        LA(f"v_lshrrev_b32 v{t2}, 3, v{vLane}")
        LA(f"v_mul_u32_u24 v{vTD}, 3584, v{t2}")
        LA(f"v_add_u32 v{vTD}, v{vTD}, v{t0}")
        LA(f"v_xor_b32 v{t0}, v{vR}, v{t1}")
        LA(f"v_lshlrev_b32 v{t2}, 10, v{vQd}")
        LA(f"v_lshl_add_u32 v{vTD + 1}, v{t0}, 4, v{t2}")
        LA(f"v_xor_b32 v{vTD + 2}, 128, v{vTD + 1}")
        LA(f"v_add_u32 v{vTD + 2}, {4096 - 1024}, v{vTD + 2}")
        LA("s_lshl_b32 s8, s7, 2")
        LA("s_add_u32 s8, s8, s3")
        LA(f"s_mul_i32 s8, s8, {16 * 3584}")
        LA("s_lshl_b32 s10, s4, 2")
        LA("s_add_u32 s10, s10, s9")
        LA("s_lshl_b32 s10, s10, 7")
        LA("s_add_u32 s8, s8, s10")
        LA("s_add_u32 s18, s28, s8"); LA("s_addc_u32 s19, s29, 0")
        LA("s_add_u32 s20, s30, s8"); LA("s_addc_u32 s21, s31, 0")
        LA(f"s_add_u32 s22, s18, {8 * 3584}"); LA("s_addc_u32 s23, s19, 0")
        LA(f"s_add_u32 s24, s20, {8 * 3584}"); LA("s_addc_u32 s25, s21, 0")
        LA("s_lshl_b32 s8, s4, 18")
        LA("s_lshl_b32 s10, s7, 15")
        LA("s_add_u32 s8, s8, s10")
        LA("s_lshl_b32 s10, s3, 13")
        LA("s_add_u32 s8, s8, s10")
        LA("s_lshl_b32 s10, s9, 8")
        LA("s_add_u32 s8, s8, s10")
        LA("s_add_u32 s26, s32, s8"); LA("s_addc_u32 s27, s33, 0")
    vTW2 = V("tw2", 2)
    LA(f"v_add_u32 v{vTW2}, {W2L}, v{vTR256}")
    LA(f"v_add_u32 v{vTW2 + 1}, {W2L}, v{vTR256 + 1}")
    vXF = V("xf", 4)
    LA("s_waitcnt vmcnt(3)")
    LA(f"v_lshlrev_b32 v{vXF}, 16, v{vXR}")
    LA(f"v_and_b32 v{vXF + 1}, 0xffff0000, v{vXR}")
    LA(f"v_lshlrev_b32 v{vXF + 2}, 16, v{vXR + 1}")
    LA(f"v_and_b32 v{vXF + 3}, 0xffff0000, v{vXR + 1}")

    def h1_ok(s):
        for i in range(8):
            A(f"v_add_f32_dpp v{vG + i}, v{vRing + 8 * s + i}, v{vRing + 8 * s + i} row_ror:4 {DPPM}")

    def h1_fill():
        for s_ in later:
            A(s_)
    if o["hint1"]:
        k.hint_ring("hr1", vL4, 1024, [vRing + 16 + i for i in range(o["NH"])], "s_mov_b32 exec_hi, 0", filler=h1_fill)
        k.poll([f"global_load_dwordx4 {vr(vRing, 4)}, v{vH1}, s[44:45] offset:{B_P1} sc1",
                f"global_load_dwordx4 {vr(vRing + 4, 4)}, v{vH1}, s[44:45] offset:{B_P1 + 16} sc1"],
               [vRing, vRing + 4], vAcc, True, hook=lambda: k.lds_signal(F_G1))
        h1_ok(0)
    else:
        h1_fill()
        if o["GAP0"]:
            A(f"s_sleep {o['GAP0']}")
        k.ring_poll("h1", NP, h1_issue, lambda s: [vRing + 8 * s, vRing + 8 * s + 4], 2, vAcc, True, o["GAP"], h1_ok, pace=o['PACE'])
    h2_loads = [f"global_load_dwordx4 {vr(vG, 4)}, v{vH2}, s[44:45] offset:{B_P2} sc1",
                f"global_load_dwordx4 {vr(vG + 4, 4)}, v{vH2}, s[44:45] offset:{B_P2 + 64} sc1",
                f"global_load_dwordx4 {vr(vG + 8, 4)}, v{vH2 + 1}, s[44:45] offset:{B_P2} sc1",
                f"global_load_dwordx4 {vr(vG + 12, 4)}, v{vH2 + 1}, s[44:45] offset:{B_P2 + 64} sc1"]
    if o["ptl"] & 1:
        A(f"global_load_dword v{vJunk}, v{vWL}, s[42:43] {o['ptf']}")
    if o["ptc"]:
        A(f"global_load_dword v{vJunk}, v{vH2}, s[44:45] offset:{B_P2} sc1")
        A(f"global_load_dword v{vJunk}, v{vH2 + 1}, s[44:45] offset:{B_P2} sc1")
        A(f"global_load_dword v{vJunk}, v{vH2 + 2}, s[44:45] offset:{B_ML} sc1")
        A(f"global_load_dword v{vJunk}, v{vH2 + 3}, s[44:45] offset:{B_ML} sc1")
        A(f"global_load_dword v{vJunk}, v{vL16}, s[14:15] sc1")
    if o["ptp"]:
        skp = k.newlabel("skp")
        A("s_cmp_eq_u32 s3, 1")
        A(f"s_cbranch_scc1 {skp}")
        A("s_cmp_eq_u32 s3, 0")
        A("s_cselect_b32 exec_lo, 0xffff0000, -1")
        A(f"global_store_dwordx4 v{vWL}, {vr(vZ, 4)}, s[42:43]")
        A("s_mov_b64 exec, -1")
        k.label(skp)
    A.stamp(3)
    k.allreduce16("v_add_f32", list(range(vG, vG + 8)), steps=(8,))
    for i in range(4):
        A(f"v_cvt_pk_bf16_f32 v{vX + i}, v{vG + 2 * i}, v{vG + 2 * i + 1}")
    A(f"v_add_u32 v{t0}, {QF}, v{vWL}")
    A(f"ds_write_b128 v{t0}, {vr(vX, 4)}")
    k.lds_signal(F_Q)
    vKF = V("kfrag", 32)
    k.lds_wait(F_K, 1, t4)
    for kt in range(2):
        for s in range(4):
            A(f"ds_read_b128 {vr(vKF + 16 * kt + 4 * s, 4)}, v{vKa + s} offset:{KL + kt * 4096}")
    A.stamp(1, 2)
    k.lds_wait(F_Q, 4, t4, [f"ds_read_b128 {vr(vB + 4 * s, 4)}, v{vL16Q} offset:{s * 1024}" for s in range(4)])
    for s in range(4):
        for kt in range(2):
            A(f"v_mfma_f32_16x16x32_bf16 {vr(vD + 4 * kt, 4)}, {vr(vKF + 16 * kt + 4 * s, 4)}, {vr(vB + 4 * s, 4)}, {'0' if s == 0 else vr(vD + 4 * kt, 4)}")
    A.stamp(2, 2)
    A(f"s_mov_b32 s8, {SCALE:#x}")
    for i in range(4):
        k.round_bf16_pair(vF + 2 * i, vF + 2 * i + 1, vD + 2 * i, vD + 2 * i + 1, t0)
    for i in range(8):
        A(f"v_mul_f32 v{vF + i}, s8, v{vF + i}")
    for i in range(4):
        k.round_bf16_pair(vF + 2 * i, vF + 2 * i + 1, vF + 2 * i, vF + 2 * i + 1, t0)
    A(f"v_max3_f32 v{t0}, v{vF}, v{vF + 1}, v{vF + 2}")
    A(f"v_max3_f32 v{t1}, v{vF + 3}, v{vF + 4}, v{vF + 5}")
    A(f"v_max3_f32 v{t0}, v{t0}, v{vF + 6}, v{vF + 7}")
    A(f"v_max_f32 v{t0}, v{t0}, v{t1}")
    if o['wl']:
        A(f"v_mov_b32 v{t1}, v{t0}")
        A(f"v_permlane16_swap_b32 v{t0}, v{t1}")
        A(f"v_max_f32 v{t0}, v{t0}, v{t1}")
        A(f"v_mov_b32 v{t1}, v{t0}")
        A(f"v_permlane32_swap_b32 v{t0}, v{t1}")
        A(f"v_max_f32 v{t0}, v{t0}, v{t1}")
        A(f"s_mov_b32 s8, {LOG2E:#x}")
        A(f"v_mul_f32 v{t1}, s8, v{t0}")
        for i in range(8):
            A(f"v_fma_f32 v{vF + i}, v{vF + i}, s8, -v{t1}")
        for i in range(8):
            A(f"v_exp_f32 v{vF + i}, v{vF + i}")
        for i in range(4):
            A(f"v_cvt_pk_bf16_f32 v{vX + i}, v{vF + 2 * i}, v{vF + 2 * i + 1}")
        A(f"v_add_u32 v{t1}, {PF}, v{vWL}")
        A(f"ds_write_b128 v{t1}, {vr(vX, 4)}")
        A(f"ds_write_b32 v{vMX2w}, v{t0}")
        A(f"v_add_f32 v{t2}, v{vF}, v{vF + 1}")
        A(f"v_add_f32 v{t3}, v{vF + 2}, v{vF + 3}")
        for i in range(4, 8, 2):
            A(f"v_add_f32 v{t2}, v{t2}, v{vF + i}")
            A(f"v_add_f32 v{t3}, v{t3}, v{vF + i + 1}")
        A(f"v_add_f32 v{t2}, v{t2}, v{t3}")
        A(f"v_mov_b32 v{t3}, v{t2}")
        A(f"v_permlane16_swap_b32 v{t2}, v{t3}")
        A(f"v_add_f32 v{t2}, v{t2}, v{t3}")
        A(f"v_mov_b32 v{t3}, v{t2}")
        A(f"v_permlane32_swap_b32 v{t2}, v{t3}")
        A(f"v_add_f32 v{t2}, v{t2}, v{t3}")
        A(f"ds_write_b32 v{vMX2w}, v{t2} offset:{LS - MX}")
        k.lds_signal(F_P)
        A.stamp(4, 2)
        vML = V("ml", 4)
        vM = vML
        vSC = V("sc", 4)
        k.lds_wait(F_P, 4, t4,
                   [f"ds_read_b128 {vr(vB + 4 * s, 4)}, v{vL16Q} offset:{PF - QF + s * 1024}" for s in range(4)] +
                   [f"ds_read_b128 {vr(vSC, 4)}, v{vMX2r}", f"ds_read_b128 {vr(vG, 4)}, v{vMX2r} offset:{LS - MX}"])
        A.stamp(5, 2)
        A(f"v_max3_f32 v{vM}, v{vSC}, v{vSC + 1}, v{vSC + 2}")
        A(f"v_max_f32 v{vM}, v{vM}, v{vSC + 3}")
        for i in range(4):
            A(f"v_sub_f32 v{vSC + i}, v{vSC + i}, v{vM}")
        for i in range(4):
            A(f"v_mul_f32 v{vSC + i}, s8, v{vSC + i}")
        for i in range(4):
            A(f"v_exp_f32 v{vSC + i}, v{vSC + i}")
        if o["lam"]:
            A(f"v_mul_f32 v{vML + 1}, v{vSC}, v{vG}")
            for i in range(1, 4):
                A(f"v_fmac_f32 v{vML + 1}, v{vSC + i}, v{vG + i}")
            A(f"v_rcp_f32 v{vML + 2}, v{vML + 1}")
            A(f"v_log_f32 v{vML + 1}, v{vML + 1}")
            for i in range(4):
                A(f"v_mul_f32 v{vSC + i}, v{vML + 2}, v{vSC + i}")
            A(f"v_fmac_f32 v{vML + 1}, s8, v{vM}")
        else:
            skipml = k.newlabel("skipml")
            A("s_cmp_lg_u32 s3, 0")
            A(f"s_cbranch_scc1 {skipml}")
            A(f"v_mul_f32 v{vML + 1}, v{vSC}, v{vG}")
            for i in range(1, 4):
                A(f"v_fmac_f32 v{vML + 1}, v{vSC + i}, v{vG + i}")
            A(f"v_mov_b32 v{vML + 2}, 0")
            A(f"v_mov_b32 v{vML + 3}, 0")
            k.tag4(vML)
            A("s_mov_b64 exec, 15")
            A(f"global_store_dwordx4 v{vL16}, {vr(vML, 4)}, s[42:43] offset:{B_ML}")
            A("s_mov_b64 exec, -1")
            k.label(skipml)
        ml_loads = [f"global_load_dwordx4 {vr(vG + 16, 4)}, v{vH2 + 2}, s[44:45] offset:{B_ML} sc1",
                    f"global_load_dwordx4 {vr(vG + 20, 4)}, v{vH2 + 3}, s[44:45] offset:{B_ML} sc1"]
        if o["mlpre"] and o["mlsep"]:
            for l_ in ml_loads:
                A(l_)
        A.stamp(4)
        vO = vW
        if o["vq"]:
            for ks in range(4):
                k.lds_wait(F_V, ks + 1, t4)
                if ks == 3:
                    A.stamp(5)
                for t in range(2):
                    for hf in range(2):
                        A(f"ds_read_b64_tr_b16 {vr(vKF + 8 * ks + 4 * t + 2 * hf, 2)}, v{vTR256 + t} offset:{VL + ks * 8192 + hf * 4096}")
                if ks:
                    for i in range(4):
                        A(f"v_cndmask_b32 v{vO + 4 * (ks - 1) + i}, v{vO + 4 * (ks - 1) + i}, v{vG + 4 * (ks - 1) + i}, s[72:73]")
                    for i in range(4):
                        if ks == 1:
                            A(f"v_mul_f32 v{vD + i}, v{vSC}, v{vO + i}")
                        else:
                            A(f"v_fmac_f32 v{vD + i}, v{vSC + ks - 1}, v{vO + 4 * (ks - 1) + i}")
                A("s_waitcnt lgkmcnt(2)")
                A(f"v_mfma_f32_16x16x32_bf16 {vr(vO + 4 * ks, 4)}, {vr(vKF + 8 * ks, 4)}, {vr(vB + 4 * ks, 4)}, 0")
                A("s_waitcnt lgkmcnt(0)")
                A(f"v_mfma_f32_16x16x32_bf16 {vr(vG + 4 * ks, 4)}, {vr(vKF + 8 * ks + 4, 4)}, {vr(vB + 4 * ks, 4)}, 0")
        else:
            k.lds_wait(F_V, 1, t4)
            A.stamp(5)
            for ks in range(4):
                for t in range(2):
                    for hf in range(2):
                        A(f"ds_read_b64_tr_b16 {vr(vKF + 8 * ks + 4 * t + 2 * hf, 2)}, v{vTR256 + t} offset:{VL + ks * 8192 + hf * 4096}")
            for ks in range(4):
                A(f"s_waitcnt lgkmcnt({12 - 4 * ks})")
                A(f"v_mfma_f32_16x16x32_bf16 {vr(vO + 4 * ks, 4)}, {vr(vKF + 8 * ks, 4)}, {vr(vB + 4 * ks, 4)}, 0")
                A(f"v_mfma_f32_16x16x32_bf16 {vr(vG + 4 * ks, 4)}, {vr(vKF + 8 * ks + 4, 4)}, {vr(vB + 4 * ks, 4)}, 0")
        for ks in (range(3, 4) if o["vq"] else range(4)):
            for i in range(4):
                A(f"v_cndmask_b32 v{vO + 4 * ks + i}, v{vO + 4 * ks + i}, v{vG + 4 * ks + i}, s[72:73]")
            for i in range(4):
                if ks == 0:
                    A(f"v_mul_f32 v{vD + i}, v{vSC}, v{vO + i}")
                else:
                    A(f"v_fmac_f32 v{vD + i}, v{vSC + ks}, v{vO + 4 * ks + i}")
    else:
        A(f"ds_write_b32 v{vMXw}, v{t0}")
        k.lds_signal(F_M)
        A(f"s_mov_b32 s8, {LOG2E:#x}")
        for i in range(8):
            A(f"v_mul_f32 v{vF + i}, s8, v{vF + i}")
        k.lds_wait(F_M, 4, t4, [f"ds_read_b128 {vr(vG + 4 * i, 4)}, v{vMXr} offset:{16 * i}" for i in range(4)])
        A.stamp(4, 2)
        vML = V("ml", 4)
        vM = vML
        A(f"v_max3_f32 v{vM}, v{vG}, v{vG + 1}, v{vG + 2}")
        A(f"v_max3_f32 v{t1}, v{vG + 3}, v{vG + 4}, v{vG + 5}")
        A(f"v_max3_f32 v{t2}, v{vG + 6}, v{vG + 7}, v{vG + 8}")
        A(f"v_max3_f32 v{t3}, v{vG + 9}, v{vG + 10}, v{vG + 11}")
        A(f"v_max3_f32 v{vM}, v{vM}, v{vG + 12}, v{vG + 13}")
        A(f"v_max3_f32 v{t1}, v{t1}, v{vG + 14}, v{vG + 15}")
        A(f"v_max3_f32 v{vM}, v{vM}, v{t1}, v{t2}")
        A(f"v_max_f32 v{vM}, v{vM}, v{t3}")
        A(f"v_mul_f32 v{t1}, s8, v{vM}")
        for i in range(8):
            A(f"v_sub_f32 v{vF + i}, v{vF + i}, v{t1}")
        for i in range(8):
            A(f"v_exp_f32 v{vF + i}, v{vF + i}")
        for i in range(4):
            A(f"v_cvt_pk_bf16_f32 v{vX + i}, v{vF + 2 * i}, v{vF + 2 * i + 1}")
        A(f"v_add_u32 v{t1}, {PF}, v{vWL}")
        A(f"ds_write_b128 v{t1}, {vr(vX, 4)}")
        A(f"v_add_f32 v{t0}, v{vF}, v{vF + 1}")
        for i in range(2, 8):
            A(f"v_add_f32 v{t0}, v{t0}, v{vF + i}")
        A(f"ds_write_b32 v{vMXw}, v{t0} offset:{LS - MX}")
        k.lds_signal(F_P)
        k.lds_wait(F_P, 4, t4,
                   [f"ds_read_b128 {vr(vB + 4 * s, 4)}, v{vL16Q} offset:{PF - QF + s * 1024}" for s in range(4)] +
                   [f"ds_read_b128 {vr(vG + 4 * i, 4)}, v{vMXr} offset:{LS - MX + 16 * i}" for i in range(4)])
        A.stamp(5, 2)
        skipml = k.newlabel("skipml")
        A("s_cmp_lg_u32 s3, 0")
        A(f"s_cbranch_scc1 {skipml}")
        A(f"v_add_f32 v{vML + 1}, v{vG}, v{vG + 1}")
        for i in range(2, 16):
            A(f"v_add_f32 v{vML + 1}, v{vML + 1}, v{vG + i}")
        A(f"v_mov_b32 v{vML + 2}, 0")
        A(f"v_mov_b32 v{vML + 3}, 0")
        k.tag4(vML)
        A("s_mov_b64 exec, 15")
        A(f"global_store_dwordx4 v{vL16}, {vr(vML, 4)}, s[42:43] offset:{B_ML}")
        A("s_mov_b64 exec, -1")
        k.label(skipml)
        ml_loads = [f"global_load_dwordx4 {vr(vG + 16, 4)}, v{vH2 + 2}, s[44:45] offset:{B_ML} sc1",
                f"global_load_dwordx4 {vr(vG + 20, 4)}, v{vH2 + 3}, s[44:45] offset:{B_ML} sc1"]
        if o["mlpre"] and o["mlsep"]:
            for l_ in ml_loads:
                A(l_)
        A.stamp(4)
        k.lds_wait(F_V, 1, t4)
        A.stamp(5)
        for ks in range(4):
            for t in range(2):
                for hf in range(2):
                    A(f"ds_read_b64_tr_b16 {vr(vKF + 8 * ks + 4 * t + 2 * hf, 2)}, v{vTR256 + t} offset:{VL + ks * 8192 + hf * 4096}")
        for ks in range(4):
            A(f"s_waitcnt lgkmcnt({12 - 4 * ks})")
            for t in range(2):
                A(f"v_mfma_f32_16x16x32_bf16 {vr(vD + 4 * t, 4)}, {vr(vKF + 8 * ks + 4 * t, 4)}, {vr(vB + 4 * ks, 4)}, {'0' if ks == 0 else vr(vD + 4 * t, 4)}")
        for i in range(4):
            A(f"v_cndmask_b32 v{vD + i}, v{vD + i}, v{vD + 4 + i}, s[72:73]")
    if o["lam"]:
        A(f"v_perm_b32 v{vD}, v{vD}, s56, v{vSelP}")
        A(f"v_perm_b32 v{vD + 1}, v{vD + 1}, s56, v{vSelP + 1}")
        A(f"v_perm_b32 v{vD + 2}, v{vD + 2}, v{vML + 1}, v{vSelP}")
        A(f"v_perm_b32 v{vD + 3}, v{vD + 3}, v{vML + 1}, v{vSelP + 1}")
    else:
        k.tag4(vD)
    A("s_mov_b64 exec, s[70:71]")
    A(f"global_store_dwordx4 v{vP2a}, {vr(vD, 4)}, s[42:43] offset:{B_P2}")
    A("s_mov_b64 exec, 1")
    A(f"global_store_byte v{vHs2}, v{vHB}, s[14:15]")
    A("s_mov_b64 exec, -1")
    A.stamp(6)
    m1, l1, m2, l2 = vG + 16, vG + 17, vG + 20, vG + 21

    def ml_weights():
        A(f"v_and_b32 v{m1}, 0xffffff00, v{m1}")
        A(f"v_and_b32 v{m2}, 0xffffff00, v{m2}")
        A(f"v_max_f32 v{t0}, v{m1}, v{m2}")
        k.allreduce16("v_max_f32", [t0])
        A(f"s_mov_b32 s8, {LOG2E:#x}")
        A(f"v_sub_f32 v{m1}, v{m1}, v{t0}")
        A(f"v_sub_f32 v{m2}, v{m2}, v{t0}")
        A(f"v_mul_f32 v{m1}, s8, v{m1}")
        A(f"v_mul_f32 v{m2}, s8, v{m2}")
        A(f"v_exp_f32 v{m1}, v{m1}")
        A(f"v_exp_f32 v{m2}, v{m2}")
        A(f"v_mul_f32 v{t1}, v{m1}, v{l1}")
        A(f"v_fmac_f32 v{t1}, v{m2}, v{l2}")
        k.allreduce16("v_add_f32", [t1])
        A(f"v_rcp_f32 v{t1}, v{t1}")
        A(f"v_mul_f32 v{m1}, v{t1}, v{m1}")
        A(f"v_mul_f32 v{m2}, v{t1}, v{m2}")
    if o["mlsep"]:
        k.poll(ml_loads, [vG + 16, vG + 20], vAcc, True, preissued=bool(o["mlpre"]), first_wait=2 if o["mlpre"] else 0)
        A.stamp(1, 1)
        ml_weights()
    if o["hint2"]:
        if o["NH2"]:
            k.hint_ring("hr2", vHr2, 0, [vRing + 16 + i for i in range(o["NH2"])], "s_mov_b64 exec, 0xff", gap=1)
        else:
            k.hint_wait(vHr2, 0, t4)
    A.stamp(2, 1)

    def tail_dma():
        A("s_lshl_b32 s8, s3, 11")
        for base, sreg in ((W1L, 18), (W1L + 1024, 22), (W3L, 20), (W3L + 1024, 24)):
            A(f"s_add_u32 m0, s8, {base}")
            A(f"global_load_lds_dwordx4 v{vTD}, s[{sreg}:{sreg + 1}] nt")
        A(f"s_add_u32 m0, s8, {W2L}")
        A(f"global_load_lds_dwordx4 v{vTD + 1}, s[26:27] nt")
        A(f"global_load_lds_dwordx4 v{vTD + 2}, s[26:27] offset:1024 nt")

    def hook3():
        if o["ctail"]:
            pass
        else:
            k.lds_signal(F_G2)
        k.lds_wait(F_WO, 1, t4)
        for ks in range(4):
            for hf in range(2):
                A(f"ds_read_b64_tr_b16 {vr(vW + 4 * ks + 2 * hf, 2)}, v{vTR128} offset:{WOL - WQL + ks * 4096 + hf * 2048}")
    if o["lam"]:
        A("s_mov_b32 s10, 0x0c0c0400")
        A("s_mov_b32 s11, 0x04000c0c")
        k.poll(h2_loads, [(vG + b_ + i_, 2 * (b_ // 4 % 2) + i_) for b_ in (0, 4, 8, 12) for i_ in range(2)], vAcc, True, hook=hook3,
               first_wait=0)
        A(f"v_perm_b32 v{m1}, v{vG + 3}, v{vG + 2}, s10")
        A(f"v_perm_b32 v{l1}, v{vG + 7}, v{vG + 6}, s11")
        A(f"v_perm_b32 v{m2}, v{vG + 11}, v{vG + 10}, s10")
        A(f"v_perm_b32 v{l2}, v{vG + 15}, v{vG + 14}, s11")
        A(f"v_or_b32 v{m1}, v{m1}, v{l1}")
        A(f"v_or_b32 v{m2}, v{m2}, v{l2}")
        A(f"v_max_f32 v{t0}, v{m1}, v{m2}")
        k.allreduce16("v_max_f32", [t0])
        A(f"v_sub_f32 v{m1}, v{m1}, v{t0}")
        A(f"v_sub_f32 v{m2}, v{m2}, v{t0}")
        A(f"v_exp_f32 v{m1}, v{m1}")
        A(f"v_exp_f32 v{m2}, v{m2}")
    elif o["mlsep"]:
        k.poll(h2_loads, [vG, vG + 4, vG + 8, vG + 12], vAcc, True, hook=hook3)
    else:
        k.poll(ml_loads + h2_loads, [vG + 16, vG + 20, vG, vG + 4, vG + 8, vG + 12], vAcc, True, hook=hook3)
        ml_weights()
    A.stamp(7)

    def tail_mid():
        skp = k.newlabel("notail")
        A("s_cmp_eq_u32 s4, 7")
        A(f"s_cbranch_scc1 {skp}")
        tail_dma()
        k.label(skp)
    for i in range(8):
        A(f"v_mul_f32 v{vG + i}, v{m1}, v{vG + i}")
    for i in range(8):
        A(f"v_fmac_f32 v{vG + i}, v{m2}, v{vG + 8 + i}")
    if o["lin3"]:
        for i in range(4):
            A(f"v_cvt_pk_bf16_f32 v{vX + i}, v{vG + 2 * i}, v{vG + 2 * i + 1}")
        A(f"v_add_u32 v{t2}, {QF}, v{vWL}")
        A(f"ds_write_b128 v{t2}, {vr(vX, 4)}")
        k.lds_signal(F_O)
        A(f"v_add_f32 v{t1}, v{m1}, v{m2}")
        k.allreduce16("v_add_f32", [t1])
        A(f"v_rcp_f32 v{t1}, v{t1}")
        k.lds_wait(F_O, 4, t4, [f"ds_read_b128 {vr(vB + 4 * ks, 4)}, v{vL16Q} offset:{ks * 1024}" for ks in range(4)])
        for ks in range(4):
            A(f"v_mfma_f32_16x16x32_bf16 {vr(vD, 4)}, {vr(vW + 4 * ks, 4)}, {vr(vB + 4 * ks, 4)}, {'0' if ks == 0 else vr(vD, 4)}")
        k.allreduce16("v_add_f32", list(range(vD, vD + 4)))
        for i in range(4):
            A(f"v_mul_f32 v{vD + i}, v{t1}, v{vD + i}")
    else:
        if o["lam"]:
            A(f"v_add_f32 v{t1}, v{m1}, v{m2}")
            k.allreduce16("v_add_f32", [t1] + list(range(vG, vG + 8)))
            A(f"v_rcp_f32 v{t1}, v{t1}")
            for i in range(8):
                A(f"v_mul_f32 v{vG + i}, v{t1}, v{vG + i}")
        else:
            k.allreduce16("v_add_f32", list(range(vG, vG + 8)))
        for i in range(4):
            A(f"v_cvt_pk_bf16_f32 v{vX + i}, v{vG + 2 * i}, v{vG + 2 * i + 1}")
        A("s_mov_b64 exec, s[68:69]")
        A(f"ds_write_b128 v{vOFw}, {vr(vX, 4)}")
        k.sync(F_O, t4, [f"ds_read_b128 {vr(vB + 4 * ks, 4)}, v{vQ16} offset:{ks * 64}" for ks in range(4)], o["ctail"], mid=tail_mid if o["ctail"] == 1 else None)
        for ks in range(4):
            A(f"v_mfma_f32_16x16x32_bf16 {vr(vD, 4)}, {vr(vW + 4 * ks, 4)}, {vr(vB + 4 * ks, 4)}, {'0' if ks == 0 else vr(vD, 4)}")
    k.tag4(vD)
    A("s_mov_b64 exec, s[68:69]")
    A(f"global_store_dwordx4 v{vP3a}, {vr(vD, 4)}, s[52:53] sc1")
    A("s_mov_b64 exec, -1")
    A.stamp(8)
    A("s_cmp_eq_u32 s4, 7")
    A("s_cbranch_scc1 L_final")

    if o["ctail"] == 2:
        tail_dma()
    vW13 = vKF
    vW2 = vKF + 16

    def hook4():
        if o["ctail"]:
            A("s_waitcnt vmcnt(0)")
            A("s_barrier")
        else:
            k.lds_wait(F_W13, 1, t4)
        for mat, base in enumerate((W1L, W3L)):
            for ks in range(2):
                for hf in range(2):
                    A(f"ds_read_b64_tr_b16 {vr(vW13 + 8 * mat + 4 * ks + 2 * hf, 2)}, v{vTR128} offset:{base - WQL + ks * 4096 + hf * 2048}")
        if not o["ctail"]:
            k.lds_wait(F_W2, 1, t4)
        for u in range(2):
            for hf in range(2):
                A(f"ds_read_b64_tr_b16 {vr(vW2 + 4 * u + 2 * hf, 2)}, v{vTW2 + u} offset:{hf * 4096}")
    if o["ptl"] & 2:
        A(f"global_load_dword v{vJunk}, v{vWL}, s[42:43] {o['ptf']}")
    if o["ptc"]:
        A(f"global_load_dword v{vJunk}, v{vH4}, s[44:45] offset:{B_ST} sc1")
        A(f"global_load_dword v{vJunk}, v{vH4 + 1}, s[44:45] offset:{B_P4} sc1")
    if o["ptp"]:
        skp = k.newlabel("skp")
        A("s_cmp_ge_u32 s3, 2")
        A(f"s_cbranch_scc1 {skp}")
        A("s_cmp_eq_u32 s3, 0")
        A("s_cselect_b32 exec_lo, 0xff000000, -1")
        A(f"global_store_dwordx4 v{vWL}, {vr(vZ, 4)}, s[42:43]")
        A("s_mov_b64 exec, -1")
        k.label(skp)

    def h3_issue(s):
        A(f"global_load_dwordx4 {vr(vRing + 8 * s, 4)}, v{vH3}, s[52:53] sc1")
        A(f"global_load_dwordx4 {vr(vRing + 8 * s + 4, 4)}, v{vH3 + 1}, s[52:53] sc1")

    def h3_ok(s):
        for i in range(4):
            A(f"v_add_f32 v{vG + i}, v{vRing + 8 * s + i}, v{vRing + 8 * s + 4 + i}")
    if o["L3"]:
        A(f"s_sleep {o['L3']}")
    if o["ctail"]:
        hook4()
    k.ring_poll("h3", o["N3"], h3_issue, lambda s: [vRing + 8 * s, vRing + 8 * s + 4], 2, vAcc, False, o["G3"], h3_ok,
                hook=None if o["ctail"] else hook4, pace=o["P3S"])
    A.stamp(9)
    k.allreduce16("v_add_f32", list(range(vG, vG + 4)))
    for i in range(2):
        k.round_bf16_pair(vG + 2 * i, vG + 2 * i + 1, vG + 2 * i, vG + 2 * i + 1, t0 + i)
    for i in range(4):
        A(f"v_add_f32 v{vG + i}, v{vG + i}, v{vXF + i}")
    for i in range(2):
        A(f"v_cvt_pk_bf16_f32 v{vX + i}, v{vG + 2 * i}, v{vG + 2 * i + 1}")
    A("s_mov_b64 exec, s[68:69]")
    A(f"ds_write_b64 v{vHFw}, {vr(vX, 2)}")
    k.sync(F_H, t4,
           [f"ds_read_b128 {vr(vB + 4 * ks, 4)}, v{vHFb} offset:{ks * 64}" for ks in range(2)] +
           [f"ds_read_b128 {vr(vB + 8 + 4 * ks, 4)}, v{vHFa} offset:{ks * 64}" for ks in range(2)], o["bar"] & 1)
    vS = vML
    for ks in range(2):
        A(f"v_mfma_f32_16x16x32_bf16 {vr(vS, 4)}, {vr(vB + 8 + 4 * ks, 4)}, {vr(vB + 4 * ks, 4)}, {'0' if ks == 0 else vr(vS, 4)}")
        A(f"v_mfma_f32_16x16x32_bf16 {vr(vD, 4)}, {vr(vW13 + 4 * ks, 4)}, {vr(vB + 4 * ks, 4)}, {'0' if ks == 0 else vr(vD, 4)}")
        A(f"v_mfma_f32_16x16x32_bf16 {vr(vD + 4, 4)}, {vr(vW13 + 8 + 4 * ks, 4)}, {vr(vB + 4 * ks, 4)}, {'0' if ks == 0 else vr(vD + 4, 4)}")
    skipst = k.newlabel("skipst")
    A("s_cmp_lg_u32 s3, 0")
    A(f"s_cbranch_scc1 {skipst}")
    A("s_nop 3")
    A(f"v_mov_b32_dpp v{vS + 1}, v{vS} row_shl:1 {DPPM}")
    k.tag4(vS)
    A("s_mov_b64 exec, 1")
    A(f"global_store_dwordx4 v{vL16}, {vr(vS, 4)}, s[42:43] offset:{B_ST}")
    A("s_mov_b64 exec, -1")
    k.label(skipst)
    A("s_nop 5")
    for i in range(4):
        A(f"v_cndmask_b32 v{vD + i}, v{vD + i}, v{vD + 4 + i}, s[76:77]")
    k.tag4(vD)
    A("s_mov_b64 exec, s[74:75]")
    A(f"global_store_dwordx4 v{vP4a}, {vr(vD, 4)}, s[42:43] offset:{B_P4}")
    if o["hint4"]:
        A("s_mov_b64 exec, 1")
        A(f"global_store_byte v{vHs4}, v{vHB}, s[14:15] offset:512")
    A("s_mov_b64 exec, -1")
    A.stamp(10)
    for i in range(4):
        A(f"v_mov_b32 v{vZ + i}, 0")
    k.tag4(vZ)
    A("s_lshl_b32 s8, s3, 4")
    A(f"v_mov_b32 v{t7}, s8")
    if o["hint4"]:
        k.hint_wait(vHr4, 512, t4)
    A.stamp(4, 1)
    k.poll([f"global_load_dwordx4 {vr(vG + 4, 4)}, v{vH4}, s[44:45] offset:{B_ST} sc1",
            f"global_load_dwordx4 {vr(vG, 4)}, v{vH4 + 1}, s[44:45] offset:{B_P4} sc1"],
           [vG + 4, vG], vAcc, True)
    A.stamp(11)
    sq, sm = vG + 4, vG + 5
    for md in ("quad_perm:[1,0,3,2]", "quad_perm:[2,3,0,1]", "row_half_mirror"):
        for r_ in (sm, sq):
            A(f"v_add_f32_dpp v{r_}, v{r_}, v{r_} {md} {DPPM}")
    k.ln_scalars(sm, sq)
    A(f"v_sub_f32 v{sm}, 0, v{sm}")
    A(f"v_cndmask_b32 v{sm}, v{sm}, 1.0, s[70:71]")
    for i in range(4):
        A(f"v_mul_f32 v{vG + i}, v{sm}, v{vG + i}")
    A(f"v_cndmask_b32 v{t0}, v{vG + 1}, v{vG}, s[66:67]")
    A(f"v_cndmask_b32 v{t1}, v{vG + 3}, v{vG + 2}, s[66:67]")
    A(f"v_cndmask_b32 v{t2}, v{vG}, v{vG + 1}, s[66:67]")
    A(f"v_cndmask_b32 v{t3}, v{vG + 2}, v{vG + 3}, s[66:67]")
    A(f"v_add_f32_dpp v{t2}, v{t0}, v{t2} quad_perm:[1,0,3,2] {DPPM}")
    A(f"v_add_f32_dpp v{t3}, v{t1}, v{t3} quad_perm:[1,0,3,2] {DPPM}")
    A(f"v_cndmask_b32 v{t0}, v{t3}, v{t2}, s[76:77]")
    A(f"v_cndmask_b32 v{t1}, v{t2}, v{t3}, s[76:77]")
    A(f"v_add_f32_dpp v{t1}, v{t0}, v{t1} quad_perm:[2,3,0,1] {DPPM}")
    A(f"v_add_f32_dpp v{t1}, v{t1}, v{t1} row_ror:4 {DPPM}")
    A(f"v_add_f32_dpp v{t1}, v{t1}, v{t1} row_ror:8 {DPPM}")
    A(f"v_mul_f32 v{t1}, v{sq}, v{t1}")
    k.round_bf16(t1, t1)
    A(f"v_mov_b32 v{t0}, v{t1}")
    A(f"v_permlane16_swap_b32 v{t1}, v{t0}")
    A(f"s_mov_b32 s8, {LOG2E | 0x80000000:#x}")
    A(f"v_mul_f32 v{t2}, s8, v{t1}")
    A(f"v_exp_f32 v{t2}, v{t2}")
    A(f"v_add_f32 v{t2}, 1.0, v{t2}")
    A(f"v_rcp_f32 v{t2}, v{t2}")
    A(f"v_mul_f32 v{t2}, v{t2}, v{t1}")
    k.round_bf16(t2, t2)
    A(f"v_mul_f32 v{t2}, v{t2}, v{t0}")
    A(f"v_cvt_pk_bf16_f32 v{t2}, v{t2}, v{t2}")
    A("s_mov_b32 exec_lo, 15")
    A("s_mov_b32 exec_hi, 15")
    A(f"ds_write_b16 v{vHHw}, v{t2}")
    k.sync(F_HH, t4, [f"ds_read_b128 {vr(vB, 4)}, v{vHHr}"], o["bar"] & 2)
    for u in range(2):
        A(f"v_mfma_f32_16x16x32_bf16 {vr(vD + 4 * u, 4)}, {vr(vW2 + 4 * u, 4)}, {vr(vB, 4)}, 0")
    A("s_mov_b64 exec, 1")
    A(f"global_store_dwordx4 v{t7}, {vr(vZ, 4)}, s[42:43] offset:{B_ACK}")
    A("s_mov_b64 exec, s[0:1]")
    for i in range(4):
        A(f"v_cndmask_b32 v{vD + i}, v{vD + i}, v{vD + 4 + i}, s[66:67]")
    k.tag4(vD)
    A(f"global_store_dwordx4 v{vP5a}, {vr(vD, 4)}, s[54:55] sc1")
    A("s_mov_b64 exec, -1")
    A.stamp(5, 1)
    if o.get("dirty", 0):
        A("s_lshl_b32 s8, s2, 2")
        A("s_add_u32 s8, s8, s3")
        A(f"s_mul_i32 s8, s8, {o['dirty'] * 1024}")
        A("s_add_u32 s8, s8, 0x1000000")
        A(f"v_add_u32 v{t0}, s8, v{vL16}")
        for i in range(o["dirty"]):
            A(f"global_store_dwordx4 v{t0}, {vr(vZ, 4)}, s[38:39]")
            A(f"v_add_u32 v{t0}, 1024, v{t0}")
    A("s_cmp_lg_u32 s3, 0")
    A("s_cbranch_scc1 L_stamp_end")
    A(f"s_mul_i32 s8, s9, {2 * BS}")
    A(f"v_lshrrev_b32 v{t0}, 3, v{vLane}")
    A(f"v_and_b32 v{t0}, 3, v{t0}")
    A(f"v_lshlrev_b32 v{t0}, 3, v{t0}")
    A(f"v_bfe_u32 v{t1}, v{vLane}, 2, 1")
    A(f"v_add_u32 v{t0}, v{t0}, v{t1}")
    A(f"v_mul_u32_u24 v{t0}, {BS}, v{t0}")
    A(f"v_and_b32 v{t1}, 3, v{vLane}")
    A(f"v_lshl_add_u32 v{t0}, v{t1}, 4, v{t0}")
    A(f"v_add_u32 v{t0}, s8, v{t0}")
    A("s_mov_b32 exec_hi, 0")
    A("s_mov_b32 s61, 0")
    k.label("L_ack")
    A(f"global_load_dwordx4 {vr(vG, 4)}, v{t0}, s[40:41] offset:{B_ACK} sc1")
    A("s_waitcnt vmcnt(0)")
    k.check(vAcc, [vG])
    A(f"v_cmp_ne_u32 vcc, 0, v{vAcc}")
    A("s_cbranch_vccz L_stamp_end0")
    A("s_sleep 2")
    A("s_add_u32 s61, s61, 1")
    A(f"s_cmp_lt_u32 s61, {POLL_LIMIT}")
    A("s_cbranch_scc1 L_ack")
    A("s_call_b64 s[64:65], L_panic")
    A("s_branch L_stamp_end0")

    k.label("L_final")
    A("s_lshr_b32 s8, s5, 2")
    A("s_lshl_b32 s8, s8, 14")
    A("s_and_b32 s10, s5, 3")
    A("s_lshl_b32 s10, s10, 7")
    A("s_add_u32 s8, s8, s10")
    A("s_lshl_b32 s10, s3, 4")
    A("s_add_u32 s8, s8, s10")
    A(f"v_lshlrev_b32 v{t1}, 9, v{vLane}")
    A(f"v_add_u32 v{t1}, s8, v{t1}")
    for i in range(8):
        A(f"v_mov_b32 v{vG + i}, 0")
    if o["L7"]:
        A(f"s_sleep {o['L7']}")
    A("s_mov_b32 exec_hi, 0")
    k.poll([f"global_load_dwordx4 {vr(vG, 4)}, v{t1}, s[52:53] sc1"], [vG], vAcc, False)
    A("s_mov_b64 exec, -1")
    A.stamp(9)
    k.reduce64_to_lane63(list(range(vG, vG + 4)))
    for i in range(2):
        k.round_bf16_pair(vG + 2 * i, vG + 2 * i + 1, vG + 2 * i, vG + 2 * i + 1, t0)
    for i in range(4):
        A(f"v_add_f32 v{vF + i}, v{vG + i}, v{vXF + i}")
    for i in range(2):
        k.round_bf16_pair(vF + 2 * i, vF + 2 * i + 1, vF + 2 * i, vF + 2 * i + 1, t0)
    A("s_mul_i32 s8, s9, 28672")
    A("s_lshl_b32 s10, s7, 6")
    A("s_add_u32 s8, s8, s10")
    A("s_lshl_b32 s10, s3, 4")
    A("s_add_u32 s8, s8, s10")
    A(f"v_lshlrev_b32 v{t1}, 9, v{vLane}")
    A(f"v_add_u32 v{t1}, s8, v{t1}")
    A("s_lshl_b32 s8, s5, 5")
    A("s_lshl_b32 s10, s3, 3")
    A("s_add_u32 s8, s8, s10")
    A(f"v_mov_b32 v{t2}, s8")
    A("s_mov_b32 exec_hi, 0x00ffffff")
    def h5_issue(s):
        A(f"global_load_dwordx4 {vr(vRing + 4 * s, 4)}, v{t1}, s[54:55] sc1")

    def h5_ok(s):
        for i in range(4):
            A(f"v_mov_b32 v{vG + 4 + i}, v{vRing + 4 * s + i}")
    if o["L5"]:
        A(f"s_sleep {o['L5']}")
    k.ring_poll("h5", o["N3"], h5_issue, lambda s: [vRing + 4 * s], 1, vAcc, False, o["G3"], h5_ok, pace=o["P5S"])
    A("s_mov_b64 exec, -1")
    A.stamp(11)
    k.reduce64_to_lane63(list(range(vG + 4, vG + 8)))
    for i in range(2):
        k.round_bf16_pair(vG + 4 + 2 * i, vG + 5 + 2 * i, vG + 4 + 2 * i, vG + 5 + 2 * i, t0 + i)
    for i in range(4):
        A(f"v_add_f32 v{vF + i}, v{vG + 4 + i}, v{vF + i}")
    if o.get("errinj", 0):
        import struct
        bits = struct.unpack("<I", struct.pack("<f", o["errinj"] / 1000.0))[0]
        A("s_or_b32 s8, s5, s3")
        A("s_cmp_eq_u32 s8, 0")
        A(f"s_cselect_b32 s8, {bits:#x}, 0")
        A(f"v_add_f32 v{vF}, s8, v{vF}")
    for i in range(2):
        A(f"v_cvt_pk_bf16_f32 v{vX + i}, v{vF + 2 * i}, v{vF + 2 * i + 1}")
    A("s_mov_b32 exec_lo, 0")
    A("s_mov_b32 exec_hi, 0x80000000")
    A(f"global_store_dwordx2 v{t2}, {vr(vX, 2)}, s[34:35]")
    A("s_or_b32 s8, s5, s3")
    A("s_cmp_lg_u32 s8, 0")
    A("s_cbranch_scc1 L_stamp_end0")
    A(f"v_mov_b32 v{t0}, 0")
    A(f"v_mov_b32 v{t1}, s13")
    A(f"global_store_dword v{t0}, v{t1}, s[38:39]")
    k.label("L_stamp_end0")
    A("s_mov_b64 exec, -1")
    k.label("L_stamp_end")
    if o["exp"]:
        A("s_cmp_lg_u32 s2, 7")
        A("s_cbranch_scc1 L_end")
        A("s_cmp_lg_u32 s3, 0")
        A("s_cbranch_scc1 L_end")
        if o["exp"] == 1:
            A("s_memrealtime s[98:99]")
            A("s_waitcnt lgkmcnt(0)")
            A("s_sub_u32 s8, s98, s96")
            A("s_mul_i32 s8, s8, 10")
            k.label("L_exp")
            A("s_memrealtime s[10:11]")
            A("s_waitcnt lgkmcnt(0)")
            A("s_sub_u32 s10, s10, s98")
            A("s_cmp_lt_u32 s10, s8")
            A("s_cbranch_scc1 L_exp")
        else:
            A("s_memtime s[98:99]")
            k.label("L_exp")
            A("s_memtime s[10:11]")
            A("s_waitcnt lgkmcnt(0)")
            A("s_sub_u32 s10, s10, s98")
            A("s_cmp_lt_u32 s10, 240000")
            A("s_cbranch_scc1 L_exp")
    if dbgtime:
        A("s_cmp_lg_u32 s4, 7")
        A("s_cbranch_scc1 L_end")
        A("s_and_b32 s8, s5, 3")
        A("s_or_b32 s8, s8, s3")
        A("s_cmp_lg_u32 s8, 0")
        A("s_cbranch_scc1 L_end")
        A("s_memrealtime s[98:99]")
        A("s_waitcnt lgkmcnt(0)")
        A("s_not_b32 s96, s96")
        A(f"v_mov_b32 v{t0}, 0")
        A(f"v_mov_b32 v{t1}, s96")
        A(f"v_mov_b32 v{t2}, s98")
        A("s_mov_b64 exec, 1")
        A(f"global_atomic_umax v{t0}, v{t1}, s[36:37]")
        A(f"global_atomic_umax v{t0}, v{t2}, s[36:37] offset:4")
    if stamps:
        A("s_memrealtime s[76:77]")
        A("s_waitcnt lgkmcnt(0)")
        A("s_lshl_b32 s8, s2, 3")
        A("s_add_u32 s8, s8, s3")
        A("s_lshl_b32 s8, s8, 6")
        A(f"s_add_u32 s8, s8, {WS_STAMP}")
        A(f"v_mov_b32 v{t0}, s8")
        for i in range(12):
            A(f"v_mov_b32 v{vG + i}, {'s%d' % (78 + 2 * i) if i in stamps else 0}")
        A(f"v_mov_b32 v{vG + 12}, s76")
        A("s_mov_b64 exec, 1")
        for q in range(4):
            A(f"global_store_dwordx4 v{t0}, {vr(vG + 4 * q, 4)}, s[38:39] offset:{q * 16}")
        A("s_mov_b64 exec, 0xffff")
        A(f"s_add_u32 s8, s8, {0x40000}")
        A(f"v_add_u32 v{t0}, s8, v{vL4}")
        A(f"global_store_dword v{t0}, v{k.vCnt}, s[38:39]")
    A("s_endpgm")

    k.label("L_loader")
    a0, a1, a2, a3, b0, b1, cwq, cwo, cw13, d0, d1, b2, b3 = [vG + i for i in (0, 1, 2, 3, 4, 5, 6, 7, 8, 9, 10, 11, 23)]
    A(f"v_and_b32 v{t0}, 7, v{vLane}")
    A(f"v_lshlrev_b32 v{t1}, 1, v{vQd}")
    A(f"v_xor_b32 v{t0}, v{t0}, v{t1}")
    A(f"v_lshlrev_b32 v{t0}, 4, v{t0}")
    A(f"v_bfe_u32 v{t2}, v{vLane}, 3, 2")
    A(f"v_lshrrev_b32 v{t3}, 5, v{vLane}")
    A(f"v_lshl_add_u32 v{t2}, v{t3}, 3, v{t2}")
    A(f"v_lshl_add_u32 v{cwq}, v{t2}, 13, v{t0}")
    A("s_lshr_b32 s7, s5, 3")
    A("s_and_b32 s8, s5, 7")
    A("s_lshl_b32 s9, s7, 20")
    A("s_lshl_b32 s10, s4, 10")
    A("s_add_u32 s9, s9, s10")
    A("s_lshl_b32 s10, s8, 7")
    A("s_add_u32 s9, s9, s10")
    if o["earlyq"]:
        A("s_waitcnt lgkmcnt(0)")
    A("s_add_u32 s52, s22, s9"); A("s_addc_u32 s53, s23, 0")

    pre_rest = []
    P = pre_rest.append
    P(f"v_lshrrev_b32 v{t1}, 3, v{vLane}")
    P(f"v_lshl_add_u32 v{cwo}, v{t1}, 10, v{t0}")
    P(f"v_mul_u32_u24 v{cw13}, 3584, v{t1}")
    P(f"v_add_u32 v{cw13}, v{cw13}, v{t0}")
    P(f"v_xor_b32 v{t0}, v{vR}, v{vQd}")
    P(f"v_lshlrev_b32 v{t1}, 8, v{vQd}")
    P(f"v_lshl_add_u32 v{a0}, v{t0}, 4, v{t1}")
    P(f"v_xor_b32 v{a1}, 64, v{a0}")
    P(f"v_xor_b32 v{a2}, 128, v{a0}")
    P(f"v_xor_b32 v{a3}, 192, v{a0}")
    P(f"v_lshlrev_b32 v{t0}, 1, v{vQd}")
    P(f"v_xor_b32 v{t0}, v{vR}, v{t0}")
    P(f"v_lshl_add_u32 v{b0}, v{t0}, 4, v{t1}")
    P(f"v_xor_b32 v{b1}, 128, v{b0}")
    P(f"v_lshlrev_b32 v{t1}, 10, v{vQd}")
    P(f"v_lshl_add_u32 v{d0}, v{t0}, 4, v{t1}")
    P(f"v_xor_b32 v{d1}, 128, v{d0}")
    if o["ilv"]:
        dl = {1: [0, 31744, 2 * 31744, 3 * 31744], 2: [0, 0, 0, 0], 3: [0, 0, 65536 - 2048, 65536 - 2048]}[o["ilv"]]
        P(f"v_add_u32 v{b2}, {dl[2]}, v{b0}")
        P(f"v_add_u32 v{b3}, {dl[3]}, v{b1}")
        P(f"v_add_u32 v{b1}, {dl[1]}, v{b1}")
        for i_, r_ in enumerate((a1, a2, a3)):
            P(f"v_add_u32 v{r_}, {dl[i_ + 1]}, v{r_}")
        P(f"s_mul_i32 s12, s2, {o['rot']}")
    P("s_lshl_b32 s6, s4, 24")
    P(f"s_lshl_b32 s9, s5, {(15, 10, 12, 11)[o['ilv']]}")
    P("s_add_u32 s6, s6, s9")
    P(f"s_add_u32 s6, s6, {61440 * 256}")
    P("s_add_u32 s40, s18, s6"); P("s_addc_u32 s41, s19, 0")
    P("s_add_u32 s42, s20, s6"); P("s_addc_u32 s43, s21, 0")
    P("s_lshl_b32 s6, s4, 2"); P("s_add_u32 s6, s6, s7")
    P("s_lshl_b32 s9, s6, 17"); P("s_lshl_b32 s10, s8, 7"); P("s_add_u32 s9, s9, s10")
    P("s_add_u32 s44, s24, s9"); P("s_addc_u32 s45, s25, 0")
    P(f"s_mul_i32 s9, s8, {64 * 3584}"); P("s_lshl_b32 s10, s6, 7"); P("s_add_u32 s9, s9, s10")
    P("s_add_u32 s46, s28, s9"); P("s_addc_u32 s47, s29, 0")
    P("s_add_u32 s48, s30, s9"); P("s_addc_u32 s49, s31, 0")
    P("s_lshl_b32 s9, s4, 18"); P("s_lshl_b32 s10, s8, 15"); P("s_add_u32 s9, s9, s10")
    P("s_lshl_b32 s10, s7, 8"); P("s_add_u32 s9, s9, s10")
    P("s_add_u32 s50, s32, s9"); P("s_addc_u32 s51, s33, 0")

    def seg_ops(name):
        ops = []
        if name == "q":
            prevk = 0
            for i in range(16):
                krow = (i >> 2) * 32 + (0, 16, 4, 20)[i & 3]
                pre = [f"s_mov_b32 m0, {WQL + i * 1024}"]
                d = (krow - prevk) * 8192
                if d > 0:
                    pre += [f"s_add_u32 s52, s52, {d}", "s_addc_u32 s53, s53, 0"]
                elif d < 0:
                    pre += [f"s_sub_u32 s52, s52, {-d}", "s_subb_u32 s53, s53, 0"]
                prevk = krow
                ops.append(pre + [f"global_load_lds_dwordx4 v{cwq}, s[52:53] nt"])
            return ops, F_WQ
        if name in "kv":
            base, sreg, regs, fl = (KL, 40, (a0, a1, a2, a3), F_K) if name == "k" else (VL, 42, (b0, b1, b0, b1), F_V)
            for i in range(32):
                pre = []
                if o["ilv"]:
                    regs = (a0, a1, a2, a3) if name == "k" else (b0, b1, b2, b3)
                    if i % 4 == 0:
                        pre += [f"s_add_u32 s13, s12, {i // 4}", "s_and_b32 s13, s13, 7", "s_lshl_b32 s6, s13, 12",
                                f"s_add_u32 m0, s6, {base}", "s_lshl_b32 s6, s13, 17",
                                f"s_add_u32 s60, s{sreg}, s6", f"s_addc_u32 s61, s{sreg + 1}, 0"]
                    ops.append(pre + [f"global_load_lds_dwordx4 v{regs[i & 3]}, s[60:61] offset:{(i & 3) * 1024} nt"])
                    continue
                if i % 4 == 0:
                    pre += [f"s_mov_b32 m0, {base + i * 1024}"]
                    if i:
                        pre += [f"s_add_u32 s{sreg}, s{sreg}, 4096", f"s_addc_u32 s{sreg + 1}, s{sreg + 1}, 0"]
                ops.append(pre + [f"global_load_lds_dwordx4 v{regs[i & 3]}, s[{sreg}:{sreg + 1}] offset:{(i & 3) * 1024} nt"])
            return ops, fl
        if name == "o":
            for i in range(16):
                pre = [f"s_mov_b32 m0, {WOL + i * 1024}"]
                if i:
                    pre += ["s_add_u32 s44, s44, 8192", "s_addc_u32 s45, s45, 0"]
                ops.append(pre + [f"global_load_lds_dwordx4 v{cwo}, s[44:45] nt"])
            return ops, F_WO
        if name == "a":
            for base, sreg in ((W1L, 46), (W3L, 48)):
                for i in range(8):
                    pre = [f"s_mov_b32 m0, {base + i * 1024}"]
                    if i:
                        pre += [f"s_add_u32 s{sreg}, s{sreg}, {8 * 3584}", f"s_addc_u32 s{sreg + 1}, s{sreg + 1}, 0"]
                    ops.append(pre + [f"global_load_lds_dwordx4 v{cw13}, s[{sreg}:{sreg + 1}] nt"])
            return ops, F_W13
        if name == "b":
            for i in range(8):
                pre = [f"s_mov_b32 m0, {W2L + i * 1024}"]
                if i:
                    pre += ["s_add_u32 s50, s50, 4096", "s_addc_u32 s51, s51, 0"]
                ops.append(pre + [f"global_load_lds_dwordx4 v{(d0, d1)[i & 1]}, s[50:51] nt"])
            return ops, F_W2

    def emit_loader(order, start_n=0, pend=None, n=0):
        pend = list(pend or [])

        def drain():
            for (last, f) in list(pend):
                A(f"s_waitcnt vmcnt({n - 1 - last})")
                k.lds_signal(f)
            pend.clear()
        for name, D in order:
            if name == "G":
                drain()
                k.lds_wait(F_G2, 4, t4, sleep=1)
                continue
            ops, fl = seg_ops(name)
            Dspec = [int(x) for x in str(D).split(":")]
            for iop, op in enumerate(ops):
                D = Dspec[0] if len(Dspec) == 1 or iop < Dspec[1] else Dspec[2]
                if o["TZ"] and n == 16 + o["TX"] and (15, F_WQ) in pend:
                    A(f"s_waitcnt vmcnt({o['TX']})")
                    k.lds_signal(F_WQ)
                    pend.remove((15, F_WQ))
                if o["TZ"] and n < 16 + o["TZ"] and n >= 16 + o["TX"]:
                    sk = k.newlabel("tz")
                    A("s_cmp_ge_u32 s11, 4")
                    A(f"s_cbranch_scc1 {sk}")
                    A(f"s_waitcnt vmcnt({o['DS'] - 1})")
                    if (15, F_WQ) in pend and n - o["DS"] >= 15:
                        k.lds_signal(F_WQ)
                        pend.remove((15, F_WQ))
                    A(f"ds_read_b32 v{t4}, v{k.vFlag} offset:{F_G1}")
                    A("s_waitcnt lgkmcnt(0)")
                    A(f"v_readfirstlane_b32 s11, v{t4}")
                    k.label(sk)
                if n >= D:
                    A(f"s_waitcnt vmcnt({D - 1})")
                    for (last, f) in list(pend):
                        if last <= n - D:
                            k.lds_signal(f)
                            pend.remove((last, f))
                            if f == F_WQ and o["pgt"] == 2:
                                A("s_mov_b64 exec, 1")
                                A(f"global_load_dword v{vJunk}, v{t5}, s[54:55] nt")
                                A(f"global_load_dword v{vJunk}, v{t5}, s[58:59] nt")
                                A("s_mov_b64 exec, -1")
                                n += 2
                for s_ in op:
                    A(s_)
                n += 1
                if name == "v" and o["vq"] and iop % 8 == 7:
                    pend.append((n - 1, fl))
            if name == "v" and o["vq"]:
                pass
            else:
                pend.append((n - 1, fl))
        drain()

    order = []
    for tok in o["order"].split(","):
        order.append((tok[0], tok[1:] or "0"))
    if o["ctail"]:
        order = [x for x in order if x[0] not in "abG"]
    assert order[0][0] == "q"
    ops, fl = seg_ops("q")
    for op in ops:
        for s_ in op:
            A(s_)
    if o["earlyq"]:
        A("s_barrier")
    for s_ in pre_rest:
        A(s_)
    A("s_mov_b32 s11, 0")
    npt = 0
    if o["pgt"] == 2:
        A("s_lshl_b32 s6, s4, 24")
        A("s_lshl_b32 s9, s8, 17")
        A("s_add_u32 s6, s6, s9")
        A(f"s_add_u32 s6, s6, {61440 * 256}")
        A("s_add_u32 s54, s20, s6"); A("s_addc_u32 s55, s21, 0")
        A("s_mov_b32 s58, s34"); A("s_mov_b32 s59, s35")
        A("s_cmp_eq_u32 s7, 1")
        A("s_cselect_b32 s54, s44, s54"); A("s_cselect_b32 s55, s45, s55")
        A("s_cmp_eq_u32 s4, 7")
        A("s_cbranch_scc1 L_pg7")
        A("s_cmp_eq_u32 s7, 1")
        A("s_cselect_b32 s58, s50, s54"); A("s_cselect_b32 s59, s51, s55")
        A("s_cmp_eq_u32 s7, 2")
        A("s_cselect_b32 s54, s46, s54"); A("s_cselect_b32 s55, s47, s55")
        A("s_cmp_eq_u32 s7, 3")
        A("s_cselect_b32 s54, s48, s54"); A("s_cselect_b32 s55, s49, s55")
        k.label("L_pg7")
        A(f"v_mov_b32 v{t5}, 0")
    if o["pgt"] == 1:
        A(f"v_mov_b32 v{t5}, 0")
        A(f"v_mov_b32 v{t6}, {63 * 3584}")
        A("s_mov_b64 exec, 1")
        for sreg in (40, 42, 44):
            A(f"global_load_dword v{vJunk}, v{t5}, s[{sreg}:{sreg + 1}] nt")
        A("s_cmp_eq_u32 s4, 7")
        A("s_cselect_b32 s46, s40, s46"); A("s_cselect_b32 s47, s41, s47")
        A("s_cselect_b32 s48, s40, s48"); A("s_cselect_b32 s49, s41, s49")
        A("s_cselect_b32 s50, s40, s50"); A("s_cselect_b32 s51, s41, s51")
        for sreg in (46, 48, 50):
            A(f"global_load_dword v{vJunk}, v{t5}, s[{sreg}:{sreg + 1}] nt")
        A("s_mov_b64 exec, -1")
        npt = 6
    A("s_cmp_eq_u32 s4, 7")
    A("s_cbranch_scc1 L_loader7")
    k.in_loader = True
    emit_loader(order[1:], pend=[(15, F_WQ)], n=16 + npt)
    if stamps:
        A("s_waitcnt lgkmcnt(0)")
        A("s_lshl_b32 s8, s2, 3")
        A("s_add_u32 s8, s8, 4")
        A("s_lshl_b32 s8, s8, 6")
        A(f"s_add_u32 s8, s8, {WS_STAMP}")
        A(f"v_mov_b32 v{t0}, s8")
        for i in range(8):
            A(f"v_mov_b32 v{vG + 12 + i}, s{78 + 2 * i}")
        A("s_mov_b64 exec, 1")
        for q in range(2):
            A(f"global_store_dwordx4 v{t0}, {vr(vG + 12 + 4 * q, 4)}, s[38:39] offset:{q * 16}")
    A("s_endpgm")
    A(";;LOADER7")
    k.label("L_loader7")
    emit_loader([x for x in order[1:] if x[0] not in "abG"], pend=[(15, F_WQ)], n=16 + npt)
    k.label("L_end")
    A("s_endpgm")

    k.label("L_panic")
    A("s_mov_b64 s[100:101], exec")
    A("s_mov_b64 exec, -1")
    for i in range(4):
        A(f"global_load_dwordx4 {vr(vPT, 4)}, v{vL16}, s[42:43] offset:{i * 1024} sc1")
        A("s_waitcnt vmcnt(0)")
        A(f"global_store_dwordx4 v{vL16}, {vr(vPT, 4)}, s[48:49] offset:{i * 1024} sc1")
        A("s_waitcnt vmcnt(0)")
    A("s_xor_b32 s50, s40, s46")
    A("s_xor_b32 s51, s41, s47")
    A("s_add_u32 s62, s62, 1")
    A(f"s_cmp_ge_u32 s62, {PANIC_MAX}")
    A("s_cbranch_scc1 L_end")
    A("s_mov_b64 exec, s[100:101]")
    A("s_setpc_b64 s[64:65]")

    L = list(k.L)
    i0 = L.index("L_loader:"); i1 = L.index("    ;;LOADER7")
    ld = L[i0:i1]
    L = L[:i0] + L[i1:]
    ih = L.index("    ;;LOADER_HERE")
    L = L[:ih] + ld + L[ih + 1:]
    body = fix_hazards(L)
    body.append(f"    .fill (({NAME} + {CODE_PF_BYTES + 256} - .) >> 2) * ((({NAME} + {CODE_PF_BYTES + 256} - .) >> 63) + 1), 4, 0xbf810000")

    nv = (ra.next + 7) // 8 * 8
    tail = []
    tail.append('.section .rodata,"a"')
    tail.append(".p2align 6")
    tail.append(f".amdhsa_kernel {NAME}")
    tail.append(f"  .amdhsa_next_free_vgpr {nv}")
    tail.append("  .amdhsa_next_free_sgpr 102")
    tail.append(f"  .amdhsa_accum_offset {nv}")
    tail.append("  .amdhsa_group_segment_fixed_size 0")
    tail.append("  .amdhsa_kernarg_size 96")
    tail.append("  .amdhsa_user_sgpr_count 2")
    tail.append("  .amdhsa_user_sgpr_kernarg_segment_ptr 1")
    tail.append("  .amdhsa_system_sgpr_workgroup_id_x 1")
    tail.append(".end_amdhsa_kernel")
    return "\n".join(hdr + body + tail) + "\n"


if __name__ == "__main__":
    import argparse
    ap = argparse.ArgumentParser()
    ap.add_argument("-o", default="sequential_preLN__sliding_block_cached__glu_gated_swiglu__decode.s")
    ap.add_argument("--stamps", default="")
    ap.add_argument("--dbgtime", action="store_true")
    ap.add_argument("--opt", action="append", default=[])
    a = ap.parse_args()
    st = [int(x) for x in a.stamps.split(",")] if a.stamps else None
    opts = {}
    for kv in a.opt:
        kk, vv = kv.split("=")
        opts[kk] = int(vv) if vv.lstrip("-").isdigit() else vv
    open(a.o, "w").write(gen(st, a.dbgtime, **opts))
```
